```python
import torch

def _softmax(x, axis=-1):
    return torch.softmax(x, dim=axis)
def _gelu(x):
    return torch.nn.functional.gelu(x, approximate="tanh")
def _silu(x):
    return torch.nn.functional.silu(x)
def _sigmoid(x):
    return torch.sigmoid(x)
def _layernorm(x, axis=-1, eps=1e-5):
    m = x.mean(dim=axis, keepdim=True)
    v = x.var(dim=axis, keepdim=True, unbiased=False)
    return (x - m) / torch.sqrt(v + eps)
def _scatter_add(tgt, idx, src, axis=0):
    return tgt.clone().index_add_(axis, idx, src)
def _segment_sum(src, seg, n):
    out = torch.zeros((n,) + src.shape[1:], dtype=src.dtype)
    return out.index_add_(0, seg, src)
def _pad(x, pw):
    flat = tuple(v for pair in reversed(pw) for v in pair)
    return torch.nn.functional.pad(x, flat)

kernel_name = 'standalone__gqa_softmax__near_ridge'

def setup_inputs():

    _w = (lambda a: (lambda t: t.to(torch.bfloat16) if t.is_floating_point() else t)(torch.as_tensor(a)))
    B, Hq, Hkv, Sq, Sk, D = 8, 32, 32, 432, 1024, 192
    return {
        "q": _w((lambda *s: torch.randn(*s, dtype=torch.bfloat16) * 0.8)(B, Hq, Sq, D)),
        "k": _w((lambda *s: torch.randn(*s, dtype=torch.bfloat16) * 0.8)(B, Hkv, Sk, D)),
        "v": _w((lambda *s: torch.randn(*s, dtype=torch.bfloat16) * 0.05)(B, Hkv, Sk, D)),
    }

def reference(q, k, v):
    B, Hq, Sq, D = q.shape
    Hkv = k.shape[1]
    rep = Hq // Hkv
    k = (lambda x, n, axis: torch.repeat_interleave(x, n, dim=axis))(k, rep, axis=1)
    v = (lambda x, n, axis: torch.repeat_interleave(x, n, dim=axis))(v, rep, axis=1)
    scale = D ** -0.5
    scores = torch.einsum("bhqd,bhkd->bhqk", q, k) * scale
    p = _softmax(scores, axis=-1)
    return torch.einsum("bhqk,bhkd->bhqd", p, v)
```

```python
import re


def regs(prefix, base, n=1):
    return [f"{prefix}{base + i}" for i in range(n)]


def rng(prefix, base, n):
    return f"{prefix}{base}" if n == 1 else f"{prefix}[{base}:{base + n - 1}]"


class Op:
    __slots__ = ("p", "b", "n")

    def __init__(self, p, b, n=1):
        self.p, self.b, self.n = p, b, n

    def __str__(self):
        return rng(self.p, self.b, self.n)

    def regs(self):
        return regs(self.p, self.b, self.n)

    def sub(self, i, n=1):
        assert i + n <= self.n
        return Op(self.p, self.b + i, n)


def V(b, n=1):
    return Op("v", b, n)


def A(b, n=1):
    return Op("a", b, n)


def S(b, n=1):
    return Op("s", b, n)


class Inst:
    __slots__ = ("text", "kind", "rd", "wr", "tag", "need", "srcc", "lgk", "vm", "note", "nop")

    def __init__(self, text, kind, rd=(), wr=(), tag=None, need=None, srcc=(), note=""):
        self.text = text
        self.kind = kind
        self.rd = set(rd)
        self.wr = set(wr)
        self.tag = tag
        self.need = need
        self.srcc = set(srcc)
        self.lgk = None
        self.vm = None
        self.note = note
        self.nop = 0


def _rr(*ops):
    out = []
    for o in ops:
        if isinstance(o, Op):
            out += o.regs()
        elif isinstance(o, str) and o in ("vcc", "m0", "exec", "scc"):
            out.append(o)
    return out


def mfma(d, a, b, c):
    cs = str(c)
    return Inst(f"v_mfma_f32_16x16x32_bf16 {d}, {a}, {b}, {cs}", "mfma", rd=_rr(a, b, c), wr=_rr(d), srcc=_rr(c))


def valu(op, d, *src, kind="valu", extra_rd=(), extra_wr=()):
    s = ", ".join(str(x) for x in (d,) + src)
    srcs = []
    for x in src:
        if isinstance(x, Op):
            srcs.append(x)
    return Inst(f"{op} {s}", kind, rd=_rr(*srcs) + list(extra_rd), wr=_rr(d) + list(extra_wr))


def trans(op, d, s):
    return valu(op, d, s, kind="trans")


def perm(op, a, b):
    return Inst(f"{op} {a}, {b}", "perm", rd=_rr(a, b), wr=_rr(a, b))


def rfl(d, s):
    return Inst(f"v_readfirstlane_b32 {d}, {s}", "rfl", rd=_rr(s), wr=_rr(d))


def salu(op, d, *src):
    s = ", ".join(str(x) for x in (d,) + src)
    k = "m0" if d == "m0" else "salu"
    return Inst(f"{op} {s}", k, rd=_rr(*src), wr=_rr(d))


def scmp(op, a, b):
    return Inst(f"{op} {a}, {b}", "salu", rd=_rr(a, b))


def dsr(op, d, addr, off=0):
    o = f" offset:{off}" if off else ""
    assert 0 <= off < 65536, off
    return Inst(f"{op} {d}, {addr}{o}", "lds", rd=_rr(addr), wr=_rr(d))


def dsw(op, addr, data, off=0):
    o = f" offset:{off}" if off else ""
    assert 0 <= off < 65536, off
    return Inst(f"{op} {addr}, {data}{o}", "ldsw", rd=_rr(addr, data))


def bload(d, voff, srd, soff, off=0, tag=None, mods=""):
    o = f" offset:{off}" if off else ""
    assert 0 <= off < 4096
    return Inst(f"buffer_load_dwordx4 {d}, {voff}, {srd}, {soff} offen{o}{mods}", "vmem", rd=_rr(voff, srd, soff), wr=_rr(d), tag=tag)


def bdma(voff, srd, soff, off=0, tag=None, mods=""):
    o = f" offset:{off}" if off else ""
    assert 0 <= off < 4096
    return Inst(f"buffer_load_dwordx4 {voff}, {srd}, {soff} offen{o}{mods} lds", "dma", rd=_rr(voff, srd, soff, "m0"), tag=tag)


def bstore(data, voff, srd, soff, off=0, tag=None, mods=""):
    o = f" offset:{off}" if off else ""
    assert 0 <= off < 4096
    n = data.n
    op = {1: "buffer_store_dword", 2: "buffer_store_dwordx2", 4: "buffer_store_dwordx4"}[n]
    return Inst(f"{op} {data}, {voff}, {srd}, {soff} offen{o}{mods}", "vst", rd=_rr(data, voff, srd, soff), tag=tag)


def waitsite(need=None):
    return Inst("", "wait", need=need or {})


def label(name):
    return Inst(f"{name}:", "label")


def branch(op, target):
    return Inst(f"{op} {target}", "branch")


def barrier():
    return Inst("s_barrier", "barrier")


def raw(text, kind="raw", rd=(), wr=()):
    return Inst(text, kind, rd=rd, wr=wr)


VALU_KINDS = ("valu", "trans", "perm", "rfl")


class Sim:
    def __init__(self):
        self.lq = []
        self.vq = []
        self.hist = []
        self.maxvq = 0

    @staticmethod
    def _abs(tag, base):
        if tag is None:
            return None
        return (tag[0], tag[1] + base)

    def run(self, seq):
        for i, (ins, base) in enumerate(seq):
            if ins.kind == "wait":
                self._resolve_wait(seq, i)
                continue
            if ins.kind == "label":
                continue
            self._check_covered(ins)
            self._hazard(ins)
            if ins.kind in ("lds", "ldsw"):
                self.lq.append(ins)
            elif ins.kind in ("vmem", "vst", "dma"):
                self.vq.append((ins, self._abs(ins.tag, base)))
                self.maxvq = max(self.maxvq, len(self.vq))
            self.hist.append(ins)
            if len(self.hist) > 40:
                self.hist.pop(0)

    def _resolve_wait(self, seq, i):
        w, base = seq[i]
        touched = set()
        j = i + 1
        while j < len(seq) and seq[j][0].kind != "wait":
            touched |= seq[j][0].rd | seq[j][0].wr
            j += 1
        need = -1
        for k, o in enumerate(self.lq):
            if o.wr & touched:
                need = k
        if w.need.get("lgkm0") and self.lq:
            need = len(self.lq) - 1
        if need >= 0:
            cnt = min(len(self.lq) - 1 - need, 15)
            w.lgk = cnt if w.lgk is None else min(w.lgk, cnt)
        if w.lgk is not None and w.lgk < len(self.lq):
            self.lq = self.lq[len(self.lq) - w.lgk:]
        need = -1
        tags = [self._abs(t, base) for t in w.need.get("vm", ())]
        for k, (o, t) in enumerate(self.vq):
            if (o.wr & touched) or w.need.get("vm0") or (t is not None and t in tags):
                need = k
        if need >= 0:
            cnt = min(len(self.vq) - 1 - need, 63)
            w.vm = cnt if w.vm is None else min(w.vm, cnt)
        if w.vm is not None and w.vm < len(self.vq):
            self.vq = self.vq[len(self.vq) - w.vm:]

    def _check_covered(self, ins):
        t = ins.rd | ins.wr
        for o in self.lq:
            if o.wr & t:
                raise RuntimeError(f"uncovered LDS dependency: '{ins.text}' touches result of '{o.text}'")
        for o, _ in self.vq:
            if o.wr & t:
                raise RuntimeError(f"uncovered VMEM dependency: '{ins.text}' touches result of '{o.text}'")

    def _hazard(self, ins):
        need = 0
        dist = 0
        for p in reversed(self.hist):
            req = self._req(p, ins)
            if req > dist:
                need = max(need, req - dist)
            dist += 1 + p.nop
            if p.kind == "raw":
                m = re.match(r"s_nop (\d+)", p.text)
                if m:
                    dist += int(m.group(1))
            if dist > 24:
                break
        if need > ins.nop:
            ins.nop = need

    @staticmethod
    def _req(p, c):
        pk, ck = p.kind, c.kind
        r = 0
        if pk in VALU_KINDS:
            vw = {x for x in p.wr if x[0] in "va" and x != "vcc"}
            sw = {x for x in p.wr if x[0] == "s" or x == "vcc"}
            if ck == "mfma" and vw & c.rd:
                r = max(r, 2)
            if pk == "trans" and ck in ("valu", "perm", "rfl") and vw & c.rd:
                r = max(r, 1)
            if ck == "perm" and vw & c.rd:
                r = max(r, 2)
            if ck == "rfl" and vw & c.rd:
                r = max(r, 1)
            if sw and ck in VALU_KINDS and sw & c.rd:
                r = max(r, 2)
            if sw and ck in ("vmem", "vst", "dma") and sw & c.rd:
                r = max(r, 5)
        if pk == "mfma":
            if ck in VALU_KINDS and p.wr & (c.rd | c.wr):
                r = max(r, 8)
            if ck in ("lds", "ldsw", "vmem", "vst", "dma") and p.wr & (c.rd | c.wr):
                r = max(r, 8)
            if ck == "mfma":
                ab = c.rd - c.srcc
                if p.wr & ab:
                    r = max(r, 8)
                if p.wr & c.srcc and p.wr != c.srcc:
                    r = max(r, 6)
                if p.wr & c.wr and not (p.wr & c.srcc):
                    r = max(r, 6)
            if ck in VALU_KINDS and p.srcc & c.wr:
                r = max(r, 3)
        if pk == "m0" and ck == "dma":
            r = max(r, 1)
        if pk == "vst" and ck in VALU_KINDS and (p.rd & c.wr):
            r = max(r, 2)
        if pk == "vst" and ck in ("lds", "vmem", "mfma") and (p.rd & c.wr):
            r = max(r, 1)
        return r


def render(seq):
    out = []
    for ins in seq:
        if ins.kind == "wait":
            parts = []
            if ins.vm is not None:
                parts.append(f"vmcnt({ins.vm})")
            if ins.lgk is not None:
                parts.append(f"lgkmcnt({ins.lgk})")
            if parts:
                out.append("    s_waitcnt " + " ".join(parts))
            continue
        n = ins.nop
        while n > 0:
            k = min(n, 16)
            out.append(f"    s_nop {k - 1}")
            n -= k
        if ins.kind == "label":
            out.append(ins.text)
        else:
            out.append("    " + ins.text + (f"   ; {ins.note}" if ins.note else ""))
    return out
```

```python
import sys, struct, math
sys.path.insert(0, "gen")
from asmlib import *

P = dict(
    LAT=4,
    LDSLAT=8,
    THR=20,
    check=1,
    stamp=0,
    verbose=0,
)
for a in sys.argv[2:]:
    k, v = a.split("=")
    P[k] = type(P[k])(v) if k in P else v

NAME = "standalone__gqa_softmax__near_ridge_kernel"
ROWB = 384
GRP = 12288
HEADQ = 432 * ROWB
HEADK = 1024 * ROWB
KBASE, VBASE, XBASE = 0, 49152, 98304
XW = 6656
LDS_BYTES = XBASE + 4 * XW
NG = 32

sQ, sK, sV, sO = S(12, 4), S(16, 4), S(20, 4), S(24, 4)
sW, sKoff, sVoff, sCnt, sPh, sWb, sC, sTh, sRet = (S(i) for i in range(28, 37))
sRowOwn, sRowSh, sNRowOwn, sNRowSh = S(37), S(38), S(39), S(40)
sT = [S(i) for i in range(44, 60)]
sQp, sOp = S(4, 2), S(10, 2)
sWs = S(60, 4)
sStamp = S(64, 2)

vLane = V(1)
vKA = [V(2), V(3)]
vVA = [V(4 + i) for i in range(4)]
vDK, vDV = V(8), V(9)
vQO, vOO = V(10), V(11)
vL = [V(12 + t) for t in range(4)]
vLG = [[V(16 + 4 * b + t) for t in range(4)] for b in range(2)]
vT = [V(24 + i) for i in range(24)]
vCI = [V(48 + 4 * t, 4) for t in range(4)]
vS = [[V(64 + 8 * t + 4 * kt, 4) for kt in range(2)] for t in range(4)]
vP = [[V(96 + 16 * b + 4 * t, 4) for t in range(4)] for b in range(2)]
vVF = [V(128 + 4 * i, 4) for i in range(8)]
vQ = [[V(160 + 24 * t + 4 * s, 4) for s in range(6)] for t in range(4)]
aO = [[A(48 * t + 4 * dt, 4) for dt in range(12)] for t in range(4)]
aKF = [[A(192 + 24 * kt + 4 * s, 4) for s in range(6)] for kt in range(2)]
vChk = V(28)
vQoff = [V(24 + t) for t in range(4)]


def f32bits(x):
    return struct.unpack("<I", struct.pack("<f", x))[0]


def tiles(G, wp):
    return [0, 1, 2, 3] if (G % 2) == wp else [0, 1, 2]


def buf(G, wp):
    return 0 if (G % 2) == wp else 1


def item_insts(key, wp, e):
    k = key[0]
    if k == "exp":
        _, G, t, kt, r = key
        x = vS[t][kt].sub(r)
        return [trans("v_exp_f32", x, x)]
    if k == "add":
        _, G, t, i = key
        lg = vLG[buf(G, wp)][t]
        if i == 0:
            return [valu("v_add_f32", lg, vS[t][0].sub(0), vS[t][0].sub(1))]
        j = i + 1
        return [valu("v_add_f32", lg, lg, vS[t][j // 4].sub(j % 4))]
    if k == "cvt":
        _, G, t, kt, h = key
        return [valu("v_cvt_pk_bf16_f32", vP[buf(G, wp)][t].sub(2 * kt + h), vS[t][kt].sub(2 * h), vS[t][kt].sub(2 * h + 1))]
    if k == "chkA":
        lg = vLG[buf(key[1], wp)]
        return [valu("v_max3_f32", vChk, lg[0], lg[1], lg[2])]
    if k == "chkB":
        lg = vLG[buf(key[1], wp)]
        return [valu("v_max_f32", vChk, vChk, lg[3])]
    if k == "chkC":
        return [Inst(f"v_cmp_lt_f32 vcc, {sTh}, {vChk}", "valu", rd=vChk.regs() + sTh.regs(), wr=["vcc"])]
    if k == "ladd":
        _, G, t = key
        lg = vLG[buf(G, wp)][t]
        first = (G == 0) if t < 3 else (G == wp)
        if first:
            return [valu("v_mov_b32", vL[t], lg)]
        return [valu("v_add_f32", vL[t], vL[t], lg)]
    if k == "vrd":
        _, G, dt, hf = key
        return [dsr("ds_read_b64_tr_b16", vVF[dt % 8].sub(2 * hf, 2), vVA[dt % 4], (G % 4) * GRP + hf * 6144 + (dt // 4) * 1024)]
    if k == "krd":
        _, G, kt, s = key
        return [dsr("ds_read_b128", aKF[kt][s], vKA[s % 2], (G % 4) * GRP + kt * 6144 + (s // 2) * 1024)]
    if k == "dmaV":
        _, G, cb = key
        return [bdma(vDV, sV, sVoff, cb * 128, tag=("V", G - e))]
    if k == "dmaK":
        _, G, cb = key
        return [bdma(vDK, sK, sKoff, cb * 128, tag=("K", G - e))]
    if k == "qadd":
        _, t = key
        if t < 3:
            return [valu("v_add_u32", vQoff[t], sT[t], vQO)]
        return [valu("v_add_u32", vQoff[t], sNRowSh, vQO)]
    if k == "qld":
        _, t, s = key
        return [bload(vQ[t][s], vQoff[t], sQ, 0, 64 * s)]
    if k == "mx":
        _, t, i = key
        m, s0, s1 = vT[8 + 2 * t], vS[t][0], vS[t][1]
        m2 = vT[9 + 2 * t]
        if i == 0:
            return [valu("v_max3_f32", m, s0.sub(0), s0.sub(1), s0.sub(2))]
        if i == 1:
            return [valu("v_max3_f32", m, m, s0.sub(3), s1.sub(0))]
        if i == 2:
            return [valu("v_max3_f32", m, m, s1.sub(1), s1.sub(2))]
        if i == 3:
            return [valu("v_max_f32", m, m, s1.sub(3))]
        if i in (4, 7):
            return [valu("v_mov_b32", m2, m)]
        if i == 5:
            return [perm("v_permlane32_swap_b32", m, m2)]
        if i == 8:
            return [perm("v_permlane16_swap_b32", m, m2)]
        if i in (6, 9):
            return [valu("v_max_f32", m, m, m2)]
    if k == "ci":
        _, t, r = key
        return [valu("v_sub_f32", vCI[t].sub(r), 0, vT[8 + 2 * t])]
    if k == "sub":
        _, t, kt, r = key
        x = vS[t][kt].sub(r)
        return [valu("v_sub_f32", x, x, vT[8 + 2 * t])]
    raise KeyError(key)


def m0_for(key):
    k, G, cb = key
    base = (KBASE if k == "dmaK" else VBASE) + (G % 4) * GRP + cb * (1024 - 128)
    return salu("s_add_u32", "m0", sWb, base)


CLS = dict(exp=("exp", 8), add=("valu", 4), cvt=("valu", 4), chkA=("valu", 4), chkB=("valu", 4), chkC=("valu", 4),
           ladd=("valu", 4), vrd=("lds", 4), krd=("lds", 4), dmaV=("dma", 8), dmaK=("dma", 8), qadd=("valu", 4),
           qld=("dma", 8), mx=("valu", 4), ci=("valu", 4), sub=("valu", 4))


class Item:
    def __init__(self, key, hard, soft, dead, deps=()):
        self.key, self.hard, self.soft, self.dead = key, hard, max(hard, soft), dead
        self.deps = list(deps)
        self.cls, self.cost = CLS[key[0]]
        self.placed = None


class Region:
    def __init__(self, wp, e0, e1, regular=False):
        self.wp, self.e0, self.e1, self.regular = wp, e0, e1, regular
        self.mf = []
        self.qs, self.qe, self.pvs, self.pvu, self.pvd = {}, {}, {}, {}, {}
        self.kfl = {}
        self.ql = {}
        self.st, self.en = {}, {}
        last = NG - 1
        for e in range(e0, e1 + 1):
            self.st[e] = len(self.mf)
            G = e + 1
            if regular or G <= last:
                if e == -1:
                    order = [(t, kt) for t in range(4) for kt in range(2)]
                else:
                    order = [(t, kt) for kt in range(2) for t in tiles(G, wp)]
                for t, kt in order:
                    self.qs[(G, t, kt)] = len(self.mf)
                    for s in range(6):
                        self.kfl[(G, kt, s)] = len(self.mf)
                        self.ql[(t, s)] = len(self.mf)
                        self.mf.append((e, ("qk", G, t, kt, s)))
                    self.qe[(G, t, kt)] = len(self.mf) - 1
            else:
                self.mf.append((e, None))
            if e >= 0:
                self.pvs[e] = len(self.mf)
                for dt in range(12):
                    self.pvu[(e, dt)] = len(self.mf)
                    for t in tiles(e, wp):
                        self.mf.append((e, ("pv", e, t, dt)))
                    self.pvd[(e, dt)] = len(self.mf) - 1
            self.en[e] = len(self.mf) - 1
        self.n = len(self.mf)

    def sm_items(self, G, only=None, skip=None):
        wp = self.wp
        BIG = 10 ** 6
        items = {}
        pvs = self.pvs.get(G, BIG)

        def add(it):
            items[it.key] = it

        for t in tiles(G, wp):
            G2 = G + 1 if t < 3 else G + 2
            qd = {}
            for kt in range(2):
                ov = self.qs.get((G2, t, kt), BIG)
                qd[kt] = min(ov - 1, pvs - 6)
                qe = self.qe.get((G, t, kt), -1)
                for r in range(4):
                    deps = [("sub", t, kt, r)] if G == 0 and not self.regular else []
                    add(Item(("exp", G, t, kt, r), qe, qe + P["LAT"], qd[kt] - 3, deps))
                for h in range(2):
                    add(Item(("cvt", G, t, kt, h), qe, 0, qd[kt], [("exp", G, t, kt, 2 * h), ("exp", G, t, kt, 2 * h + 1)]))
            for i in range(7):
                j = i + 1
                deps = [("exp", G, t, j // 4, j % 4)]
                deps.append(("exp", G, t, 0, 0) if i == 0 else ("add", G, t, i - 1))
                add(Item(("add", G, t, i), -1, 0, qd[j // 4], deps))
            add(Item(("ladd", G, t), pvs, 0, self.en.get(G, BIG), [("add", G, t, 6)]))
        if P["check"] and (G > 0 or self.regular):
            add(Item(("chkA", G), -1, 0, pvs - 5, [("add", G, t, 6) for t in range(3)]))
            lastk = ("chkA", G)
            if len(tiles(G, wp)) == 4:
                add(Item(("chkB", G), -1, 0, pvs - 4, [lastk, ("add", G, 3, 6)]))
                lastk = ("chkB", G)
            add(Item(("chkC", G), -1, 0, pvs - 3, [lastk]))
        out = []
        for k, it in items.items():
            if only is not None and k not in only:
                continue
            if skip is not None and k in skip:
                continue
            out.append(it)
        return out

    def mem_items(self, e):
        items = []
        st, en = self.st[e], self.en[e]
        L = P["LDSLAT"]
        last = NG - 1
        if e >= 0:
            for dt in range(12):
                early = st if dt < 8 else self.pvd[(e, dt - 8)]
                for hf in range(2):
                    items.append(Item(("vrd", e, dt, hf), early, 0, max(early, min(self.pvu[(e, dt)] - 1 - L, en - L))))
        G = e + 2
        if self.regular or G <= last:
            for kt in range(2):
                for s in range(6):
                    early = self.kfl[(G - 1, kt, s)]
                    items.append(Item(("krd", G, kt, s), early, 0, max(early, en - L)))
        dm = []
        if e >= 0:
            dm += [("dmaV", e + 3, cb) for cb in range(3)]
            if e == 0 and not self.regular:
                dm += [("dmaK", 4, cb) for cb in range(3)]
            if self.regular or e <= last - 1:
                dm += [("dmaK", e + 5, cb) for cb in range(3)]
        prev = None
        for j, k in enumerate(dm):
            it = Item(k, st + 1, 0, min(st + 8 * (j + 1), en), [prev] if prev else [])
            items.append(it)
            prev = k
        if e == last and not self.regular:
            for t in range(4):
                items.append(Item(("qadd", t), self.pvs[e], 0, self.pvs[e] + 1 + t // 2))
                for s in range(6):
                    items.append(Item(("qld", t, s), self.pvs[e], 0, en, [("qadd", t)]))
        if e == -1:
            for t in range(4):
                qe = self.qe[(0, t, 1)]
                dead = self.qs.get((1, t, 0), self.qs.get((2, t, 0), en + 1)) - 1
                dead = min(dead, self.en[0])
                for i in range(10):
                    items.append(Item(("mx", t, i), qe, qe + P["LAT"], dead - 8, [("mx", t, i - 1)] if i else []))
                for r in range(4):
                    items.append(Item(("ci", t, r), qe, 0, dead - 1, [("mx", t, 9)]))
                if t in tiles(0, self.wp):
                    for kt in range(2):
                        for r in range(4):
                            items.append(Item(("sub", t, kt, r), qe, 0, dead - 6, [("mx", t, 9)]))
        return items

    def schedule(self, items):
        byk = {it.key: it for it in items}
        for i, it in enumerate(items):
            it.seq = i
            it.deps = [byk[d] for d in it.deps if d in byk]
        gaps = [[] for _ in range(self.n)]
        pending = list(items)
        self.over = 0
        lastdma = -10
        lastb128 = -10

        def ready(it, g, soft=True):
            if (it.soft if soft else it.hard) > g:
                return False
            for d in it.deps:
                if d.placed is None:
                    return False
                if d.placed == g and not (d.cls == "valu" and it.cls in ("valu", "exp")) and soft:
                    return False
            return True

        for g in range(self.n):
            cap = 8
            nl = 0

            def put(it):
                nonlocal cap, nl, lastdma, lastb128
                it.placed = g
                gaps[g].append(it)
                pending.remove(it)
                cap -= it.cost
                if it.cls == "lds":
                    nl += 1
                    if it.key[0] == "krd":
                        lastb128 = g
                if it.key[0] in ("dmaK", "dmaV"):
                    lastdma = g

            def force(it):
                for d in it.deps:
                    if d.placed is None:
                        force(d)
                assert it.hard <= g, (it.key, it.hard, g)
                put(it)

            def fits(it):
                if it.cost > cap:
                    return False
                if it.cls == "lds" and (nl >= 1 or (it.key[0] == "krd" and lastb128 == g - 1)):
                    return False
                if it.key[0] in ("dmaK", "dmaV") and lastdma >= g - 1:
                    return False
                return True

            for it in sorted([x for x in pending if x.dead <= g], key=lambda x: (x.dead, x.seq)):
                if it.placed is None:
                    force(it)
            while cap > 0:
                c = sorted([x for x in pending if ready(x, g) and fits(x)], key=lambda x: (x.dead, x.seq))
                if not c:
                    break
                top = c[0]
                if cap == 8 and top.cost == 4:
                    lds = [x for x in c if x.cls == "lds"]
                    val = [x for x in c if x.cls == "valu"]
                    big = [x for x in c if x.cost == 8]
                    if top.cls == "lds":
                        haspartner = bool(val)
                    else:
                        haspartner = bool(lds) or len(val) > 1 or any(top in x.deps and x.cls == "valu" and all(d is top or d.placed is not None for d in x.deps) for x in pending)
                    if not haspartner and big and top.dead > g + 3:
                        put(big[0])
                        continue
                    put(top)
                    if top.cls == "valu" and lds and fits(lds[0]):
                        put(lds[0])
                    continue
                put(top)
            if cap < 0 and self.mf[g][1] is not None:
                self.over += -cap
        self.left = pending
        self.gaps = gaps
        return gaps


def mf_inst(key, wp, regular=False):
    if key[0] == "qk":
        _, G, t, kt, s = key
        d = vS[t][kt]
        c = d if s else (0 if (G == 0 and not regular) else vCI[t])
        return mfma(d, aKF[kt][s], vQ[t][s], c)
    _, G, t, dt = key
    first = (G == 0) if t < 3 else (G == wp)
    d = aO[t][dt]
    return mfma(d, vVF[dt % 8], vP[buf(G, wp)][t], 0 if first else d)


def relkey(key, e):
    if key[0] in ("qadd", "qld", "mx", "ci", "sub"):
        return key
    return (key[0], key[1] - e) + key[2:]


def abskey(key, e):
    return (key[0], key[1] + e) + key[2:]


def steady_template(wp):
    R = Region(wp, 2, 21, regular=True)
    items = []
    for G in range(3, 23):
        items += R.sm_items(G)
    for e in range(2, 22):
        items += R.mem_items(e)
    gaps = R.schedule(items)
    tm = {}
    for e in range(8, 18):
        cur = [[relkey(it.key, e) for it in gaps[g]] for g in range(R.st[e], R.en[e] + 1)]
        if e % 2 in tm:
            assert tm[e % 2] == cur, f"template not periodic at step {e}"
        tm[e % 2] = cur
    if P["verbose"]:
        for par in (0, 1):
            use = sum(CLS[k[0]][1] for g in tm[par] for k in g)
            ov = sum(max(0, sum(CLS[k[0]][1] for k in g) - 8) for g in tm[par])
            print(f"wp{wp} step parity {par}: fill {use}/{8 * len(tm[par])} overflow {ov}", file=sys.stderr)
            if P["verbose"] > 1:
                for i, g in enumerate(tm[par]):
                    print(i, g, file=sys.stderr)
    return tm


class StepCode:
    def __init__(self, wp):
        self.wp = wp
        self.sites = []

    def emit(self, mf, gapkeys, e, tagname, pvs_local, end_need, regular_first=False):
        wp = self.wp
        G = []
        for i, mk in enumerate(mf):
            g = dict(mf=mf_inst(mk, wp) if mk else None, wait=waitsite(), salu=[], mem=[], val=[], keys=gapkeys[i], post=[])
            for k in gapkeys[i]:
                cls = CLS[k[0]][0]
                (g["mem"] if cls in ("lds", "dma") else g["val"]).append((k, item_insts(k, wp, e)))
            G.append(g)
        for i, g in enumerate(G):
            newmem = []
            nd = 0
            for k, ins in g["mem"]:
                if k[0] in ("dmaK", "dmaV"):
                    prev_has = i == 0 or any(kk[0] in ("dmaK", "dmaV") for kk, _ in G[i - 1]["mem"])
                    if nd == 0 and not prev_has:
                        G[i - 1]["salu"].append(m0_for(k))
                    else:
                        newmem.append((None, [m0_for(k)]))
                    nd += 1
                    newmem.append((k, ins))
                    if k[2] == 2:
                        so = sKoff if k[0] == "dmaK" else sVoff
                        upd = [salu("s_add_u32", so, so, GRP), salu("s_min_u32", so, so, 2 * HEADK - GRP)]
                        if i + 2 < len(G) and not any(kk[0] == k[0] for gg in G[i:i + 3] for kk, _ in gg["mem"] if kk and kk != k):
                            G[i + 1]["salu"].append(upd[0])
                            G[i + 2]["salu"].append(upd[1])
                        else:
                            newmem.append((None, upd))
                else:
                    newmem.append((k, ins))
            g["mem"] = newmem
        out = []
        for i, g in enumerate(G):
            if g["mf"] is not None:
                out.append(g["mf"])
            out.append(g["wait"])
            if pvs_local is not None and i == pvs_local - 1 and P["check"] and e > 0 and g["mf"] is not None:
                out += self.site(e, tagname, G[:i])
            out += g["salu"]
            for _, ins in g["mem"]:
                out += ins
            for _, ins in g["val"]:
                out += ins
            if pvs_local is not None and i == pvs_local - 1 and P["check"] and e > 0 and g["mf"] is None:
                out.append(raw("s_nop 4"))
                out += self.site(e, tagname, G[:i + 1])
            if g["mf"] is None:
                out.append(waitsite())
        if end_need is not None:
            out.append(waitsite(dict(lgkm0=True, vm=end_need)))
            out.append(barrier())
        return out

    def site(self, e, tagname, done_gaps):
        sid = len(self.sites)
        replay = [k for g in done_gaps for k in g["keys"] if k[0] in ("exp", "add", "cvt") and k[1] == e + 1]
        lab = f"L_{tagname}"
        self.sites.append((lab, e, replay))
        return [branch("s_cbranch_vccnz", f"{lab}_rare"), label(f"{lab}_back")]


def stamp(idx):
    if not P["stamp"]:
        return []
    return [raw(f"s_memtime {sStamp}"), raw("s_waitcnt lgkmcnt(0)"),
            valu("v_mov_b32", vT[22], S(64)), valu("v_mov_b32", vT[23], S(66)),
            bstore(vT[22], vT[23], sWs, 0, 4 * idx)]


def q_scale():
    out = []
    for t in range(4):
        for s in range(6):
            out.append(waitsite())
            q = vQ[t][s]
            for r in range(4):
                lo, hi = vT[8 + 2 * r], vT[9 + 2 * r]
                out.append(valu("v_lshlrev_b32", lo, 16, q.sub(r)))
                out.append(valu("v_and_b32", hi, "0xffff0000", q.sub(r)))
            for r in range(4):
                pr = V(vT[8 + 2 * r].b, 2)
                out.append(Inst(f"v_pk_mul_f32 {pr}, {pr}, {S(42, 2)}", "valu", rd=pr.regs() + ["s42", "s43"], wr=pr.regs()))
            for r in range(4):
                out.append(valu("v_cvt_pk_bf16_f32", q.sub(r), vT[8 + 2 * r], vT[9 + 2 * r]))
    return out


def lane_reduce(x, tmp, op):
    return [valu("v_mov_b32", tmp, x), perm("v_permlane32_swap_b32", x, tmp), valu(op, x, x, tmp),
            valu("v_mov_b32", tmp, x), perm("v_permlane16_swap_b32", x, tmp), valu(op, x, x, tmp)]


def epilogue(wp):
    out = [waitsite()]
    for t in range(4):
        out += lane_reduce(vL[t], vT[8 + t], "v_add_f32")
    keep = range(6 * wp, 6 * wp + 6)
    send = range(6 * (1 - wp), 6 * (1 - wp) + 6)
    xa, xb = vT[12], vT[13]
    out.append(salu("s_mul_i32", sT[4], sW, XW))
    out.append(salu("s_xor_b32", sT[5], sW, 1))
    out.append(salu("s_mul_i32", sT[5], sT[5], XW))
    out.append(salu("s_add_u32", sT[4], sT[4], XBASE))
    out.append(salu("s_add_u32", sT[5], sT[5], XBASE))
    out.append(valu("v_lshl_add_u32", xa, vLane, 4, sT[4]))
    out.append(valu("v_lshl_add_u32", xb, vLane, 4, sT[5]))
    for j, dt in enumerate(send):
        out.append(dsw("ds_write_b128", xa, aO[3][dt], 1024 * j))
    ml = V(vT[14].b, 2)
    out.append(valu("v_mov_b32", vT[14], vCI[3].sub(0)))
    out.append(valu("v_mov_b32", vT[15], vL[3]))
    out.append(valu("v_lshl_add_u32", vT[16], vLane, 3, sT[4]))
    out.append(valu("v_lshl_add_u32", vT[17], vLane, 3, sT[5]))
    out.append(dsw("ds_write_b64", vT[16], ml, 6144))
    out.append(waitsite(dict(lgkm0=True)))
    out.append(barrier())
    X = [V(128 + 4 * j, 4) for j in range(6)]
    oml = V(vT[18].b, 2)
    out.append(dsr("ds_read_b64", oml, vT[17], 6144))
    for j in range(6):
        out.append(dsr("ds_read_b128", X[j], xb, 1024 * j))

    def store_pair(t, p, src, voff, k):
        d = V(96 + 4 * (k % 8), 4)
        o = []
        o.append(valu("v_cvt_pk_bf16_f32", d.sub(0), src[0], src[1]))
        o.append(valu("v_cvt_pk_bf16_f32", d.sub(1), src[2], src[3]))
        o.append(valu("v_cvt_pk_bf16_f32", d.sub(2), src[4], src[5]))
        o.append(valu("v_cvt_pk_bf16_f32", d.sub(3), src[6], src[7]))
        return o, [perm("v_permlane16_swap_b32", d.sub(0), d.sub(2)), perm("v_permlane16_swap_b32", d.sub(1), d.sub(3)),
                   bstore(d, voff, sO, 0, 64 * p)]

    k = 0
    tail = []
    for t in range(3):
        inv = V(vT[20].b, 2)
        out.append(trans("v_rcp_f32", vT[20], vL[t]))
        voff = vT[t]
        if t == 0:
            out.append(valu("v_add_u32", voff, sRowOwn, vOO))
        else:
            out.append(valu("v_add_u32", voff, 6144, vT[t - 1]))
        out.append(valu("v_mov_b32", vT[21], vT[20]))
        for p in range(6):
            base = 64 + 8 * (k % 4)
            src = [V(base + i) for i in range(8)]
            for i in range(8):
                out.append(valu("v_accvgpr_read_b32", src[i], aO[t][2 * p + i // 4].sub(i % 4)))
            out += tail
            for i in range(4):
                pr = V(base + 2 * i, 2)
                out.append(Inst(f"v_pk_mul_f32 {pr}, {pr}, {inv}", "valu", rd=pr.regs() + inv.regs(), wr=pr.regs()))
            o, tail = store_pair(t, p, src, voff, k)
            out += o
            k += 1
    out.append(waitsite())
    nm_own, nm_oth, l_oth = vCI[3].sub(0), vT[18], vT[19]
    M = vT[8]
    out.append(valu("v_min_f32", M, nm_own, nm_oth))
    fo, fx = vT[9], vT[10]
    out.append(valu("v_sub_f32", fo, M, nm_own))
    out.append(valu("v_sub_f32", fx, M, nm_oth))
    out.append(trans("v_exp_f32", fo, fo))
    out.append(trans("v_exp_f32", fx, fx))
    out.append(valu("v_mul_f32", vT[11], vL[3], fo))
    out.append(valu("v_fma_f32", vT[11], l_oth, fx, vT[11]))
    out.append(trans("v_rcp_f32", vT[11], vT[11]))
    out.append(valu("v_add_u32", vT[3], sRowSh, vOO))
    out.append(valu("v_mul_f32", fo, fo, vT[11]))
    out.append(valu("v_mul_f32", fx, fx, vT[11]))
    for p3 in range(3):
        p = 3 * wp + p3
        base = 64 + 8 * (k % 4)
        src = [V(base + i) for i in range(8)]
        for i in range(8):
            out.append(valu("v_accvgpr_read_b32", src[i], aO[3][2 * p + i // 4].sub(i % 4)))
        out += tail
        for i in range(8):
            out.append(valu("v_mul_f32", src[i], src[i], fo))
        for i in range(8):
            out.append(valu("v_fma_f32", src[i], X[2 * p3 + i // 4].sub(i % 4), fx, src[i]))
        o, tail = store_pair(3, p, src, vT[3], k)
        out += o
        k += 1
    out += tail
    return out


def phase_setup():
    o = []
    o.append(salu("s_add_u32", sT[4], sT[8], sPh))
    o.append(salu("s_mul_i32", sT[5], sT[4], HEADQ))
    o.append(salu("s_add_u32", S(24), S(10), sT[5]))
    o.append(salu("s_addc_u32", S(25), S(11), 0))
    o.append(salu("s_mov_b32", sRowOwn, sNRowOwn))
    o.append(salu("s_mov_b32", sRowSh, sNRowSh))
    o += next_q_setup(1)
    return o


def next_q_setup(d):
    o = []
    o.append(salu("s_add_u32", sT[4], sPh, d))
    o.append(salu("s_xor_b32", sT[5], sT[4], sT[9]))
    o.append(salu("s_and_b32", sT[5], sT[5], 1))
    o.append(salu("s_mul_i32", sT[5], sT[5], 224 * ROWB))
    o.append(salu("s_mul_i32", sT[6], sW, 48 * ROWB))
    o.append(salu("s_add_u32", sNRowOwn, sT[5], sT[6]))
    o.append(salu("s_lshr_b32", sT[6], sW, 1))
    o.append(salu("s_mul_i32", sT[6], sT[6], 16 * ROWB))
    o.append(salu("s_add_u32", sT[6], sT[6], 192 * ROWB))
    o.append(salu("s_add_u32", sNRowSh, sT[5], sT[6]))
    o.append(salu("s_mov_b32", sT[0], sNRowOwn))
    o.append(salu("s_add_u32", sT[1], sNRowOwn, 6144))
    o.append(salu("s_add_u32", sT[2], sNRowOwn, 12288))
    o.append(scmp("s_cmp_lt_u32", sT[4], 2))
    o.append(salu("s_cselect_b32", S(14), HEADQ, 0))
    o.append(salu("s_min_u32", sT[4], sT[4], 1))
    o.append(salu("s_add_u32", sT[4], sT[4], sT[8]))
    o.append(salu("s_mul_i32", sT[5], sT[4], HEADQ))
    o.append(salu("s_add_u32", S(12), S(4), sT[5]))
    o.append(salu("s_addc_u32", S(13), S(5), 0))
    return o


def prologue():
    o = []
    o.append(scmp("s_cmp_ge_u32", S(2), 256))
    o.append(branch("s_cbranch_scc1", "L_end"))
    o.append(raw("s_load_dwordx4 s[4:7], s[0:1], 0"))
    o.append(raw("s_load_dwordx4 s[8:11], s[0:1], 16"))
    if P["stamp"]:
        o.append(raw("s_load_dwordx2 s[60:61], s[0:1], 40"))
    o.append(valu("v_lshrrev_b32", vT[0], 6, V(0)))
    o.append(valu("v_and_b32", vLane, 63, V(0)))
    o.append(rfl(sW, vT[0]))
    o.append(salu("s_lshr_b32", sT[4], S(2), 4))
    o.append(salu("s_lshl_b32", sT[4], sT[4], 3))
    o.append(salu("s_and_b32", sT[5], S(2), 7))
    o.append(salu("s_add_u32", sT[4], sT[4], sT[5]))
    o.append(salu("s_lshl_b32", sT[8], sT[4], 1))
    o.append(salu("s_lshr_b32", sT[9], S(2), 3))
    o.append(salu("s_and_b32", sT[9], sT[9], 1))
    o.append(salu("s_mul_i32", sT[7], sT[4], 2 * HEADK))
    o.append(salu("s_mul_i32", sWb, sW, 3072))
    o.append(salu("s_mov_b32", sPh, 0))
    o.append(salu("s_mov_b32", sKoff, 0))
    o.append(salu("s_mov_b32", sVoff, 0))
    c = f32bits(math.log2(math.e) / math.sqrt(192.0))
    o.append(salu("s_mov_b32", S(42), hex(c)))
    o.append(salu("s_mov_b32", S(43), hex(c)))
    o.append(salu("s_mov_b32", sTh, hex(f32bits(2.0 ** P["THR"]))))
    l = vLane
    t0, t1, t2, t3 = vT[0], vT[1], vT[2], vT[3]
    o.append(valu("v_lshrrev_b32", t0, 3, l))
    o.append(salu("s_lshl_b32", sT[5], sW, 3))
    o.append(valu("v_add_u32", t0, sT[5], t0))
    o.append(valu("v_mul_u32_u24", t1, ROWB, t0))
    o.append(valu("v_and_b32", t2, 7, l))
    o.append(valu("v_bfe_u32", t3, t0, 1, 3))
    o.append(valu("v_xor_b32", t3, t3, t2))
    o.append(valu("v_lshl_add_u32", vDK, t3, 4, t1))
    o.append(valu("v_bfe_u32", t3, t0, 1, 2))
    o.append(valu("v_lshlrev_b32", t3, 1, t3))
    o.append(valu("v_xor_b32", t3, t3, t2))
    o.append(valu("v_lshl_add_u32", vDV, t3, 4, t1))
    o.append(raw("s_waitcnt lgkmcnt(0)"))
    o.append(salu("s_add_u32", S(16), S(6), sT[7]))
    o.append(salu("s_addc_u32", S(17), S(7), 0))
    o.append(salu("s_mov_b32", S(18), 2 * HEADK))
    o.append(salu("s_mov_b32", S(19), "0x20000"))
    o.append(salu("s_add_u32", S(20), S(8), sT[7]))
    o.append(salu("s_addc_u32", S(21), S(9), 0))
    o.append(salu("s_mov_b32", S(22), 2 * HEADK))
    o.append(salu("s_mov_b32", S(23), "0x20000"))
    o.append(salu("s_mov_b32", S(15), "0x20000"))
    o.append(salu("s_mov_b32", S(26), HEADQ))
    o.append(salu("s_mov_b32", S(27), "0x20000"))
    if P["stamp"]:
        o.append(salu("s_mov_b32", S(62), "0x100000"))
        o.append(salu("s_mov_b32", S(63), "0x20000"))
        o.append(salu("s_lshl_b32", S(66), S(2), 2))
        o.append(salu("s_add_u32", S(66), S(66), sW))
        o.append(salu("s_lshl_b32", S(66), S(66), 8))

    def dma_group(kind, G):
        r = []
        for cb in range(3):
            k = (kind, G, cb)
            r.append(m0_for(k))
            r += item_insts(k, 0, 0)
        so = sKoff if kind == "dmaK" else sVoff
        r.append(salu("s_add_u32", so, so, GRP))
        return r

    o += dma_group("dmaK", 0)
    o += dma_group("dmaK", 1)
    o.append(valu("v_and_b32", t0, 15, l))
    o.append(valu("v_lshrrev_b32", t1, 4, l))
    o.append(valu("v_mul_u32_u24", t2, ROWB, t0))
    o.append(valu("v_lshl_add_u32", vQO, t1, 4, t2))
    o += next_q_setup(0)
    for t in range(4):
        o += item_insts(("qadd", t), 0, 0)
    for t in range(4):
        for s in range(6):
            o += item_insts(("qld", t, s), 0, 0)
    for kind, G in (("dmaV", 0), ("dmaK", 2), ("dmaV", 1), ("dmaK", 3), ("dmaV", 2)):
        o += dma_group(kind, G)
    t0, t1, t2, t3 = vT[4], vT[5], vT[6], vT[7]
    o.append(valu("v_and_b32", t0, 15, l))
    o.append(valu("v_lshrrev_b32", t1, 4, l))
    o.append(valu("v_mul_u32_u24", t2, ROWB, t0))
    o.append(valu("v_and_b32", t3, 1, t1))
    o.append(valu("v_lshl_add_u32", t2, t3, 5, t2))
    o.append(valu("v_lshrrev_b32", t3, 1, t1))
    o.append(valu("v_lshl_add_u32", vOO, t3, 4, t2))
    o.append(valu("v_lshrrev_b32", t2, 3, t0))
    o.append(valu("v_mul_u32_u24", t2, 3072, t2))
    o.append(valu("v_and_b32", t3, 7, t0))
    o.append(valu("v_lshl_add_u32", t2, t3, 7, t2))
    o.append(valu("v_lshrrev_b32", t3, 1, t0))
    o.append(valu("v_xor_b32", t3, t3, t1))
    o.append(valu("v_lshl_add_u32", vKA[0], t3, 4, t2))
    if KBASE:
        o.append(valu("v_add_u32", vKA[0], KBASE, vKA[0]))
    o.append(valu("v_xor_b32", vKA[1], 64, vKA[0]))
    o.append(valu("v_lshrrev_b32", t2, 2, t0))
    o.append(valu("v_and_b32", t3, 1, t1))
    o.append(valu("v_lshl_add_u32", t2, t3, 2, t2))
    o.append(valu("v_lshrrev_b32", t3, 1, t1))
    o.append(valu("v_mul_u32_u24", t3, 3072, t3))
    o.append(valu("v_lshl_add_u32", t3, t2, 7, t3))
    o.append(valu("v_and_b32", t0, 3, l))
    o.append(valu("v_lshl_add_u32", t3, t0, 3, t3))
    o.append(valu("v_add_u32", t3, VBASE, t3))
    o.append(valu("v_lshrrev_b32", t2, 1, t2))
    o.append(valu("v_lshl_add_u32", vVA[0], t2, 5, t3))
    for j in range(1, 4):
        o.append(valu("v_xor_b32", vVA[j], 32 * j, vVA[0]))
    o.append(salu("s_and_b32", sT[4], sW, 1))
    o.append(scmp("s_cmp_eq_u32", sT[4], 1))
    o.append(branch("s_cbranch_scc1", "L_phase_1"))
    return o


def rare_common(wp, typ):
    Gp = wp if typ == 0 else 1 - wp
    o = [label(f"L_rare_{wp}_{typ}"), raw("s_nop 15"), raw("s_nop 15")]
    kt_ = [V(vT[0].b + 4 * s, 4) for s in range(6)]
    ka = V(0)

    def recompute(G, soff, cfun):
        r = []
        for kt in range(2):
            r.append(valu("v_add_u32", ka, 6144 * kt, vQO))
            for s in range(6):
                r.append(bload(kt_[s], ka, sK, soff, 64 * s))
            r.append(raw("s_waitcnt vmcnt(0)"))
            r.append(waitsite(dict(vm0=True)))
            for t in tiles(G, wp):
                for s in range(6):
                    r.append(mfma(vS[t][kt], kt_[s], vQ[t][s], vS[t][kt] if s else cfun(t)))
            r.append(raw("s_nop 15"))
        return r

    o += recompute(Gp, sT[11], lambda t: 0)
    m, m2, f = vT[0], vT[1], vT[2]
    for t in tiles(Gp, wp):
        s0, s1 = vS[t]
        o.append(valu("v_max3_f32", m, s0.sub(0), s0.sub(1), s0.sub(2)))
        o.append(valu("v_max3_f32", m, m, s0.sub(3), s1.sub(0)))
        o.append(valu("v_max3_f32", m, m, s1.sub(1), s1.sub(2)))
        o.append(valu("v_max_f32", m, m, s1.sub(3)))
        o += lane_reduce(m, m2, "v_max_f32")
        o.append(valu("v_sub_f32", m2, 0, vCI[t].sub(0)))
        o.append(valu("v_max_f32", m, m, m2))
        o.append(valu("v_sub_f32", f, m2, m))
        o.append(trans("v_exp_f32", f, f))
        for r in range(4):
            o.append(valu("v_sub_f32", vCI[t].sub(r), 0, m))
        o.append(valu("v_mul_f32", vL[t], vL[t], f))
        for dt in range(12):
            for r in range(4):
                o.append(valu("v_accvgpr_read_b32", vT[4 + r], aO[t][dt].sub(r)))
            for r in range(4):
                o.append(valu("v_mul_f32", vT[4 + r], vT[4 + r], f))
            for r in range(4):
                o.append(valu("v_accvgpr_write_b32", aO[t][dt].sub(r), vT[4 + r]))
        for kt in range(2):
            for r in range(4):
                x = vS[t][kt].sub(r)
                o.append(valu("v_sub_f32", x, x, m))
                o += item_insts(("exp", Gp, t, kt, r), wp, 0)
        for i in range(7):
            o += item_insts(("add", Gp, t, i), wp, 0)
        for kt in range(2):
            for h in range(2):
                o += item_insts(("cvt", Gp, t, kt, h), wp, 0)
    o.append(scmp("s_cmp_eq_u32", sT[10], 0))
    o.append(branch("s_cbranch_scc1", f"L_rare_{wp}_{typ}_ret"))
    o.append(salu("s_add_u32", sT[11], sT[11], GRP))
    o += recompute(Gp + 1, sT[11], lambda t: vCI[t])
    o.append(label(f"L_rare_{wp}_{typ}_ret"))
    return o


def build_phase(wp):
    tm = steady_template(wp)
    sc = StepCode(wp)
    segs = {}
    H = Region(wp, -1, 1)
    done2 = {abskey(k, 1) for g in tm[1 % 2] for k in g if k[0] in ("exp", "add", "cvt", "chkA", "chkB", "chkC") and k[1] == 1}
    items = H.sm_items(0) + H.sm_items(1)
    g2 = H.sm_items(2, only=done2)
    for it in g2:
        it.dead = min(it.dead, H.n - 1)
    items += g2
    for e in (-1, 0, 1):
        items += H.mem_items(e)
    gaps = H.schedule(items)
    assert not H.left, [x.key for x in H.left]
    if P["verbose"]:
        print(f"wp{wp} head overflow {H.over}", file=sys.stderr)

    def cut(R, gaps, e):
        mf = [R.mf[i][1] for i in range(R.st[e], R.en[e] + 1)]
        gk = [[it.key for it in gaps[i]] for i in range(R.st[e], R.en[e] + 1)]
        pv = R.pvs[e] - R.st[e] if e in R.pvs else None
        return mf, gk, pv

    for e in (-1, 0, 1):
        mf, gk, pv = cut(H, gaps, e)
        segs[e] = sc.emit(mf, gk, e, f"h{wp}_{e + 1}", pv, [("V", 1), ("K", 3)])
    R = Region(wp, 2, 5, regular=True)
    for e in range(2, 6):
        mf = [R.mf[i][1] for i in range(R.st[e], R.en[e] + 1)]
        gk = [[abskey(k, e) for k in g] for g in tm[e % 2]]
        segs[e] = sc.emit(mf, gk, e, f"b{wp}_{e}", R.pvs[e] - R.st[e], [("V", 1), ("K", 3)])
    T = Region(wp, 30, 31)
    done30 = {abskey(k, 29) for g in tm[29 % 2] for k in g if k[1] == 1}
    items = T.sm_items(30, skip=done30) + T.sm_items(31)
    for e in (30, 31):
        items += T.mem_items(e)
    gaps = T.schedule(items)
    assert not T.left, [x.key for x in T.left]
    if P["verbose"]:
        print(f"wp{wp} tail overflow {T.over}", file=sys.stderr)
    for e in (30, 31):
        mf, gk, pv = cut(T, gaps, e)
        segs[e] = sc.emit(mf, gk, e, f"t{wp}_{e}", pv, [("V", 1)] if e == 30 else None)

    start = [label(f"L_phase_{wp}")] + phase_setup() + stamp(0)
    start += [waitsite(dict(vm=[("K", 0), ("K", 1)])), barrier()]
    for kt in range(2):
        for s in range(6):
            start += item_insts(("krd", 0, kt, s), wp, 0)
    start += q_scale() + stamp(1) + [waitsite()]
    loop_in = [salu("s_mov_b32", sCnt, 7)] + stamp(2)
    loop_lab = [raw(".p2align 6", kind="label"), label(f"L_loop_{wp}")]
    loop_end = [salu("s_sub_u32", sCnt, sCnt, 1), scmp("s_cmp_lg_u32", sCnt, 0), branch("s_cbranch_scc1", f"L_loop_{wp}")]
    body5 = segs[5]
    segs[5] = body5[:-2] + loop_end[:2] + body5[-2:] + loop_end[2:]
    epi = stamp(4) + epilogue(wp) + stamp(5)
    fin = [salu("s_add_u32", sPh, sPh, 1)]
    if P["stamp"]:
        fin.append(salu("s_add_u32", S(66), S(66), 64))
    fin += [scmp("s_cmp_lt_u32", sPh, 2), branch("s_cbranch_scc1", f"L_phase_{wp}"), raw("s_endpgm")]
    after_loop = stamp(3)

    static = start + segs[-1] + segs[0] + segs[1] + loop_in + loop_lab + segs[2] + segs[3] + segs[4] + segs[5] + after_loop + segs[30] + segs[31] + epi + fin

    def dyn(ph):
        b = 32 * ph
        d = [(i, b) for i in start]
        for e in (-1, 0, 1):
            d += [(i, b + e) for i in segs[e]]
        d += [(i, b) for i in loop_in]
        for it in range(7):
            for e in range(2, 6):
                d += [(i, b + e + 4 * it) for i in segs[e]]
        d += [(i, b) for i in after_loop]
        for e in (30, 31):
            d += [(i, b + e) for i in segs[e]]
        d += [(i, b) for i in epi + fin]
        return d

    rare = []
    if P["check"]:
        for typ in (0, 1):
            mine = [(n, s) for n, s in enumerate(sc.sites) if buf(s[1], wp) == typ]
            for n, (lab, e, replay) in mine:
                rare.append(label(f"{lab}_rare"))
                rare.append(salu("s_mov_b32", sRet, n))
                rare.append(salu("s_mov_b32", sT[10], 0 if e == NG - 1 else 1))
                rare.append(salu("s_mul_i32", sT[11], sPh, HEADK))
                if 2 <= e <= 5:
                    rare.append(salu("s_sub_u32", sT[12], 7, sCnt))
                    rare.append(salu("s_mul_i32", sT[12], sT[12], 4 * GRP))
                    rare.append(salu("s_add_u32", sT[11], sT[11], sT[12]))
                rare.append(salu("s_add_u32", sT[11], sT[11], e * GRP))
                rare.append(branch("s_branch", f"L_rare_{wp}_{typ}"))
            com = rare_common(wp, typ)
            Sim().run([(i, 0) for i in com])
            rare += com
            for n, (lab, e, replay) in mine:
                rare.append(scmp("s_cmp_eq_u32", sRet, n))
                rare.append(branch("s_cbranch_scc1", f"{lab}_replay"))
            rare.append(raw("s_endpgm"))
            for n, (lab, e, replay) in mine:
                rp = [label(f"{lab}_replay")]
                for k in replay:
                    rp += item_insts(k, wp, e)
                rp.append(raw("s_nop 4"))
                Sim().run([(i, 0) for i in rp])
                rare += rp
                rare.append(branch("s_branch", f"{lab}_back"))
    return static, dyn, rare


def main():
    pro = prologue()
    text = []
    body = []
    for wp in (0, 1):
        static, dyn, rare = build_phase(wp)
        for _ in range(2):
            sim = Sim()
            sim.run([(i, 0) for i in pro] + dyn(0) + dyn(1))
        if P["verbose"]:
            nn = sum(i.nop for i in static)
            print(f"wp{wp}: static insts {len(static)} nops {nn} max vq {sim.maxvq}", file=sys.stderr)
        body.append((static, rare))
    hdr = open("standalone__gqa_softmax__near_ridge.s.ref").read().splitlines()
    for ln in hdr:
        if ln.startswith("; @launch"):
            text.append(f"; @launch grid=(256,1,1) block=(256,1,1) lds={LDS_BYTES}")
        elif ln.startswith(";"):
            text.append(ln)
        else:
            break
    text += ["; Generated by gen/genk.py " + " ".join(sys.argv[2:]),
             '.amdgcn_target "amdgcn-amd-amdhsa--gfx950"', ".text", f".globl {NAME}", ".p2align 8",
             f".type {NAME},@function", f"{NAME}:"]
    text += render(pro)
    for static, rare in body:
        text += render(static)
    for static, rare in body:
        text += render(rare)
    text += ["L_end:", "    s_endpgm", '.section .rodata,"a"', ".p2align 6", f".amdhsa_kernel {NAME}",
             "  .amdhsa_next_free_vgpr 512", "  .amdhsa_next_free_sgpr 102", "  .amdhsa_accum_offset 256",
             "  .amdhsa_group_segment_fixed_size 0", "  .amdhsa_kernarg_size 48", "  .amdhsa_user_sgpr_count 2",
             "  .amdhsa_user_sgpr_kernarg_segment_ptr 1", "  .amdhsa_system_sgpr_workgroup_id_x 1", ".end_amdhsa_kernel", ""]
    open(sys.argv[1], "w").write("\n".join(text))


main()
```

```python
import sys, struct, math
sys.path.insert(0, "gen")
from asmlib import *

P = dict(
    LAT=4,
    LDSLAT=8,
    THR=20,
    check=1,
    stamp=0,
    verbose=0,
    fakest=0,
    kvmod="",
    qmod="",
    omod="",
)
for a in sys.argv[2:]:
    k, v = a.split("=")
    P[k] = type(P[k])(v) if k in P else v

NAME = "standalone__gqa_softmax__near_ridge_kernel"
ROWB = 384
GRP = 12288
HEADQ = 432 * ROWB
HEADK = 1024 * ROWB
KBASE, VBASE, XBASE = 0, 49152, 98304
XW = 6656
LDS_BYTES = XBASE + 4 * XW
NG = 32

sQ, sK, sV, sO = S(12, 4), S(16, 4), S(20, 4), S(24, 4)
sW, sKoff, sVoff, sCnt, sPh, sWb, sC, sTh, sRet = (S(i) for i in range(28, 37))
sRowOwn, sRowSh, sNRowOwn, sNRowSh = S(37), S(38), S(39), S(40)
sT = [S(i) for i in range(44, 60)]
sQp, sOp = S(4, 2), S(10, 2)
sWs = S(60, 4)
sStamp = S(64, 2)

vLane = V(1)
vKA = [V(2), V(3)]
vVA = [V(4 + i) for i in range(4)]
vDK, vDV = V(8), V(9)
vQO, vOO = V(10), V(11)
vL = [V(12 + t) for t in range(4)]
vLG = [[V(16 + 4 * b + t) for t in range(4)] for b in range(2)]
vT = [V(24 + i) for i in range(24)]
vCI = [V(48 + 4 * t, 4) for t in range(4)]
vS = [[V(64 + 8 * t + 4 * kt, 4) for kt in range(2)] for t in range(4)]
vP = [[V(96 + 16 * b + 4 * t, 4) for t in range(4)] for b in range(2)]
vVF = [V(128 + 4 * i, 4) for i in range(8)]
vQ = [[V(160 + 24 * t + 4 * s, 4) for s in range(6)] for t in range(4)]
aO = [[A(48 * t + 4 * dt, 4) for dt in range(12)] for t in range(4)]
aKF = [[A(192 + 24 * kt + 4 * s, 4) for s in range(6)] for kt in range(2)]
vChk = V(28)
vQoff = [V(24 + t) for t in range(4)]


def f32bits(x):
    return struct.unpack("<I", struct.pack("<f", x))[0]


def mods(k):
    return "".join(" " + x for x in P[k].split("+") if x)


def tiles(G, wp):
    return [0, 1, 2, 3] if (G % 2) == wp else [0, 1, 2]


def buf(G, wp):
    return 0 if (G % 2) == wp else 1


def item_insts(key, wp, e):
    k = key[0]
    if k == "exp":
        _, G, t, kt, r = key
        x = vS[t][kt].sub(r)
        return [trans("v_exp_f32", x, x)]
    if k == "add":
        _, G, t, i = key
        lg = vLG[buf(G, wp)][t]
        if i == 0:
            return [valu("v_add_f32", lg, vS[t][0].sub(0), vS[t][0].sub(1))]
        j = i + 1
        return [valu("v_add_f32", lg, lg, vS[t][j // 4].sub(j % 4))]
    if k == "cvt":
        _, G, t, kt, h = key
        return [valu("v_cvt_pk_bf16_f32", vP[buf(G, wp)][t].sub(2 * kt + h), vS[t][kt].sub(2 * h), vS[t][kt].sub(2 * h + 1))]
    if k == "chkA":
        lg = vLG[buf(key[1], wp)]
        return [valu("v_max3_f32", vChk, lg[0], lg[1], lg[2])]
    if k == "chkB":
        lg = vLG[buf(key[1], wp)]
        return [valu("v_max_f32", vChk, vChk, lg[3])]
    if k == "chkC":
        return [Inst(f"v_cmp_lt_f32 vcc, {sTh}, {vChk}", "valu", rd=vChk.regs() + sTh.regs(), wr=["vcc"])]
    if k == "ladd":
        _, G, t = key
        lg = vLG[buf(G, wp)][t]
        first = (G == 0) if t < 3 else (G == wp)
        if first:
            return [valu("v_mov_b32", vL[t], lg)]
        return [valu("v_add_f32", vL[t], vL[t], lg)]
    if k == "vrd":
        _, G, dt, hf = key
        return [dsr("ds_read_b64_tr_b16", vVF[dt % 8].sub(2 * hf, 2), vVA[dt % 4], (G % 4) * GRP + hf * 6144 + (dt // 4) * 1024)]
    if k == "krd":
        _, G, kt, s = key
        return [dsr("ds_read_b128", aKF[kt][s], vKA[s % 2], (G % 4) * GRP + kt * 6144 + (s // 2) * 1024)]
    if k == "dmaV":
        _, G, cb = key
        return [bdma(vDV, sV, sVoff, cb * 128, tag=("V", G - e), mods=mods("kvmod"))]
    if k == "dmaK":
        _, G, cb = key
        return [bdma(vDK, sK, sKoff, cb * 128, tag=("K", G - e), mods=mods("kvmod"))]
    if k == "qadd":
        _, t = key
        if t < 3:
            return [valu("v_add_u32", vQoff[t], sT[t], vQO)]
        return [valu("v_add_u32", vQoff[t], sNRowSh, vQO)]
    if k == "qld":
        _, t, s = key
        return [bload(vQ[t][s], vQoff[t], sQ, 0, 64 * s, mods=mods("qmod"))]
    if k == "mx":
        _, t, i = key
        m, s0, s1 = vT[8 + 2 * t], vS[t][0], vS[t][1]
        m2 = vT[9 + 2 * t]
        if i == 0:
            return [valu("v_max3_f32", m, s0.sub(0), s0.sub(1), s0.sub(2))]
        if i == 1:
            return [valu("v_max3_f32", m, m, s0.sub(3), s1.sub(0))]
        if i == 2:
            return [valu("v_max3_f32", m, m, s1.sub(1), s1.sub(2))]
        if i == 3:
            return [valu("v_max_f32", m, m, s1.sub(3))]
        if i in (4, 7):
            return [valu("v_mov_b32", m2, m)]
        if i == 5:
            return [perm("v_permlane32_swap_b32", m, m2)]
        if i == 8:
            return [perm("v_permlane16_swap_b32", m, m2)]
        if i in (6, 9):
            return [valu("v_max_f32", m, m, m2)]
    if k == "ci":
        _, t, r = key
        return [valu("v_sub_f32", vCI[t].sub(r), 0, vT[8 + 2 * t])]
    if k == "sub":
        _, t, kt, r = key
        x = vS[t][kt].sub(r)
        return [valu("v_sub_f32", x, x, vT[8 + 2 * t])]
    raise KeyError(key)


def m0_for(key):
    k, G, cb = key
    base = (KBASE if k == "dmaK" else VBASE) + (G % 4) * GRP + cb * (1024 - 128)
    return salu("s_add_u32", "m0", sWb, base)


CLS = dict(exp=("exp", 8), add=("valu", 4), cvt=("valu", 4), chkA=("valu", 4), chkB=("valu", 4), chkC=("valu", 4),
           ladd=("valu", 4), vrd=("lds", 4), krd=("lds", 4), dmaV=("dma", 8), dmaK=("dma", 8), qadd=("valu", 4),
           qld=("dma", 8), mx=("valu", 4), ci=("valu", 4), sub=("valu", 4))


class Item:
    def __init__(self, key, hard, soft, dead, deps=()):
        self.key, self.hard, self.soft, self.dead = key, hard, max(hard, soft), dead
        self.deps = list(deps)
        self.cls, self.cost = CLS[key[0]]
        self.placed = None


class Region:
    def __init__(self, wp, e0, e1, regular=False):
        self.wp, self.e0, self.e1, self.regular = wp, e0, e1, regular
        self.mf = []
        self.qs, self.qe, self.pvs, self.pvu, self.pvd = {}, {}, {}, {}, {}
        self.kfl = {}
        self.ql = {}
        self.st, self.en = {}, {}
        last = NG - 1
        for e in range(e0, e1 + 1):
            self.st[e] = len(self.mf)
            G = e + 1
            if regular or G <= last:
                if e == -1:
                    order = [(t, kt) for t in range(4) for kt in range(2)]
                else:
                    order = [(t, kt) for kt in range(2) for t in tiles(G, wp)]
                for t, kt in order:
                    self.qs[(G, t, kt)] = len(self.mf)
                    for s in range(6):
                        self.kfl[(G, kt, s)] = len(self.mf)
                        self.ql[(t, s)] = len(self.mf)
                        self.mf.append((e, ("qk", G, t, kt, s)))
                    self.qe[(G, t, kt)] = len(self.mf) - 1
            else:
                self.mf.append((e, None))
            if e >= 0:
                self.pvs[e] = len(self.mf)
                for dt in range(12):
                    self.pvu[(e, dt)] = len(self.mf)
                    for t in tiles(e, wp):
                        self.mf.append((e, ("pv", e, t, dt)))
                    self.pvd[(e, dt)] = len(self.mf) - 1
            self.en[e] = len(self.mf) - 1
        self.n = len(self.mf)

    def sm_items(self, G, only=None, skip=None):
        wp = self.wp
        BIG = 10 ** 6
        items = {}
        pvs = self.pvs.get(G, BIG)

        def add(it):
            items[it.key] = it

        for t in tiles(G, wp):
            G2 = G + 1 if t < 3 else G + 2
            qd = {}
            for kt in range(2):
                ov = self.qs.get((G2, t, kt), BIG)
                qd[kt] = min(ov - 1, pvs - 6)
                qe = self.qe.get((G, t, kt), -1)
                for r in range(4):
                    deps = [("sub", t, kt, r)] if G == 0 and not self.regular else []
                    add(Item(("exp", G, t, kt, r), qe, qe + P["LAT"], qd[kt] - 3, deps))
                for h in range(2):
                    add(Item(("cvt", G, t, kt, h), qe, 0, qd[kt], [("exp", G, t, kt, 2 * h), ("exp", G, t, kt, 2 * h + 1)]))
            for i in range(7):
                j = i + 1
                deps = [("exp", G, t, j // 4, j % 4)]
                deps.append(("exp", G, t, 0, 0) if i == 0 else ("add", G, t, i - 1))
                add(Item(("add", G, t, i), -1, 0, qd[j // 4], deps))
            add(Item(("ladd", G, t), pvs, 0, self.en.get(G, BIG), [("add", G, t, 6)]))
        if P["check"] and (G > 0 or self.regular):
            add(Item(("chkA", G), -1, 0, pvs - 5, [("add", G, t, 6) for t in range(3)]))
            lastk = ("chkA", G)
            if len(tiles(G, wp)) == 4:
                add(Item(("chkB", G), -1, 0, pvs - 4, [lastk, ("add", G, 3, 6)]))
                lastk = ("chkB", G)
            add(Item(("chkC", G), -1, 0, pvs - 3, [lastk]))
        out = []
        for k, it in items.items():
            if only is not None and k not in only:
                continue
            if skip is not None and k in skip:
                continue
            out.append(it)
        return out

    def mem_items(self, e):
        items = []
        st, en = self.st[e], self.en[e]
        L = P["LDSLAT"]
        last = NG - 1
        if e >= 0:
            for dt in range(12):
                early = st if dt < 8 else self.pvd[(e, dt - 8)]
                for hf in range(2):
                    items.append(Item(("vrd", e, dt, hf), early, 0, max(early, min(self.pvu[(e, dt)] - 1 - L, en - L))))
        G = e + 2
        if self.regular or G <= last:
            for kt in range(2):
                for s in range(6):
                    early = self.kfl[(G - 1, kt, s)]
                    items.append(Item(("krd", G, kt, s), early, 0, max(early, en - L)))
        dm = []
        if e >= 0:
            dm += [("dmaV", e + 3, cb) for cb in range(3)]
            if e == 0 and not self.regular:
                dm += [("dmaK", 4, cb) for cb in range(3)]
            if self.regular or e <= last - 1:
                dm += [("dmaK", e + 5, cb) for cb in range(3)]
        prev = None
        for j, k in enumerate(dm):
            it = Item(k, st + 1, 0, min(st + 8 * (j + 1), en), [prev] if prev else [])
            items.append(it)
            prev = k
        if e == last and not self.regular:
            for t in range(4):
                items.append(Item(("qadd", t), self.pvs[e], 0, self.pvs[e] + 1 + t // 2))
                for s in range(6):
                    items.append(Item(("qld", t, s), self.pvs[e], 0, en, [("qadd", t)]))
        if e == -1:
            for t in range(4):
                qe = self.qe[(0, t, 1)]
                dead = self.qs.get((1, t, 0), self.qs.get((2, t, 0), en + 1)) - 1
                dead = min(dead, self.en[0])
                for i in range(10):
                    items.append(Item(("mx", t, i), qe, qe + P["LAT"], dead - 8, [("mx", t, i - 1)] if i else []))
                for r in range(4):
                    items.append(Item(("ci", t, r), qe, 0, dead - 1, [("mx", t, 9)]))
                if t in tiles(0, self.wp):
                    for kt in range(2):
                        for r in range(4):
                            items.append(Item(("sub", t, kt, r), qe, 0, dead - 6, [("mx", t, 9)]))
        return items

    def schedule(self, items):
        byk = {it.key: it for it in items}
        for i, it in enumerate(items):
            it.seq = i
            it.deps = [byk[d] for d in it.deps if d in byk]
        gaps = [[] for _ in range(self.n)]
        pending = list(items)
        self.over = 0
        lastdma = -10
        lastb128 = -10

        def ready(it, g, soft=True):
            if (it.soft if soft else it.hard) > g:
                return False
            for d in it.deps:
                if d.placed is None:
                    return False
                if d.placed == g and not (d.cls == "valu" and it.cls in ("valu", "exp")) and soft:
                    return False
            return True

        for g in range(self.n):
            cap = 8
            nl = 0

            def put(it):
                nonlocal cap, nl, lastdma, lastb128
                it.placed = g
                gaps[g].append(it)
                pending.remove(it)
                cap -= it.cost
                if it.cls == "lds":
                    nl += 1
                    if it.key[0] == "krd":
                        lastb128 = g
                if it.key[0] in ("dmaK", "dmaV"):
                    lastdma = g

            def force(it):
                for d in it.deps:
                    if d.placed is None:
                        force(d)
                assert it.hard <= g, (it.key, it.hard, g)
                put(it)

            def fits(it):
                if it.cost > cap:
                    return False
                if it.cls == "lds" and (nl >= 1 or (it.key[0] == "krd" and lastb128 == g - 1)):
                    return False
                if it.key[0] in ("dmaK", "dmaV") and lastdma >= g - 1:
                    return False
                return True

            for it in sorted([x for x in pending if x.dead <= g], key=lambda x: (x.dead, x.seq)):
                if it.placed is None:
                    force(it)
            while cap > 0:
                c = sorted([x for x in pending if ready(x, g) and fits(x)], key=lambda x: (x.dead, x.seq))
                if not c:
                    break
                top = c[0]
                if cap == 8 and top.cost == 4:
                    lds = [x for x in c if x.cls == "lds"]
                    val = [x for x in c if x.cls == "valu"]
                    big = [x for x in c if x.cost == 8]
                    if top.cls == "lds":
                        haspartner = bool(val)
                    else:
                        haspartner = bool(lds) or len(val) > 1 or any(top in x.deps and x.cls == "valu" and all(d is top or d.placed is not None for d in x.deps) for x in pending)
                    if not haspartner and big and top.dead > g + 3:
                        put(big[0])
                        continue
                    put(top)
                    if top.cls == "valu" and lds and fits(lds[0]):
                        put(lds[0])
                    continue
                put(top)
            if cap < 0 and self.mf[g][1] is not None:
                self.over += -cap
        self.left = pending
        self.gaps = gaps
        return gaps


def mf_inst(key, wp, regular=False):
    if key[0] == "qk":
        _, G, t, kt, s = key
        d = vS[t][kt]
        c = d if s else (0 if (G == 0 and not regular) else vCI[t])
        return mfma(d, aKF[kt][s], vQ[t][s], c)
    _, G, t, dt = key
    first = (G == 0) if t < 3 else (G == wp)
    d = aO[t][dt]
    return mfma(d, vVF[dt % 8], vP[buf(G, wp)][t], 0 if first else d)


def relkey(key, e):
    if key[0] in ("qadd", "qld", "mx", "ci", "sub"):
        return key
    return (key[0], key[1] - e) + key[2:]


def abskey(key, e):
    return (key[0], key[1] + e) + key[2:]


def steady_template(wp):
    R = Region(wp, 2, 21, regular=True)
    items = []
    for G in range(3, 23):
        items += R.sm_items(G)
    for e in range(2, 22):
        items += R.mem_items(e)
    gaps = R.schedule(items)
    tm = {}
    for e in range(8, 18):
        cur = [[relkey(it.key, e) for it in gaps[g]] for g in range(R.st[e], R.en[e] + 1)]
        if e % 2 in tm:
            assert tm[e % 2] == cur, f"template not periodic at step {e}"
        tm[e % 2] = cur
    if P["verbose"]:
        for par in (0, 1):
            use = sum(CLS[k[0]][1] for g in tm[par] for k in g)
            ov = sum(max(0, sum(CLS[k[0]][1] for k in g) - 8) for g in tm[par])
            print(f"wp{wp} step parity {par}: fill {use}/{8 * len(tm[par])} overflow {ov}", file=sys.stderr)
            if P["verbose"] > 1:
                for i, g in enumerate(tm[par]):
                    print(i, g, file=sys.stderr)
    return tm


class StepCode:
    def __init__(self, wp):
        self.wp = wp
        self.sites = []

    def emit(self, mf, gapkeys, e, tagname, pvs_local, end_need, regular_first=False):
        wp = self.wp
        G = []
        for i, mk in enumerate(mf):
            g = dict(mf=mf_inst(mk, wp) if mk else None, wait=waitsite(), salu=[], mem=[], val=[], keys=gapkeys[i], post=[])
            for k in gapkeys[i]:
                cls = CLS[k[0]][0]
                (g["mem"] if cls in ("lds", "dma") else g["val"]).append((k, item_insts(k, wp, e)))
            G.append(g)
        for i, g in enumerate(G):
            newmem = []
            nd = 0
            for k, ins in g["mem"]:
                if k[0] in ("dmaK", "dmaV"):
                    prev_has = i == 0 or any(kk[0] in ("dmaK", "dmaV") for kk, _ in G[i - 1]["mem"])
                    if nd == 0 and not prev_has:
                        G[i - 1]["salu"].append(m0_for(k))
                    else:
                        newmem.append((None, [m0_for(k)]))
                    nd += 1
                    newmem.append((k, ins))
                    if k[2] == 2:
                        so = sKoff if k[0] == "dmaK" else sVoff
                        upd = [salu("s_add_u32", so, so, GRP), salu("s_min_u32", so, so, 2 * HEADK - GRP)]
                        if i + 2 < len(G) and not any(kk[0] == k[0] for gg in G[i:i + 3] for kk, _ in gg["mem"] if kk and kk != k):
                            G[i + 1]["salu"].append(upd[0])
                            G[i + 2]["salu"].append(upd[1])
                        else:
                            newmem.append((None, upd))
                else:
                    newmem.append((k, ins))
            g["mem"] = newmem
        out = []
        for i, g in enumerate(G):
            if g["mf"] is not None:
                out.append(g["mf"])
            out.append(g["wait"])
            if pvs_local is not None and i == pvs_local - 1 and P["check"] and e > 0 and g["mf"] is not None:
                out += self.site(e, tagname, G[:i])
            out += g["salu"]
            for _, ins in g["mem"]:
                out += ins
            for _, ins in g["val"]:
                out += ins
            if pvs_local is not None and i == pvs_local - 1 and P["check"] and e > 0 and g["mf"] is None:
                out.append(raw("s_nop 4"))
                out += self.site(e, tagname, G[:i + 1])
            if g["mf"] is None:
                out.append(waitsite())
        if end_need is not None:
            out.append(waitsite(dict(lgkm0=True, vm=end_need)))
            out.append(barrier())
        return out

    def site(self, e, tagname, done_gaps):
        sid = len(self.sites)
        replay = [k for g in done_gaps for k in g["keys"] if k[0] in ("exp", "add", "cvt") and k[1] == e + 1]
        lab = f"L_{tagname}"
        self.sites.append((lab, e, replay))
        return [branch("s_cbranch_vccnz", f"{lab}_rare"), label(f"{lab}_back")]


def stamp(idx):
    if not P["stamp"]:
        return []
    return [raw(f"s_memtime {sStamp}"), raw("s_memrealtime s[68:69]"), raw("s_waitcnt lgkmcnt(0)"),
            valu("v_mov_b32", vT[22], S(64)), valu("v_mov_b32", vT[23], S(66)),
            bstore(vT[22], vT[23], sWs, 0, 4 * idx), raw("s_nop 1"),
            valu("v_mov_b32", vT[22], S(68)), bstore(vT[22], vT[23], sWs, 0, 4 * idx + 32), raw("s_nop 1")]


def q_scale():
    out = []
    for t in range(4):
        for s in range(6):
            out.append(waitsite())
            q = vQ[t][s]
            for r in range(4):
                lo, hi = vT[8 + 2 * r], vT[9 + 2 * r]
                out.append(valu("v_lshlrev_b32", lo, 16, q.sub(r)))
                out.append(valu("v_and_b32", hi, "0xffff0000", q.sub(r)))
            for r in range(4):
                pr = V(vT[8 + 2 * r].b, 2)
                out.append(Inst(f"v_pk_mul_f32 {pr}, {pr}, {S(42, 2)}", "valu", rd=pr.regs() + ["s42", "s43"], wr=pr.regs()))
            for r in range(4):
                out.append(valu("v_cvt_pk_bf16_f32", q.sub(r), vT[8 + 2 * r], vT[9 + 2 * r]))
    return out


def lane_reduce(x, tmp, op):
    return [valu("v_mov_b32", tmp, x), perm("v_permlane32_swap_b32", x, tmp), valu(op, x, x, tmp),
            valu("v_mov_b32", tmp, x), perm("v_permlane16_swap_b32", x, tmp), valu(op, x, x, tmp)]


def epilogue(wp):
    out = [waitsite()]
    for t in range(4):
        out += lane_reduce(vL[t], vT[8 + t], "v_add_f32")
    keep = range(6 * wp, 6 * wp + 6)
    send = range(6 * (1 - wp), 6 * (1 - wp) + 6)
    xa, xb = vT[12], vT[13]
    out.append(salu("s_mul_i32", sT[4], sW, XW))
    out.append(salu("s_xor_b32", sT[5], sW, 1))
    out.append(salu("s_mul_i32", sT[5], sT[5], XW))
    out.append(salu("s_add_u32", sT[4], sT[4], XBASE))
    out.append(salu("s_add_u32", sT[5], sT[5], XBASE))
    out.append(valu("v_lshl_add_u32", xa, vLane, 4, sT[4]))
    out.append(valu("v_lshl_add_u32", xb, vLane, 4, sT[5]))
    for j, dt in enumerate(send):
        out.append(dsw("ds_write_b128", xa, aO[3][dt], 1024 * j))
    ml = V(vT[14].b, 2)
    out.append(valu("v_mov_b32", vT[14], vCI[3].sub(0)))
    out.append(valu("v_mov_b32", vT[15], vL[3]))
    out.append(valu("v_lshl_add_u32", vT[16], vLane, 3, sT[4]))
    out.append(valu("v_lshl_add_u32", vT[17], vLane, 3, sT[5]))
    out.append(dsw("ds_write_b64", vT[16], ml, 6144))
    out.append(waitsite(dict(lgkm0=True)))
    out.append(barrier())
    X = [V(128 + 4 * j, 4) for j in range(6)]
    oml = V(vT[18].b, 2)
    out.append(dsr("ds_read_b64", oml, vT[17], 6144))
    for j in range(6):
        out.append(dsr("ds_read_b128", X[j], xb, 1024 * j))

    def store_pair(t, p, src, voff, k):
        d = V(96 + 4 * (k % 8), 4)
        o = []
        if P["fakest"]:
            o.append(salu("s_mov_b32", sT[13], 4096 * (p // 4)))
        o.append(valu("v_cvt_pk_bf16_f32", d.sub(0), src[0], src[1]))
        o.append(valu("v_cvt_pk_bf16_f32", d.sub(1), src[2], src[3]))
        o.append(valu("v_cvt_pk_bf16_f32", d.sub(2), src[4], src[5]))
        o.append(valu("v_cvt_pk_bf16_f32", d.sub(3), src[6], src[7]))
        return o, [perm("v_permlane16_swap_b32", d.sub(0), d.sub(2)), perm("v_permlane16_swap_b32", d.sub(1), d.sub(3)),
                   bstore(d, voff, sO, 0, 64 * p, mods=mods("omod")) if not P["fakest"] else
                   bstore(d, voff, sO, sT[13], 1024 * (p % 4), mods=mods("omod"))]

    k = 0
    tail = []
    for t in range(3):
        inv = V(vT[20].b, 2)
        out.append(trans("v_rcp_f32", vT[20], vL[t]))
        voff = vT[t]
        if t == 0:
            out.append(valu("v_add_u32", voff, sRowOwn, vOO))
        else:
            out.append(valu("v_add_u32", voff, 6144, vT[t - 1]))
        out.append(valu("v_mov_b32", vT[21], vT[20]))
        for p in range(6):
            base = 64 + 8 * (k % 4)
            src = [V(base + i) for i in range(8)]
            for i in range(8):
                out.append(valu("v_accvgpr_read_b32", src[i], aO[t][2 * p + i // 4].sub(i % 4)))
            out += tail
            for i in range(4):
                pr = V(base + 2 * i, 2)
                out.append(Inst(f"v_pk_mul_f32 {pr}, {pr}, {inv}", "valu", rd=pr.regs() + inv.regs(), wr=pr.regs()))
            o, tail = store_pair(t, p, src, voff, k)
            out += o
            k += 1
    out.append(waitsite())
    nm_own, nm_oth, l_oth = vCI[3].sub(0), vT[18], vT[19]
    M = vT[8]
    out.append(valu("v_min_f32", M, nm_own, nm_oth))
    fo, fx = vT[9], vT[10]
    out.append(valu("v_sub_f32", fo, M, nm_own))
    out.append(valu("v_sub_f32", fx, M, nm_oth))
    out.append(trans("v_exp_f32", fo, fo))
    out.append(trans("v_exp_f32", fx, fx))
    out.append(valu("v_mul_f32", vT[11], vL[3], fo))
    out.append(valu("v_fma_f32", vT[11], l_oth, fx, vT[11]))
    out.append(trans("v_rcp_f32", vT[11], vT[11]))
    out.append(valu("v_add_u32", vT[3], sRowSh, vOO))
    out.append(valu("v_mul_f32", fo, fo, vT[11]))
    out.append(valu("v_mul_f32", fx, fx, vT[11]))
    for p3 in range(3):
        p = 3 * wp + p3
        base = 64 + 8 * (k % 4)
        src = [V(base + i) for i in range(8)]
        for i in range(8):
            out.append(valu("v_accvgpr_read_b32", src[i], aO[3][2 * p + i // 4].sub(i % 4)))
        out += tail
        for i in range(8):
            out.append(valu("v_mul_f32", src[i], src[i], fo))
        for i in range(8):
            out.append(valu("v_fma_f32", src[i], X[2 * p3 + i // 4].sub(i % 4), fx, src[i]))
        o, tail = store_pair(3, p, src, vT[3], k)
        out += o
        k += 1
    out += tail
    return out


def phase_setup():
    o = []
    o.append(salu("s_add_u32", sT[4], sT[8], sPh))
    o.append(salu("s_mul_i32", sT[5], sT[4], HEADQ))
    o.append(salu("s_add_u32", S(24), S(10), sT[5]))
    o.append(salu("s_addc_u32", S(25), S(11), 0))
    o.append(salu("s_mov_b32", sRowOwn, sNRowOwn))
    o.append(salu("s_mov_b32", sRowSh, sNRowSh))
    o += next_q_setup(1)
    return o


def next_q_setup(d):
    o = []
    o.append(salu("s_add_u32", sT[4], sPh, d))
    o.append(salu("s_xor_b32", sT[5], sT[4], sT[9]))
    o.append(salu("s_and_b32", sT[5], sT[5], 1))
    o.append(salu("s_mul_i32", sT[5], sT[5], 224 * ROWB))
    o.append(salu("s_mul_i32", sT[6], sW, 48 * ROWB))
    o.append(salu("s_add_u32", sNRowOwn, sT[5], sT[6]))
    o.append(salu("s_lshr_b32", sT[6], sW, 1))
    o.append(salu("s_mul_i32", sT[6], sT[6], 16 * ROWB))
    o.append(salu("s_add_u32", sT[6], sT[6], 192 * ROWB))
    o.append(salu("s_add_u32", sNRowSh, sT[5], sT[6]))
    o.append(salu("s_mov_b32", sT[0], sNRowOwn))
    o.append(salu("s_add_u32", sT[1], sNRowOwn, 6144))
    o.append(salu("s_add_u32", sT[2], sNRowOwn, 12288))
    o.append(scmp("s_cmp_lt_u32", sT[4], 2))
    o.append(salu("s_cselect_b32", S(14), HEADQ, 0))
    o.append(salu("s_min_u32", sT[4], sT[4], 1))
    o.append(salu("s_add_u32", sT[4], sT[4], sT[8]))
    o.append(salu("s_mul_i32", sT[5], sT[4], HEADQ))
    o.append(salu("s_add_u32", S(12), S(4), sT[5]))
    o.append(salu("s_addc_u32", S(13), S(5), 0))
    return o


def prologue():
    o = []
    o.append(scmp("s_cmp_ge_u32", S(2), 256))
    o.append(branch("s_cbranch_scc1", "L_end"))
    o.append(raw("s_load_dwordx4 s[4:7], s[0:1], 0"))
    o.append(raw("s_load_dwordx4 s[8:11], s[0:1], 16"))
    if P["stamp"]:
        o.append(raw("s_load_dwordx2 s[60:61], s[0:1], 40"))
        o.append(raw("s_memtime s[70:71]"))
        o.append(raw("s_memrealtime s[72:73]"))
    o.append(valu("v_lshrrev_b32", vT[0], 6, V(0)))
    o.append(valu("v_and_b32", vLane, 63, V(0)))
    o.append(rfl(sW, vT[0]))
    o.append(salu("s_lshr_b32", sT[4], S(2), 4))
    o.append(salu("s_lshl_b32", sT[4], sT[4], 3))
    o.append(salu("s_and_b32", sT[5], S(2), 7))
    o.append(salu("s_add_u32", sT[4], sT[4], sT[5]))
    o.append(salu("s_lshl_b32", sT[8], sT[4], 1))
    o.append(salu("s_lshr_b32", sT[9], S(2), 3))
    o.append(salu("s_and_b32", sT[9], sT[9], 1))
    o.append(salu("s_mul_i32", sT[7], sT[4], 2 * HEADK))
    o.append(salu("s_mul_i32", sWb, sW, 3072))
    o.append(salu("s_mov_b32", sPh, 0))
    o.append(salu("s_mov_b32", sKoff, 0))
    o.append(salu("s_mov_b32", sVoff, 0))
    c = f32bits(math.log2(math.e) / math.sqrt(192.0))
    o.append(salu("s_mov_b32", S(42), hex(c)))
    o.append(salu("s_mov_b32", S(43), hex(c)))
    o.append(salu("s_mov_b32", sTh, hex(f32bits(2.0 ** P["THR"]))))
    l = vLane
    t0, t1, t2, t3 = vT[0], vT[1], vT[2], vT[3]
    o.append(valu("v_lshrrev_b32", t0, 3, l))
    o.append(salu("s_lshl_b32", sT[5], sW, 3))
    o.append(valu("v_add_u32", t0, sT[5], t0))
    o.append(valu("v_mul_u32_u24", t1, ROWB, t0))
    o.append(valu("v_and_b32", t2, 7, l))
    o.append(valu("v_bfe_u32", t3, t0, 1, 3))
    o.append(valu("v_xor_b32", t3, t3, t2))
    o.append(valu("v_lshl_add_u32", vDK, t3, 4, t1))
    o.append(valu("v_bfe_u32", t3, t0, 1, 2))
    o.append(valu("v_lshlrev_b32", t3, 1, t3))
    o.append(valu("v_xor_b32", t3, t3, t2))
    o.append(valu("v_lshl_add_u32", vDV, t3, 4, t1))
    o.append(raw("s_waitcnt lgkmcnt(0)"))
    o.append(salu("s_add_u32", S(16), S(6), sT[7]))
    o.append(salu("s_addc_u32", S(17), S(7), 0))
    o.append(salu("s_mov_b32", S(18), 2 * HEADK))
    o.append(salu("s_mov_b32", S(19), "0x20000"))
    o.append(salu("s_add_u32", S(20), S(8), sT[7]))
    o.append(salu("s_addc_u32", S(21), S(9), 0))
    o.append(salu("s_mov_b32", S(22), 2 * HEADK))
    o.append(salu("s_mov_b32", S(23), "0x20000"))
    o.append(salu("s_mov_b32", S(15), "0x20000"))
    o.append(salu("s_mov_b32", S(26), HEADQ))
    o.append(salu("s_mov_b32", S(27), "0x20000"))
    if P["stamp"]:
        o.append(salu("s_mov_b32", S(62), "0x100000"))
        o.append(salu("s_mov_b32", S(63), "0x20000"))
        o.append(salu("s_lshl_b32", S(66), S(2), 2))
        o.append(salu("s_add_u32", S(66), S(66), sW))
        o.append(salu("s_lshl_b32", S(66), S(66), 8))

    def dma_group(kind, G):
        r = []
        for cb in range(3):
            k = (kind, G, cb)
            r.append(m0_for(k))
            r += item_insts(k, 0, 0)
        so = sKoff if kind == "dmaK" else sVoff
        r.append(salu("s_add_u32", so, so, GRP))
        return r

    o += dma_group("dmaK", 0)
    o += dma_group("dmaK", 1)
    o.append(valu("v_and_b32", t0, 15, l))
    o.append(valu("v_lshrrev_b32", t1, 4, l))
    o.append(valu("v_mul_u32_u24", t2, ROWB, t0))
    o.append(valu("v_lshl_add_u32", vQO, t1, 4, t2))
    o += next_q_setup(0)
    for t in range(4):
        o += item_insts(("qadd", t), 0, 0)
    for t in range(4):
        for s in range(6):
            o += item_insts(("qld", t, s), 0, 0)
    for kind, G in (("dmaV", 0), ("dmaK", 2), ("dmaV", 1), ("dmaK", 3), ("dmaV", 2)):
        o += dma_group(kind, G)
    t0, t1, t2, t3 = vT[4], vT[5], vT[6], vT[7]
    o.append(valu("v_and_b32", t0, 15, l))
    o.append(valu("v_lshrrev_b32", t1, 4, l))
    o.append(valu("v_mul_u32_u24", t2, ROWB, t0))
    o.append(valu("v_and_b32", t3, 1, t1))
    o.append(valu("v_lshl_add_u32", t2, t3, 5, t2))
    o.append(valu("v_lshrrev_b32", t3, 1, t1))
    o.append(valu("v_lshl_add_u32", vOO, t3, 4, t2))
    if P["fakest"]:
        o.append(valu("v_lshlrev_b32", vOO, 4, l))
    o.append(valu("v_lshrrev_b32", t2, 3, t0))
    o.append(valu("v_mul_u32_u24", t2, 3072, t2))
    o.append(valu("v_and_b32", t3, 7, t0))
    o.append(valu("v_lshl_add_u32", t2, t3, 7, t2))
    o.append(valu("v_lshrrev_b32", t3, 1, t0))
    o.append(valu("v_xor_b32", t3, t3, t1))
    o.append(valu("v_lshl_add_u32", vKA[0], t3, 4, t2))
    if KBASE:
        o.append(valu("v_add_u32", vKA[0], KBASE, vKA[0]))
    o.append(valu("v_xor_b32", vKA[1], 64, vKA[0]))
    o.append(valu("v_lshrrev_b32", t2, 2, t0))
    o.append(valu("v_and_b32", t3, 1, t1))
    o.append(valu("v_lshl_add_u32", t2, t3, 2, t2))
    o.append(valu("v_lshrrev_b32", t3, 1, t1))
    o.append(valu("v_mul_u32_u24", t3, 3072, t3))
    o.append(valu("v_lshl_add_u32", t3, t2, 7, t3))
    o.append(valu("v_and_b32", t0, 3, l))
    o.append(valu("v_lshl_add_u32", t3, t0, 3, t3))
    o.append(valu("v_add_u32", t3, VBASE, t3))
    o.append(valu("v_lshrrev_b32", t2, 1, t2))
    o.append(valu("v_lshl_add_u32", vVA[0], t2, 5, t3))
    for j in range(1, 4):
        o.append(valu("v_xor_b32", vVA[j], 32 * j, vVA[0]))
    if P["stamp"]:
        o += [valu("v_mov_b32", vT[22], S(70)), valu("v_mov_b32", vT[23], S(66)), bstore(vT[22], vT[23], sWs, 0, 4 * 6), raw("s_nop 1"),
              valu("v_mov_b32", vT[22], S(72)), bstore(vT[22], vT[23], sWs, 0, 4 * 6 + 32), raw("s_nop 1")]
    o.append(salu("s_and_b32", sT[4], sW, 1))
    o.append(scmp("s_cmp_eq_u32", sT[4], 1))
    o.append(branch("s_cbranch_scc1", "L_phase_1"))
    return o


def rare_common(wp, typ):
    Gp = wp if typ == 0 else 1 - wp
    o = [label(f"L_rare_{wp}_{typ}"), raw("s_nop 15"), raw("s_nop 15")]
    kt_ = [V(vT[0].b + 4 * s, 4) for s in range(6)]
    ka = V(0)

    def recompute(G, soff, cfun):
        r = []
        for kt in range(2):
            r.append(valu("v_add_u32", ka, 6144 * kt, vQO))
            for s in range(6):
                r.append(bload(kt_[s], ka, sK, soff, 64 * s))
            r.append(raw("s_waitcnt vmcnt(0)"))
            r.append(waitsite(dict(vm0=True)))
            for t in tiles(G, wp):
                for s in range(6):
                    r.append(mfma(vS[t][kt], kt_[s], vQ[t][s], vS[t][kt] if s else cfun(t)))
            r.append(raw("s_nop 15"))
        return r

    o += recompute(Gp, sT[11], lambda t: 0)
    m, m2, f = vT[0], vT[1], vT[2]
    for t in tiles(Gp, wp):
        s0, s1 = vS[t]
        o.append(valu("v_max3_f32", m, s0.sub(0), s0.sub(1), s0.sub(2)))
        o.append(valu("v_max3_f32", m, m, s0.sub(3), s1.sub(0)))
        o.append(valu("v_max3_f32", m, m, s1.sub(1), s1.sub(2)))
        o.append(valu("v_max_f32", m, m, s1.sub(3)))
        o += lane_reduce(m, m2, "v_max_f32")
        o.append(valu("v_sub_f32", m2, 0, vCI[t].sub(0)))
        o.append(valu("v_max_f32", m, m, m2))
        o.append(valu("v_sub_f32", f, m2, m))
        o.append(trans("v_exp_f32", f, f))
        for r in range(4):
            o.append(valu("v_sub_f32", vCI[t].sub(r), 0, m))
        o.append(valu("v_mul_f32", vL[t], vL[t], f))
        for dt in range(12):
            for r in range(4):
                o.append(valu("v_accvgpr_read_b32", vT[4 + r], aO[t][dt].sub(r)))
            for r in range(4):
                o.append(valu("v_mul_f32", vT[4 + r], vT[4 + r], f))
            for r in range(4):
                o.append(valu("v_accvgpr_write_b32", aO[t][dt].sub(r), vT[4 + r]))
        for kt in range(2):
            for r in range(4):
                x = vS[t][kt].sub(r)
                o.append(valu("v_sub_f32", x, x, m))
                o += item_insts(("exp", Gp, t, kt, r), wp, 0)
        for i in range(7):
            o += item_insts(("add", Gp, t, i), wp, 0)
        for kt in range(2):
            for h in range(2):
                o += item_insts(("cvt", Gp, t, kt, h), wp, 0)
    o.append(scmp("s_cmp_eq_u32", sT[10], 0))
    o.append(branch("s_cbranch_scc1", f"L_rare_{wp}_{typ}_ret"))
    o.append(salu("s_add_u32", sT[11], sT[11], GRP))
    o += recompute(Gp + 1, sT[11], lambda t: vCI[t])
    o.append(label(f"L_rare_{wp}_{typ}_ret"))
    return o


def build_phase(wp):
    tm = steady_template(wp)
    sc = StepCode(wp)
    segs = {}
    H = Region(wp, -1, 1)
    done2 = {abskey(k, 1) for g in tm[1 % 2] for k in g if k[0] in ("exp", "add", "cvt", "chkA", "chkB", "chkC") and k[1] == 1}
    items = H.sm_items(0) + H.sm_items(1)
    g2 = H.sm_items(2, only=done2)
    for it in g2:
        it.dead = min(it.dead, H.n - 1)
    items += g2
    for e in (-1, 0, 1):
        items += H.mem_items(e)
    gaps = H.schedule(items)
    assert not H.left, [x.key for x in H.left]
    if P["verbose"]:
        print(f"wp{wp} head overflow {H.over}", file=sys.stderr)

    def cut(R, gaps, e):
        mf = [R.mf[i][1] for i in range(R.st[e], R.en[e] + 1)]
        gk = [[it.key for it in gaps[i]] for i in range(R.st[e], R.en[e] + 1)]
        pv = R.pvs[e] - R.st[e] if e in R.pvs else None
        return mf, gk, pv

    for e in (-1, 0, 1):
        mf, gk, pv = cut(H, gaps, e)
        segs[e] = sc.emit(mf, gk, e, f"h{wp}_{e + 1}", pv, [("V", 1), ("K", 3)])
    R = Region(wp, 2, 5, regular=True)
    for e in range(2, 6):
        mf = [R.mf[i][1] for i in range(R.st[e], R.en[e] + 1)]
        gk = [[abskey(k, e) for k in g] for g in tm[e % 2]]
        segs[e] = sc.emit(mf, gk, e, f"b{wp}_{e}", R.pvs[e] - R.st[e], [("V", 1), ("K", 3)])
    T = Region(wp, 30, 31)
    done30 = {abskey(k, 29) for g in tm[29 % 2] for k in g if k[1] == 1}
    items = T.sm_items(30, skip=done30) + T.sm_items(31)
    for e in (30, 31):
        items += T.mem_items(e)
    gaps = T.schedule(items)
    assert not T.left, [x.key for x in T.left]
    if P["verbose"]:
        print(f"wp{wp} tail overflow {T.over}", file=sys.stderr)
    for e in (30, 31):
        mf, gk, pv = cut(T, gaps, e)
        segs[e] = sc.emit(mf, gk, e, f"t{wp}_{e}", pv, [("V", 1)] if e == 30 else None)

    start = [label(f"L_phase_{wp}")] + phase_setup() + stamp(0)
    start += [waitsite(dict(vm=[("K", 0), ("K", 1)])), barrier()]
    for kt in range(2):
        for s in range(6):
            start += item_insts(("krd", 0, kt, s), wp, 0)
    start += q_scale() + stamp(1) + [waitsite()]
    loop_in = [salu("s_mov_b32", sCnt, 7)] + stamp(2)
    loop_lab = [raw(".p2align 6", kind="label"), label(f"L_loop_{wp}")]
    loop_end = [salu("s_sub_u32", sCnt, sCnt, 1), scmp("s_cmp_lg_u32", sCnt, 0), branch("s_cbranch_scc1", f"L_loop_{wp}")]
    body5 = segs[5]
    segs[5] = body5[:-2] + loop_end[:2] + body5[-2:] + loop_end[2:]
    epi = stamp(4) + epilogue(wp) + stamp(5)
    fin = [salu("s_add_u32", sPh, sPh, 1)]
    if P["stamp"]:
        fin.append(salu("s_add_u32", S(66), S(66), 64))
    fin += [scmp("s_cmp_lt_u32", sPh, 2), branch("s_cbranch_scc1", f"L_phase_{wp}"), raw("s_endpgm")]
    after_loop = stamp(3)

    static = start + segs[-1] + segs[0] + segs[1] + loop_in + loop_lab + segs[2] + segs[3] + segs[4] + segs[5] + after_loop + segs[30] + segs[31] + epi + fin

    def dyn(ph):
        b = 32 * ph
        d = [(i, b) for i in start]
        for e in (-1, 0, 1):
            d += [(i, b + e) for i in segs[e]]
        d += [(i, b) for i in loop_in]
        for it in range(7):
            for e in range(2, 6):
                d += [(i, b + e + 4 * it) for i in segs[e]]
        d += [(i, b) for i in after_loop]
        for e in (30, 31):
            d += [(i, b + e) for i in segs[e]]
        d += [(i, b) for i in epi + fin]
        return d

    rare = []
    if P["check"]:
        for typ in (0, 1):
            mine = [(n, s) for n, s in enumerate(sc.sites) if buf(s[1], wp) == typ]
            for n, (lab, e, replay) in mine:
                rare.append(label(f"{lab}_rare"))
                rare.append(salu("s_mov_b32", sRet, n))
                rare.append(salu("s_mov_b32", sT[10], 0 if e == NG - 1 else 1))
                rare.append(salu("s_mul_i32", sT[11], sPh, HEADK))
                if 2 <= e <= 5:
                    rare.append(salu("s_sub_u32", sT[12], 7, sCnt))
                    rare.append(salu("s_mul_i32", sT[12], sT[12], 4 * GRP))
                    rare.append(salu("s_add_u32", sT[11], sT[11], sT[12]))
                rare.append(salu("s_add_u32", sT[11], sT[11], e * GRP))
                rare.append(branch("s_branch", f"L_rare_{wp}_{typ}"))
            com = rare_common(wp, typ)
            Sim().run([(i, 0) for i in com])
            rare += com
            for n, (lab, e, replay) in mine:
                rare.append(scmp("s_cmp_eq_u32", sRet, n))
                rare.append(branch("s_cbranch_scc1", f"{lab}_replay"))
            rare.append(raw("s_endpgm"))
            for n, (lab, e, replay) in mine:
                rp = [label(f"{lab}_replay")]
                for k in replay:
                    rp += item_insts(k, wp, e)
                rp.append(raw("s_nop 4"))
                Sim().run([(i, 0) for i in rp])
                rare += rp
                rare.append(branch("s_branch", f"{lab}_back"))
    return static, dyn, rare


def main():
    pro = prologue()
    text = []
    body = []
    for wp in (0, 1):
        static, dyn, rare = build_phase(wp)
        for _ in range(2):
            sim = Sim()
            sim.run([(i, 0) for i in pro] + dyn(0) + dyn(1))
        if P["verbose"]:
            nn = sum(i.nop for i in static)
            print(f"wp{wp}: static insts {len(static)} nops {nn} max vq {sim.maxvq}", file=sys.stderr)
        body.append((static, rare))
    hdr = open("standalone__gqa_softmax__near_ridge.s.ref").read().splitlines()
    for ln in hdr:
        if ln.startswith("; @launch"):
            text.append(f"; @launch grid=(256,1,1) block=(256,1,1) lds={LDS_BYTES}")
        elif ln.startswith(";"):
            text.append(ln)
        else:
            break
    text += ["; Generated by gen/genk.py " + " ".join(sys.argv[2:]),
             '.amdgcn_target "amdgcn-amd-amdhsa--gfx950"', ".text", f".globl {NAME}", ".p2align 8",
             f".type {NAME},@function", f"{NAME}:"]
    text += render(pro)
    for static, rare in body:
        text += render(static)
    for static, rare in body:
        text += render(rare)
    text += ["L_end:", "    s_endpgm", '.section .rodata,"a"', ".p2align 6", f".amdhsa_kernel {NAME}",
             "  .amdhsa_next_free_vgpr 512", "  .amdhsa_next_free_sgpr 102", "  .amdhsa_accum_offset 256",
             "  .amdhsa_group_segment_fixed_size 0", "  .amdhsa_kernarg_size 48", "  .amdhsa_user_sgpr_count 2",
             "  .amdhsa_user_sgpr_kernarg_segment_ptr 1", "  .amdhsa_system_sgpr_workgroup_id_x 1", ".end_amdhsa_kernel", ""]
    open(sys.argv[1], "w").write("\n".join(text))


main()
```

```python
import sys, struct, math
sys.path.insert(0, "gen")
from asmlib import *

P = dict(
    LAT=4,
    LDSLAT=8,
    THR=20,
    check=1,
    stamp=0,
    verbose=0,
    nobar=0,
    qst=1,
    dsp=12,
    qlsp=8,
    qpre=10,
    ilv=1,
    kvmod="",
    qmod="",
    omod="",
)
for a in sys.argv[2:]:
    k, v = a.split("=")
    P[k] = type(P[k])(v) if k in P else v

NAME = "standalone__gqa_softmax__near_ridge_kernel"
ROWB = 384
GRP = 12288
HEADQ = 432 * ROWB
HEADK = 1024 * ROWB
KBASE, VBASE, RBASE = 0, 49152, 98304
RW = 16384
STGO = 6656
LDS_BYTES = RBASE + 4 * RW
NG = 32
MIDBAR = 40

sQ, sK, sV, sO = S(12, 4), S(16, 4), S(20, 4), S(24, 4)
sW, sKoff, sVoff, sCnt, sPh, sWb, sC, sTh, sRet = (S(i) for i in range(28, 37))
sRowOwn, sRowSh, sNRowOwn, sNRowSh = S(37), S(38), S(39), S(40)
sT = [S(i) for i in range(44, 60)]
sQp, sOp = S(4, 2), S(10, 2)
sWs = S(60, 4)
sStamp = S(64, 2)
sKR = S(76, 4)
sPF = S(80, 4)

vLane = V(1)
vKA = [V(2), V(3)]
vVA = [V(4 + i) for i in range(4)]
vDK, vDV = V(8), V(9)
vQO, vOO = V(10), V(11)
vL = [V(12 + t) for t in range(4)]
vLG = [[V(16 + 4 * b + t) for t in range(4)] for b in range(2)]
vT = [V(24 + i) for i in range(24)]
vCI = [V(48 + 4 * t, 4) for t in range(4)]
vS = [[V(64 + 8 * t + 4 * kt, 4) for kt in range(2)] for t in range(4)]
vP = [[V(96 + 16 * b + 4 * t, 4) for t in range(4)] for b in range(2)]
vVF = [V(128 + 4 * i, 4) for i in range(8)]
vQ = [[V(160 + 24 * t + 4 * s, 4) for s in range(6)] for t in range(4)]
aO = [[A(48 * t + 4 * dt, 4) for dt in range(12)] for t in range(4)]
aKF = [[A(192 + 24 * kt + 4 * s, 4) for s in range(6)] for kt in range(2)]
vChk = V(28)
vQoff = [V(24 + t) for t in range(4)]
vPFo = V(23)
sQSo, sQSm, sRg = S(84), S(89), S(90)


def vf(G, dt):
    return vVF[(dt + (4 if G == NG - 1 else 0)) % 8]


def f32bits(x):
    return struct.unpack("<I", struct.pack("<f", x))[0]


def mods(k):
    return "".join(" " + x for x in P[k].split("+") if x)


def tiles(G, wp):
    return [0, 1, 2, 3] if (G % 2) == wp else [0, 1, 2]


def buf(G, wp):
    return 0 if (G % 2) == wp else 1


def item_insts(key, wp, e):
    k = key[0]
    if k == "exp":
        _, G, t, kt, r = key
        x = vS[t][kt].sub(r)
        return [trans("v_exp_f32", x, x)]
    if k == "add":
        _, G, t, i = key
        lg = vLG[buf(G, wp)][t]
        if i == 0:
            return [valu("v_add_f32", lg, vS[t][0].sub(0), vS[t][0].sub(1))]
        j = i + 1
        return [valu("v_add_f32", lg, lg, vS[t][j // 4].sub(j % 4))]
    if k == "cvt":
        _, G, t, kt, h = key
        return [valu("v_cvt_pk_bf16_f32", vP[buf(G, wp)][t].sub(2 * kt + h), vS[t][kt].sub(2 * h), vS[t][kt].sub(2 * h + 1))]
    if k == "chkA":
        lg = vLG[buf(key[1], wp)]
        return [valu("v_max3_f32", vChk, lg[0], lg[1], lg[2])]
    if k == "chkB":
        lg = vLG[buf(key[1], wp)]
        return [valu("v_max_f32", vChk, vChk, lg[3])]
    if k == "chkC":
        return [Inst(f"v_cmp_lt_f32 vcc, {sTh}, {vChk}", "valu", rd=vChk.regs() + sTh.regs(), wr=["vcc"])]
    if k == "ladd":
        _, G, t = key
        lg = vLG[buf(G, wp)][t]
        first = (G == 0) if t < 3 else (G == wp)
        if first:
            return [valu("v_mov_b32", vL[t], lg)]
        return [valu("v_add_f32", vL[t], vL[t], lg)]
    if k == "vrd":
        _, G, dt, hf = key
        return [dsr("ds_read_b64_tr_b16", vf(G, dt).sub(2 * hf, 2), vVA[dt % 4], (G % 4) * GRP + hf * 6144 + (dt // 4) * 1024)]
    if k == "krd":
        _, G, kt, s = key
        return [dsr("ds_read_b128", aKF[kt][s], vKA[s % 2], (G % 4) * GRP + kt * 6144 + (s // 2) * 1024)]
    if k == "dmaV":
        _, G, cb = key
        return [bdma(vDV, sV, sVoff, cb * 128, tag=("V", G - e), mods=mods("kvmod"))]
    if k == "dmaK":
        _, G, cb = key
        return [bdma(vDK, sK, sKoff, cb * 128, tag=("K", G - e), mods=mods("kvmod"))]
    if k == "qadd":
        _, t = key
        if t < 3:
            return [valu("v_add_u32", vQoff[t], sT[t], vQO)]
        return [valu("v_add_u32", vQoff[t], sNRowSh, vQO)]
    if k == "qld":
        _, t, s = key
        return [bload(vQ[t][s], vQoff[t], sQ, 0, 64 * s, mods=mods("qmod"))]
    if k == "dmaQ":
        return [bdma(vPFo, sPF, sQSo, key[2] * 128, tag=("Q", -e), mods=mods("kvmod"))]
    if k == "pfa":
        return [valu("v_xor_b32", vPFo, S(87), vPFo)]
    if k == "qra":
        return [valu("v_add_u32", vQoff[key[1]], sRg, vKA[key[1]])]
    if k == "qrd":
        _, t, s = key
        return [dsr("ds_read_b128", vQ[t][s], vQoff[s % 2], t * 6144 + (s // 2) * 1024)]
    if k == "mx":
        _, t, i = key
        m, s0, s1 = vT[8 + 2 * t], vS[t][0], vS[t][1]
        m2 = vT[9 + 2 * t]
        if i == 0:
            return [valu("v_max3_f32", m, s0.sub(0), s0.sub(1), s0.sub(2))]
        if i == 1:
            return [valu("v_max3_f32", m, m, s0.sub(3), s1.sub(0))]
        if i == 2:
            return [valu("v_max3_f32", m, m, s1.sub(1), s1.sub(2))]
        if i == 3:
            return [valu("v_max_f32", m, m, s1.sub(3))]
        if i in (4, 7):
            return [valu("v_mov_b32", m2, m)]
        if i == 5:
            return [perm("v_permlane32_swap_b32", m, m2)]
        if i == 8:
            return [perm("v_permlane16_swap_b32", m, m2)]
        if i in (6, 9):
            return [valu("v_max_f32", m, m, m2)]
    if k == "ci":
        _, t, r = key
        return [valu("v_sub_f32", vCI[t].sub(r), 0, vT[8 + 2 * t])]
    if k == "sub":
        _, t, kt, r = key
        x = vS[t][kt].sub(r)
        return [valu("v_sub_f32", x, x, vT[8 + 2 * t])]
    raise KeyError(key)


def m0_for(key):
    k, G, cb = key
    if k == "dmaQ":
        return salu("s_add_u32", "m0", sQSm, cb * (1024 - 128))
    base = (KBASE if k == "dmaK" else VBASE) + (G % 4) * GRP + cb * (1024 - 128)
    return salu("s_add_u32", "m0", sWb, base)


CLS = dict(exp=("exp", 8), add=("valu", 4), cvt=("valu", 4), chkA=("valu", 4), chkB=("valu", 4), chkC=("valu", 4),
           ladd=("valu", 4), vrd=("lds", 4), krd=("lds", 4), dmaV=("dma", 8), dmaK=("dma", 8), qadd=("valu", 4),
           qld=("dma", 8), dmaQ=("dma", 8), pfa=("valu", 4), qra=("valu", 4), qrd=("lds", 4), mx=("valu", 4), ci=("valu", 4), sub=("valu", 4))


class Item:
    def __init__(self, key, hard, soft, dead, deps=()):
        self.key, self.hard, self.soft, self.dead = key, hard, max(hard, soft), dead
        self.deps = list(deps)
        self.cls, self.cost = CLS[key[0]]
        self.placed = None


class Region:
    def __init__(self, wp, e0, e1, regular=False, final=False):
        self.wp, self.e0, self.e1, self.regular, self.final = wp, e0, e1, regular, final
        self.mf = []
        self.qs, self.qe, self.pvs, self.pvu, self.pvd = {}, {}, {}, {}, {}
        self.kfl = {}
        self.ql = {}
        self.st, self.en = {}, {}
        last = NG - 1
        for e in range(e0, e1 + 1):
            self.st[e] = len(self.mf)
            G = e + 1
            if regular or G <= last:
                if e == -1:
                    order = [(t, kt) for t in range(4) for kt in range(2)]
                else:
                    order = [(t, kt) for kt in range(2) for t in tiles(G, wp)]
                for t, kt in order:
                    self.qs[(G, t, kt)] = len(self.mf)
                    for s in range(6):
                        self.kfl[(G, kt, s)] = len(self.mf)
                        self.ql[(t, s)] = len(self.mf)
                        self.mf.append((e, ("qk", G, t, kt, s)))
                    self.qe[(G, t, kt)] = len(self.mf) - 1
            else:
                self.mf.append((e, None))
            if e >= 0:
                self.pvs[e] = len(self.mf)
                for dt in range(12):
                    self.pvu[(e, dt)] = len(self.mf)
                    for t in tiles(e, wp):
                        self.mf.append((e, ("pv", e, t, dt)))
                    self.pvd[(e, dt)] = len(self.mf) - 1
            self.en[e] = len(self.mf) - 1
        self.n = len(self.mf)

    def sm_items(self, G, only=None, skip=None):
        wp = self.wp
        BIG = 10 ** 6
        items = {}
        pvs = self.pvs.get(G, BIG)

        def add(it):
            items[it.key] = it

        for t in tiles(G, wp):
            G2 = G + 1 if t < 3 else G + 2
            qd = {}
            for kt in range(2):
                ov = self.qs.get((G2, t, kt), BIG)
                qd[kt] = min(ov - 1, pvs - 6)
                qe = self.qe.get((G, t, kt), -1)
                for r in range(4):
                    deps = [("sub", t, kt, r)] if G == 0 and not self.regular else []
                    add(Item(("exp", G, t, kt, r), qe, qe + P["LAT"], qd[kt] - 3, deps))
                for h in range(2):
                    add(Item(("cvt", G, t, kt, h), qe, 0, qd[kt], [("exp", G, t, kt, 2 * h), ("exp", G, t, kt, 2 * h + 1)]))
            for i in range(7):
                j = i + 1
                deps = [("exp", G, t, j // 4, j % 4)]
                deps.append(("exp", G, t, 0, 0) if i == 0 else ("add", G, t, i - 1))
                add(Item(("add", G, t, i), -1, 0, qd[j // 4], deps))
            add(Item(("ladd", G, t), pvs, 0, self.en.get(G, BIG), [("add", G, t, 6)]))
        if P["check"] and (G > 0 or self.regular):
            add(Item(("chkA", G), -1, 0, pvs - 5, [("add", G, t, 6) for t in range(3)]))
            lastk = ("chkA", G)
            if len(tiles(G, wp)) == 4:
                add(Item(("chkB", G), -1, 0, pvs - 4, [lastk, ("add", G, 3, 6)]))
                lastk = ("chkB", G)
            add(Item(("chkC", G), -1, 0, pvs - 3, [lastk]))
        out = []
        for k, it in items.items():
            if only is not None and k not in only:
                continue
            if skip is not None and k in skip:
                continue
            out.append(it)
        return out

    def mem_items(self, e):
        items = []
        st, en = self.st[e], self.en[e]
        L = P["LDSLAT"]
        last = NG - 1
        if e >= 0:
            for dt in range(12):
                if e == last and not self.regular:
                    early = max(self.st[e - 1] + MIDBAR + 1, self.pvd[(e - 1, dt + 4)]) if dt < 8 else self.pvd[(e, dt - 8)]
                else:
                    early = st if dt < 8 else self.pvd[(e, dt - 8)]
                for hf in range(2):
                    items.append(Item(("vrd", e, dt, hf), early, 0, max(early, min(self.pvu[(e, dt)] - 1 - L, en - L))))
        G = e + 2
        if self.regular or G <= last:
            for kt in range(2):
                for s in range(6):
                    early = self.kfl[(G - 1, kt, s)]
                    items.append(Item(("krd", G, kt, s), early, 0, max(early, en - L)))
        dm = []
        if e >= 0 and not self.final and (self.regular or e < last):
            dm += [("dmaV", e + 3, cb) for cb in range(3)]
            if e == 0 and not self.regular:
                dm += [("dmaK", 4, cb) for cb in range(3)]
            dm += [("dmaK", e + 5, cb) for cb in range(3)]
        prev = None
        for j, k in enumerate(dm):
            sp = P["dsp"] * 6 // len(dm)
            it = Item(k, st + 1, st + 1 + sp * j, min(st + 4 + sp * j, en), [prev] if prev else [])
            items.append(it)
            prev = k
        if e == last and not self.regular and not self.final:
            pv = self.pvs[e]
            direct = [2, 3] if P["qst"] else [0, 1, 2, 3]
            if P["qst"]:
                for j in range(2):
                    items.append(Item(("qra", j), pv, 0, pv))
                for t in range(2):
                    for s in range(6):
                        items.append(Item(("qrd", t, s), pv, 0, en - 4, [("qra", s % 2)]))
            self.qleft = []
            n = 0
            for t in direct:
                items.append(Item(("qadd", t), pv, 0, pv + 1))
                for s in range(6):
                    at = pv + 2 + n * P["qlsp"]
                    if at <= en:
                        items.append(Item(("qld", t, s), pv, at, min(at + 2, en), [("qadd", t)]))
                    else:
                        self.qleft.append(("qld", t, s))
                    n += 1
        if e == -1:
            for t in range(4):
                qe = self.qe[(0, t, 1)]
                dead = self.qs.get((1, t, 0), self.qs.get((2, t, 0), en + 1)) - 1
                dead = min(dead, self.en[0])
                for i in range(10):
                    items.append(Item(("mx", t, i), qe, qe + P["LAT"], dead - 8, [("mx", t, i - 1)] if i else []))
                for r in range(4):
                    items.append(Item(("ci", t, r), qe, 0, dead - 1, [("mx", t, 9)]))
                if t in tiles(0, self.wp):
                    for kt in range(2):
                        for r in range(4):
                            items.append(Item(("sub", t, kt, r), qe, 0, dead - 6, [("mx", t, 9)]))
        return items

    def schedule(self, items):
        byk = {it.key: it for it in items}
        for i, it in enumerate(items):
            it.seq = i
            it.deps = [byk[d] for d in it.deps if d in byk]
        gaps = [[] for _ in range(self.n)]
        pending = list(items)
        self.over = 0
        lastdma = -10
        lastb128 = -10

        def ready(it, g, soft=True):
            if (it.soft if soft else it.hard) > g:
                return False
            for d in it.deps:
                if d.placed is None:
                    return False
                if d.placed == g and not (d.cls == "valu" and it.cls in ("valu", "exp")) and soft:
                    return False
            return True

        for g in range(self.n):
            cap = 8
            nl = 0

            def put(it):
                nonlocal cap, nl, lastdma, lastb128
                it.placed = g
                gaps[g].append(it)
                pending.remove(it)
                cap -= it.cost
                if it.cls == "lds":
                    nl += 1
                    if it.key[0] in ("krd", "qrd"):
                        lastb128 = g
                if it.key[0] in ("dmaK", "dmaV"):
                    lastdma = g

            def force(it):
                for d in it.deps:
                    if d.placed is None:
                        force(d)
                assert it.hard <= g, (it.key, it.hard, g)
                put(it)

            def fits(it):
                if it.cost > cap:
                    return False
                if it.cls == "lds" and (nl >= 1 or (it.key[0] in ("krd", "qrd") and lastb128 == g - 1)):
                    return False
                if it.key[0] in ("dmaK", "dmaV") and lastdma >= g - 1:
                    return False
                return True

            for it in sorted([x for x in pending if x.dead <= g], key=lambda x: (x.dead, x.seq)):
                if it.placed is None:
                    force(it)
            while cap > 0:
                c = sorted([x for x in pending if ready(x, g) and fits(x)], key=lambda x: (x.dead, x.seq))
                if not c:
                    break
                top = c[0]
                if cap == 8 and top.cost == 4:
                    lds = [x for x in c if x.cls == "lds"]
                    val = [x for x in c if x.cls == "valu"]
                    big = [x for x in c if x.cost == 8]
                    if top.cls == "lds":
                        haspartner = bool(val)
                    else:
                        haspartner = bool(lds) or len(val) > 1 or any(top in x.deps and x.cls == "valu" and all(d is top or d.placed is not None for d in x.deps) for x in pending)
                    if not haspartner and big and top.dead > g + 3:
                        put(big[0])
                        continue
                    put(top)
                    if top.cls == "valu" and lds and fits(lds[0]):
                        put(lds[0])
                    continue
                put(top)
            if cap < 0 and self.mf[g][1] is not None:
                self.over += -cap
        self.left = pending
        self.gaps = gaps
        return gaps


def mf_inst(key, wp, regular=False):
    if key[0] == "qk":
        _, G, t, kt, s = key
        d = vS[t][kt]
        c = d if s else (0 if (G == 0 and not regular) else vCI[t])
        return mfma(d, aKF[kt][s], vQ[t][s], c)
    _, G, t, dt = key
    first = (G == 0) if t < 3 else (G == wp)
    d = aO[t][dt]
    return mfma(d, vf(G, dt), vP[buf(G, wp)][t], 0 if first else d)


def relkey(key, e):
    if key[0] in ("qadd", "qld", "mx", "ci", "sub", "qra", "qrd"):
        return key
    return (key[0], key[1] - e) + key[2:]


def abskey(key, e):
    return (key[0], key[1] + e) + key[2:]


def steady_template(wp):
    R = Region(wp, 2, 21, regular=True)
    items = []
    for G in range(3, 23):
        items += R.sm_items(G)
    for e in range(2, 22):
        items += R.mem_items(e)
    gaps = R.schedule(items)
    tm = {}
    for e in range(8, 18):
        cur = [[relkey(it.key, e) for it in gaps[g]] for g in range(R.st[e], R.en[e] + 1)]
        if e % 2 in tm:
            assert tm[e % 2] == cur, f"template not periodic at step {e}"
        tm[e % 2] = cur
    if P["verbose"]:
        for par in (0, 1):
            use = sum(CLS[k[0]][1] for g in tm[par] for k in g)
            ov = sum(max(0, sum(CLS[k[0]][1] for k in g) - 8) for g in tm[par])
            print(f"wp{wp} step parity {par}: fill {use}/{8 * len(tm[par])} overflow {ov}", file=sys.stderr)
            if P["verbose"] > 1:
                for i, g in enumerate(tm[par]):
                    print(i, g, file=sys.stderr)
    return tm


class StepCode:
    def __init__(self, wp):
        self.wp = wp
        self.sites = []

    def emit(self, mf, gapkeys, e, tagname, pvs_local, end_need, extra=(), midbar=None):
        wp = self.wp
        G = []
        for i, mk in enumerate(mf):
            g = dict(mf=mf_inst(mk, wp) if mk else None, wait=waitsite(), salu=[], mem=[], val=[], keys=gapkeys[i], post=[])
            for k in gapkeys[i]:
                cls = CLS[k[0]][0]
                (g["mem"] if cls in ("lds", "dma") else g["val"]).append((k, item_insts(k, wp, e)))
            G.append(g)
        late = []
        for i, g in enumerate(G):
            newmem = []
            nd = 0
            for k, ins in g["mem"]:
                if k[0] in ("dmaK", "dmaV", "dmaQ"):
                    prev_has = i == 0 or any(kk and kk[0] in ("dmaK", "dmaV", "dmaQ") for kk, _ in G[i - 1]["mem"])
                    if nd == 0 and not prev_has:
                        G[i - 1]["salu"].append(m0_for(k))
                    else:
                        newmem.append((None, [m0_for(k)]))
                    nd += 1
                    newmem.append((k, ins))
                    if k[2] == 2 and k[0] != "dmaQ":
                        so = sKoff if k[0] == "dmaK" else sVoff
                        upd = salu("s_add_u32", so, so, GRP)
                        nxt = [j for j in range(i + 1, len(G)) if any(kk and kk[0] == k[0] for kk, _ in G[j]["mem"])]
                        lim = nxt[0] if nxt else len(G) - 1
                        late.append((i + 1, lim, [upd]))
                else:
                    newmem.append((k, ins))
            g["mem"] = newmem

        def room(g):
            used = sum(CLS[k[0]][1] for k in g["keys"])
            return (1 if not g["salu"] else 0) + max(0, 8 - used - 4 * max(0, len(g["salu"]) - 1)) // 4

        for lo, hi, ins in late + [(lo, len(G) - 1, ins) for lo, ins in extra]:
            hi = min(hi, len(G) - 1)
            c = [j for j in range(lo, hi + 1) if room(G[j]) >= len(ins) + 1] or [j for j in range(lo, hi + 1) if room(G[j]) >= len(ins)] or [min(lo, hi)]
            G[c[0]]["salu"] += ins
        out = []
        for i, g in enumerate(G):
            if g["mf"] is not None:
                out.append(g["mf"])
            out.append(g["wait"])
            if pvs_local is not None and i == pvs_local - 1 and P["check"] and e > 0 and g["mf"] is not None:
                out += self.site(e, tagname, G[:i])
            out += g["salu"]
            for _, ins in g["mem"]:
                out += ins
            for _, ins in g["val"]:
                out += ins
            if pvs_local is not None and i == pvs_local - 1 and P["check"] and e > 0 and g["mf"] is None:
                out.append(raw("s_nop 4"))
                out += self.site(e, tagname, G[:i + 1])
            if g["mf"] is None:
                out.append(waitsite(dict(vm=[("Q", -e + 4 * i) for i in range(7)])))
            if midbar is not None and i == MIDBAR:
                out.append(waitsite(dict(vm=midbar)))
                out.append(barrier())
        if end_need is not None:
            out.append(waitsite(dict(lgkm0=True, vm=end_need)))
            out.append(barrier() if not (P["nobar"] and 2 <= e <= 5) else raw("s_nop 0"))
        return out

    def site(self, e, tagname, done_gaps):
        sid = len(self.sites)
        replay = [k for g in done_gaps for k in g["keys"] if k[0] in ("exp", "add", "cvt") and k[1] == e + 1]
        lab = f"L_{tagname}"
        self.sites.append((lab, e, replay))
        return [branch("s_cbranch_vccnz", f"{lab}_rare"), label(f"{lab}_back")]


def stamp(idx):
    if not P["stamp"]:
        return []
    return [raw(f"s_memtime {sStamp}"), raw("s_memrealtime s[68:69]"), raw("s_waitcnt lgkmcnt(0)"),
            valu("v_mov_b32", vT[22], S(64)), valu("v_mov_b32", vT[23], S(66)),
            bstore(vT[22], vT[23], sWs, 0, 4 * idx), raw("s_nop 1"),
            valu("v_mov_b32", vT[22], S(68)), bstore(vT[22], vT[23], sWs, 0, 4 * idx + 32), raw("s_nop 1")]


def q_chunk(t, s):
    out = [waitsite()]
    q = vQ[t][s]
    tb = 152
    for r in range(4):
        out.append(valu("v_lshlrev_b32", V(tb + 2 * r), 16, q.sub(r)))
        out.append(valu("v_and_b32", V(tb + 2 * r + 1), "0xffff0000", q.sub(r)))
    for r in range(4):
        pr = V(tb + 2 * r, 2)
        out.append(Inst(f"v_pk_mul_f32 {pr}, {pr}, {S(42, 2)}", "valu", rd=pr.regs() + ["s42", "s43"], wr=pr.regs()))
    for r in range(4):
        out.append(valu("v_cvt_pk_bf16_f32", q.sub(r), V(tb + 2 * r), V(tb + 2 * r + 1)))
    return out


def dma_piece(kind, G, cb, e=0):
    k = (kind, G, cb)
    r = [m0_for(k)] + item_insts(k, 0, e)
    if cb == 2:
        so = sKoff if kind == "dmaK" else sVoff
        r.append(salu("s_add_u32", so, so, GRP))
    return r


def lane_reduce(x, tmp, op):
    return [valu("v_mov_b32", tmp, x), perm("v_permlane32_swap_b32", x, tmp), valu(op, x, x, tmp),
            valu("v_mov_b32", tmp, x), perm("v_permlane16_swap_b32", x, tmp), valu(op, x, x, tmp)]


def epilogue(wp, final):
    out = [waitsite()]
    for t in (3, 0, 1, 2):
        out += lane_reduce(vL[t], vT[8 + t], "v_add_f32")
        if t == 3:
            send = range(6 * (1 - wp), 6 * (1 - wp) + 6)
            xa, xb = vT[12], vT[13]
            out.append(salu("s_mov_b32", sT[4], sRg))
            out.append(salu("s_xor_b32", sT[5], sRg, RW))
            out.append(valu("v_lshl_add_u32", xa, vLane, 4, sT[4]))
            out.append(valu("v_lshl_add_u32", xb, vLane, 4, sT[5]))
            ml = V(vT[14].b, 2)
            out.append(valu("v_mov_b32", vT[14], vCI[3].sub(0)))
            out.append(valu("v_mov_b32", vT[15], vL[3]))
            out.append(valu("v_lshl_add_u32", vT[16], vLane, 3, sT[4]))
            out.append(valu("v_lshl_add_u32", vT[17], vLane, 3, sT[5]))
            for j, dt in enumerate(send):
                out.append(dsw("ds_write_b128", xa, aO[3][dt], 1024 * j))
            out.append(dsw("ds_write_b64", vT[16], ml, 6144))
    sw, sr, go = vT[4], vT[6], vT[7]
    out.append(salu("s_add_u32", sT[4], sRg, STGO))
    out.append(valu("v_and_b32", vT[8], 15, vLane))
    out.append(valu("v_lshlrev_b32", vT[8], 4, vT[8]))
    out.append(valu("v_add3_u32", sw, vOO, vT[8], sT[4]))
    out.append(valu("v_lshrrev_b32", vT[8], 3, vLane))
    out.append(valu("v_and_b32", vT[9], 7, vLane))
    out.append(valu("v_lshlrev_b32", vT[9], 4, vT[9]))
    out.append(valu("v_mul_u32_u24", vT[10], 400, vT[8]))
    out.append(valu("v_add3_u32", sr, vT[10], vT[9], sT[4]))
    out.append(valu("v_mul_u32_u24", vT[10], ROWB, vT[8]))
    out.append(valu("v_add3_u32", go, vT[10], vT[9], sRowOwn))
    out.append(waitsite(dict(lgkm0=True, vm=[] if final else [("K", 32), ("K", 33)])))
    out.append(barrier())
    X = [V(128 + 4 * j, 4) for j in range(6)]
    oml = V(vT[18].b, 2)
    out.append(dsr("ds_read_b64", oml, vT[17], 6144))
    for j in range(6):
        out.append(dsr("ds_read_b128", X[j], xb, 1024 * j))
    if not final:
        for cb in range(3):
            out += dma_piece("dmaV", 34, cb)
        for kt in range(2):
            for s in range(6):
                out += item_insts(("krd", 0, kt, s), wp, 0)
    pre = out

    def pack(src, k):
        d = V(96 + 4 * (k % 2), 4)
        o = [valu("v_cvt_pk_bf16_f32", d.sub(i), src[2 * i], src[2 * i + 1]) for i in range(4)]
        sw_ = [perm("v_permlane16_swap_b32", d.sub(0), d.sub(2)), perm("v_permlane16_swap_b32", d.sub(1), d.sub(3))]
        return o, sw_, d

    chunks = []
    k = 0
    tail = []
    RB = [V(104 + 4 * j, 4) for j in range(6)]

    def readback():
        return [dsr("ds_read_b128", RB[j], sr, (j // 3) * 3200 + (j % 3) * 128) for j in range(6)]

    def store(j):
        o = [waitsite(), bstore(RB[j], go, sO, 0, (j // 3) * 3072 + (j % 3) * 128, mods=mods("omod"))]
        if j == 5:
            o.append(valu("v_add_u32", go, 6144, go))
        return o

    for t in range(3):
        inv = V(vT[20].b, 2)
        for p in range(6):
            c = []
            if p == 0:
                c.append(trans("v_rcp_f32", vT[20], vL[t]))
            base = 64 + 8 * (k % 4)
            src = [V(base + i) for i in range(8)]
            for i in range(8):
                c.append(valu("v_accvgpr_read_b32", src[i], aO[t][2 * p + i // 4].sub(i % 4)))
            if p == 0:
                c.append(valu("v_mov_b32", vT[21], vT[20]))
            c += tail
            if p == 0 and t > 0:
                c += readback()
            for i in range(4):
                pr = V(base + 2 * i, 2)
                c.append(Inst(f"v_pk_mul_f32 {pr}, {pr}, {inv}", "valu", rd=pr.regs() + inv.regs(), wr=pr.regs()))
            o, sw_, d = pack(src, k)
            c += o
            tail = sw_ + [dsw("ds_write_b128", sw, d, 64 * p)]
            if t > 0:
                c += store(p)
            chunks.append(c)
            k += 1
    c = [waitsite()]
    nm_own, nm_oth, l_oth = vCI[3].sub(0), vT[18], vT[19]
    M = vT[8]
    fo, fx = vT[9], vT[10]
    c.append(valu("v_min_f32", M, nm_own, nm_oth))
    c.append(valu("v_sub_f32", fo, M, nm_own))
    c.append(valu("v_sub_f32", fx, M, nm_oth))
    c += tail + readback()
    tail = []
    c.append(trans("v_exp_f32", fo, fo))
    c.append(trans("v_exp_f32", fx, fx))
    c.append(valu("v_add_u32", vT[5], sRowSh, vOO))
    c.append(valu("v_mul_f32", vT[11], vL[3], fo))
    c.append(valu("v_fma_f32", vT[11], l_oth, fx, vT[11]))
    c.append(trans("v_rcp_f32", vT[11], vT[11]))
    c.append(valu("v_mul_f32", fo, fo, vT[11]))
    c.append(valu("v_mul_f32", fx, fx, vT[11]))
    for p3 in range(3):
        p = 3 * wp + p3
        base = 64 + 8 * (k % 4)
        src = [V(base + i) for i in range(8)]
        for i in range(8):
            c.append(valu("v_accvgpr_read_b32", src[i], aO[3][2 * p + i // 4].sub(i % 4)))
        c += tail
        for i in range(8):
            c.append(valu("v_mul_f32", src[i], src[i], fo))
        c += store(2 * p3)
        for i in range(8):
            c.append(valu("v_fma_f32", src[i], X[2 * p3 + i // 4].sub(i % 4), fx, src[i]))
        o, sw_, d = pack(src, k)
        c += o
        c += store(2 * p3 + 1)
        tail = sw_ + [bstore(d, vT[5], sO, 0, 64 * p, mods=mods("omod"))]
        chunks.append(c)
        c = []
        k += 1
    chunks.append(tail)
    return pre, chunks


def phase_setup():
    o = []
    o.append(salu("s_add_u32", sT[4], sT[8], sPh))
    o.append(salu("s_mul_i32", sT[5], sT[4], HEADQ))
    o.append(salu("s_add_u32", S(24), S(10), sT[5]))
    o.append(salu("s_addc_u32", S(25), S(11), 0))
    o.append(salu("s_mov_b32", sRowOwn, sNRowOwn))
    o.append(salu("s_mov_b32", sRowSh, sNRowSh))
    o += next_q_setup(1)
    o.append(salu("s_mov_b32", S(80), S(12)))
    o.append(salu("s_mov_b32", S(81), S(13)))
    o.append(salu("s_mov_b32", S(82), 0))
    o.append(salu("s_mov_b32", S(85), 2 * HEADK))
    o.append(salu("s_mov_b32", S(87), 0))
    o.append(salu("s_mov_b32", S(91), 0))
    o.append(salu("s_mov_b32", sQSo, sNRowOwn))
    o.append(salu("s_mov_b32", sQSm, sRg))
    return o


def next_q_setup(d):
    o = []
    o.append(salu("s_add_u32", sT[4], sPh, d))
    o.append(salu("s_xor_b32", sT[5], sT[4], sT[9]))
    o.append(salu("s_and_b32", sT[5], sT[5], 1))
    o.append(salu("s_mul_i32", sT[5], sT[5], 224 * ROWB))
    o.append(salu("s_mov_b32", sT[7], sT[5]))
    o.append(salu("s_mul_i32", sT[6], sW, 48 * ROWB))
    o.append(salu("s_add_u32", sNRowOwn, sT[5], sT[6]))
    o.append(salu("s_lshr_b32", sT[6], sW, 1))
    o.append(salu("s_mul_i32", sT[6], sT[6], 16 * ROWB))
    o.append(salu("s_add_u32", sT[6], sT[6], 192 * ROWB))
    o.append(salu("s_add_u32", sNRowSh, sT[5], sT[6]))
    o.append(salu("s_mov_b32", sT[0], sNRowOwn))
    o.append(salu("s_add_u32", sT[1], sNRowOwn, 6144))
    o.append(salu("s_add_u32", sT[2], sNRowOwn, 12288))
    o.append(scmp("s_cmp_lt_u32", sT[4], 2))
    o.append(salu("s_cselect_b32", S(14), HEADQ, 0))
    o.append(salu("s_min_u32", sT[4], sT[4], 1))
    o.append(salu("s_add_u32", sT[4], sT[4], sT[8]))
    o.append(salu("s_mul_i32", sT[5], sT[4], HEADQ))
    o.append(salu("s_add_u32", S(12), S(4), sT[5]))
    o.append(salu("s_addc_u32", S(13), S(5), 0))
    return o


def prologue():
    o = []
    o.append(scmp("s_cmp_ge_u32", S(2), 256))
    o.append(branch("s_cbranch_scc1", "L_end"))
    o.append(raw("s_load_dwordx4 s[4:7], s[0:1], 0"))
    o.append(raw("s_load_dwordx4 s[8:11], s[0:1], 16"))
    if P["stamp"]:
        o.append(raw("s_load_dwordx2 s[60:61], s[0:1], 40"))
        o.append(raw("s_memtime s[70:71]"))
        o.append(raw("s_memrealtime s[72:73]"))
    o.append(valu("v_lshrrev_b32", vT[0], 6, V(0)))
    o.append(valu("v_and_b32", vLane, 63, V(0)))
    o.append(rfl(sW, vT[0]))
    o.append(salu("s_lshr_b32", sT[4], S(2), 4))
    o.append(salu("s_lshl_b32", sT[4], sT[4], 3))
    o.append(salu("s_and_b32", sT[5], S(2), 7))
    o.append(salu("s_add_u32", sT[4], sT[4], sT[5]))
    o.append(salu("s_lshl_b32", sT[8], sT[4], 1))
    o.append(salu("s_lshr_b32", sT[9], S(2), 3))
    o.append(salu("s_and_b32", sT[9], sT[9], 1))
    o.append(salu("s_mul_i32", sT[7], sT[4], 2 * HEADK))
    o.append(salu("s_mul_i32", sWb, sW, 3072))
    o.append(salu("s_mov_b32", sPh, 0))
    o.append(salu("s_mov_b32", sKoff, 0))
    o.append(salu("s_mov_b32", sVoff, 0))
    c = f32bits(math.log2(math.e) / math.sqrt(192.0))
    o.append(salu("s_mov_b32", S(42), hex(c)))
    o.append(salu("s_mov_b32", S(43), hex(c)))
    o.append(salu("s_mov_b32", sTh, hex(f32bits(2.0 ** P["THR"]))))
    l = vLane
    t0, t1, t2, t3 = vT[0], vT[1], vT[2], vT[3]
    o.append(valu("v_lshrrev_b32", t0, 3, l))
    o.append(salu("s_lshl_b32", sT[5], sW, 3))
    o.append(valu("v_add_u32", t0, sT[5], t0))
    o.append(valu("v_mul_u32_u24", t1, ROWB, t0))
    o.append(valu("v_and_b32", t2, 7, l))
    o.append(valu("v_bfe_u32", t3, t0, 1, 3))
    o.append(valu("v_xor_b32", t3, t3, t2))
    o.append(valu("v_lshl_add_u32", vDK, t3, 4, t1))
    o.append(valu("v_bfe_u32", t3, t0, 1, 2))
    o.append(valu("v_lshlrev_b32", t3, 1, t3))
    o.append(valu("v_xor_b32", t3, t3, t2))
    o.append(valu("v_lshl_add_u32", vDV, t3, 4, t1))
    o.append(raw("s_waitcnt lgkmcnt(0)"))
    o.append(salu("s_add_u32", S(16), S(6), sT[7]))
    o.append(salu("s_addc_u32", S(17), S(7), 0))
    o.append(salu("s_mov_b32", S(18), 2 * HEADK))
    o.append(salu("s_mov_b32", S(19), "0x20000"))
    o.append(salu("s_add_u32", S(20), S(8), sT[7]))
    o.append(salu("s_addc_u32", S(21), S(9), 0))
    o.append(salu("s_mov_b32", S(22), 2 * HEADK))
    o.append(salu("s_mov_b32", S(23), "0x20000"))
    o.append(salu("s_mov_b32", S(15), "0x20000"))
    o.append(salu("s_mov_b32", S(26), HEADQ))
    o.append(salu("s_mov_b32", S(27), "0x20000"))
    if P["stamp"]:
        o.append(salu("s_mov_b32", S(62), "0x100000"))
        o.append(salu("s_mov_b32", S(63), "0x20000"))
        o.append(salu("s_lshl_b32", S(66), S(2), 2))
        o.append(salu("s_add_u32", S(66), S(66), sW))
        o.append(salu("s_lshl_b32", S(66), S(66), 8))

    for i in range(4):
        o.append(salu("s_mov_b32", S(76 + i), S(16 + i)))
    o.append(salu("s_mov_b32", S(83), "0x20000"))
    o.append(salu("s_mov_b32", S(86), 0))
    o.append(salu("s_mov_b32", S(92), 0))
    o.append(salu("s_mov_b32", S(88), 2 * HEADK))
    o.append(salu("s_lshl_b32", sRg, sW, 14))
    o.append(salu("s_add_u32", sRg, sRg, RBASE))

    def dma_group(kind, G):
        return [i for cb in range(3) for i in dma_piece(kind, G, cb)]

    o += dma_group("dmaK", 0)
    o += dma_group("dmaK", 1)
    o.append(valu("v_and_b32", t0, 15, l))
    o.append(valu("v_lshrrev_b32", t1, 4, l))
    o.append(valu("v_mul_u32_u24", t2, ROWB, t0))
    o.append(valu("v_lshl_add_u32", vQO, t1, 4, t2))
    o += next_q_setup(0)
    for t in range(4):
        o += item_insts(("qadd", t), 0, 0)
    for i in range(P["qpre"]):
        o += item_insts(("qld", i // 6, i % 6), 0, 0)
    t0, t1, t2, t3 = vT[4], vT[5], vT[6], vT[7]
    o.append(valu("v_and_b32", t0, 15, l))
    o.append(valu("v_lshrrev_b32", t1, 4, l))
    o.append(valu("v_mul_u32_u24", t2, ROWB, t0))
    o.append(valu("v_and_b32", t3, 1, t1))
    o.append(valu("v_lshl_add_u32", t2, t3, 5, t2))
    o.append(valu("v_lshrrev_b32", t3, 1, t1))
    o.append(valu("v_lshl_add_u32", vOO, t3, 4, t2))
    o.append(valu("v_lshrrev_b32", t2, 3, l))
    o.append(valu("v_mul_u32_u24", t2, ROWB, t2))
    o.append(valu("v_and_b32", t3, 7, l))
    o.append(valu("v_xor_b32", t3, t3, t1))
    o.append(valu("v_lshl_add_u32", vPFo, t3, 4, t2))
    o.append(valu("v_lshrrev_b32", t2, 3, t0))
    o.append(valu("v_mul_u32_u24", t2, 3072, t2))
    o.append(valu("v_and_b32", t3, 7, t0))
    o.append(valu("v_lshl_add_u32", t2, t3, 7, t2))
    o.append(valu("v_lshrrev_b32", t3, 1, t0))
    o.append(valu("v_xor_b32", t3, t3, t1))
    o.append(valu("v_lshl_add_u32", vKA[0], t3, 4, t2))
    if KBASE:
        o.append(valu("v_add_u32", vKA[0], KBASE, vKA[0]))
    o.append(valu("v_xor_b32", vKA[1], 64, vKA[0]))
    o.append(valu("v_lshrrev_b32", t2, 2, t0))
    o.append(valu("v_and_b32", t3, 1, t1))
    o.append(valu("v_lshl_add_u32", t2, t3, 2, t2))
    o.append(valu("v_lshrrev_b32", t3, 1, t1))
    o.append(valu("v_mul_u32_u24", t3, 3072, t3))
    o.append(valu("v_lshl_add_u32", t3, t2, 7, t3))
    o.append(valu("v_and_b32", t0, 3, l))
    o.append(valu("v_lshl_add_u32", t3, t0, 3, t3))
    o.append(valu("v_add_u32", t3, VBASE, t3))
    o.append(valu("v_lshrrev_b32", t2, 1, t2))
    o.append(valu("v_lshl_add_u32", vVA[0], t2, 5, t3))
    for j in range(1, 4):
        o.append(valu("v_xor_b32", vVA[j], 32 * j, vVA[0]))
    if P["stamp"]:
        o += [valu("v_mov_b32", vT[22], S(70)), valu("v_mov_b32", vT[23], S(66)), bstore(vT[22], vT[23], sWs, 0, 4 * 6), raw("s_nop 1"),
              valu("v_mov_b32", vT[22], S(72)), bstore(vT[22], vT[23], sWs, 0, 4 * 6 + 32), raw("s_nop 1")]
    o.append(salu("s_and_b32", sT[4], sW, 1))
    o.append(scmp("s_cmp_eq_u32", sT[4], 1))
    o.append(branch("s_cbranch_scc1", "L_start_1"))
    return o


def rare_common(wp, typ):
    Gp = wp if typ == 0 else 1 - wp
    o = [label(f"L_rare_{wp}_{typ}"), raw("s_nop 15"), raw("s_nop 15")]
    kt_ = [V(vT[0].b + 4 * s, 4) for s in range(6)]
    ka = V(0)

    def recompute(G, soff, cfun):
        r = []
        for kt in range(2):
            r.append(valu("v_add_u32", ka, 6144 * kt, vQO))
            for s in range(6):
                r.append(bload(kt_[s], ka, sKR, soff, 64 * s))
            r.append(raw("s_waitcnt vmcnt(0)"))
            r.append(waitsite(dict(vm0=True)))
            for t in tiles(G, wp):
                for s in range(6):
                    r.append(mfma(vS[t][kt], kt_[s], vQ[t][s], vS[t][kt] if s else cfun(t)))
            r.append(raw("s_nop 15"))
        return r

    o += recompute(Gp, sT[11], lambda t: 0)
    m, m2, f = vT[0], vT[1], vT[2]
    for t in tiles(Gp, wp):
        s0, s1 = vS[t]
        o.append(valu("v_max3_f32", m, s0.sub(0), s0.sub(1), s0.sub(2)))
        o.append(valu("v_max3_f32", m, m, s0.sub(3), s1.sub(0)))
        o.append(valu("v_max3_f32", m, m, s1.sub(1), s1.sub(2)))
        o.append(valu("v_max_f32", m, m, s1.sub(3)))
        o += lane_reduce(m, m2, "v_max_f32")
        o.append(valu("v_sub_f32", m2, 0, vCI[t].sub(0)))
        o.append(valu("v_max_f32", m, m, m2))
        o.append(valu("v_sub_f32", f, m2, m))
        o.append(trans("v_exp_f32", f, f))
        for r in range(4):
            o.append(valu("v_sub_f32", vCI[t].sub(r), 0, m))
        o.append(valu("v_mul_f32", vL[t], vL[t], f))
        for dt in range(12):
            for r in range(4):
                o.append(valu("v_accvgpr_read_b32", vT[4 + r], aO[t][dt].sub(r)))
            for r in range(4):
                o.append(valu("v_mul_f32", vT[4 + r], vT[4 + r], f))
            for r in range(4):
                o.append(valu("v_accvgpr_write_b32", aO[t][dt].sub(r), vT[4 + r]))
        for kt in range(2):
            for r in range(4):
                x = vS[t][kt].sub(r)
                o.append(valu("v_sub_f32", x, x, m))
                o += item_insts(("exp", Gp, t, kt, r), wp, 0)
        for i in range(7):
            o += item_insts(("add", Gp, t, i), wp, 0)
        for kt in range(2):
            for h in range(2):
                o += item_insts(("cvt", Gp, t, kt, h), wp, 0)
    o.append(scmp("s_cmp_eq_u32", sT[10], 0))
    o.append(branch("s_cbranch_scc1", f"L_rare_{wp}_{typ}_ret"))
    o.append(salu("s_add_u32", sT[11], sT[11], GRP))
    o += recompute(Gp + 1, sT[11], lambda t: vCI[t])
    o.append(label(f"L_rare_{wp}_{typ}_ret"))
    return o


def build_phase(wp):
    tm = steady_template(wp)
    sc = StepCode(wp)
    segs = {}
    H = Region(wp, -1, 1)
    done2 = {abskey(k, 1) for g in tm[1 % 2] for k in g if k[0] in ("exp", "add", "cvt", "chkA", "chkB", "chkC") and k[1] == 1}
    items = H.sm_items(0) + H.sm_items(1)
    g2 = H.sm_items(2, only=done2)
    for it in g2:
        it.dead = min(it.dead, H.n - 1)
    items += g2
    for e in (-1, 0, 1):
        items += H.mem_items(e)
    gaps = H.schedule(items)
    assert not H.left, [x.key for x in H.left]
    if P["verbose"]:
        print(f"wp{wp} head overflow {H.over}", file=sys.stderr)

    def cut(R, gaps, e):
        mf = [R.mf[i][1] for i in range(R.st[e], R.en[e] + 1)]
        gk = [[it.key for it in gaps[i]] for i in range(R.st[e], R.en[e] + 1)]
        pv = R.pvs[e] - R.st[e] if e in R.pvs else None
        return mf, gk, pv

    for e in (-1, 0, 1):
        mf, gk, pv = cut(H, gaps, e)
        segs[e] = sc.emit(mf, gk, e, f"h{wp}_{e + 1}", pv, [("V", 1), ("K", 3)])
    R = Region(wp, 2, 5, regular=True)
    for e in range(2, 6):
        mf = [R.mf[i][1] for i in range(R.st[e], R.en[e] + 1)]
        gk = [[abskey(k, e) for k in g] for g in tm[e % 2]]
        extra = []
        btype = len(tiles(e, wp)) == 4
        lastB = e == (4 if len(tiles(4, wp)) == 4 else 5)
        qend = 0
        if btype and P["qst"]:
            free = [i for i, g in enumerate(gk) if not g and i > 0 and not any(k[0].startswith("dma") for k in gk[i - 1] + gk[min(i + 1, 83)])]
            cbs = [2] if lastB else [0, 1]
            pos = [free[0], free[len(free) // 2]]
            for cb, i in zip(cbs, pos):
                gk[i].append(("dmaQ", 0, cb))
                qend = i
            if lastB:
                gk[free[2]].append(("pfa",))
        lastdma = max(i for i, g in enumerate(gk) for k in g if k[0] in ("dmaK", "dmaV"))
        if e == 2:
            extra.append((lastdma + 1, [salu("s_mov_b32", S(18), S(85))]))
        if e == 4:
            extra.append((lastdma + 1, [salu("s_mov_b32", S(22), S(85))]))
        if lastB:
            extra.append((qend + 1, [salu("s_add_u32", sQSo, sQSo, S(91)), salu("s_add_u32", sQSm, sQSm, S(91))]))
            extra.append((20, [scmp("s_cmp_le_u32", sCnt, 5), salu("s_cselect_b32", S(86), S(14), 0), salu("s_cselect_b32", S(92), 64, 0)]))
            extra.append((20, [salu("s_lshl_b32", sT[13], sPh, 3), salu("s_add_u32", sT[13], sT[13], sCnt)]))
            extra.append((70, [scmp("s_cmp_eq_u32", sT[13], 8 + 2), salu("s_cselect_b32", S(88), 0, 2 * HEADK)]))
        segs[e] = sc.emit(mf, gk, e, f"b{wp}_{e}", R.pvs[e] - R.st[e], [("V", 1), ("K", 3)], extra=extra)
    done30 = {abskey(k, 29) for g in tm[29 % 2] for k in g if k[1] == 1}
    for final in (False, True):
        T = Region(wp, 30, 31, final=final)
        items = T.sm_items(30, skip=done30) + T.sm_items(31)
        for e in (30, 31):
            items += T.mem_items(e)
        gaps = T.schedule(items)
        if not final:
            qleft = T.qleft
        assert not T.left, [x.key for x in T.left]
        if P["verbose"]:
            print(f"wp{wp} tail{int(final)} overflow {T.over}", file=sys.stderr)
        for e in (30, 31):
            mf, gk, pv = cut(T, gaps, e)
            segs[(e, final)] = sc.emit(mf, gk, e, f"t{wp}{int(final)}_{e}", pv, None, midbar=[("V", 1)] if e == 30 else None)

    start = [label(f"L_start_{wp}")] + stamp(0)
    start += [waitsite(dict(vm=[("K", 0), ("K", 1)])), barrier()]
    for kt in range(2):
        for s in range(6):
            start += item_insts(("krd", 0, kt, s), wp, 0)
    rest = [(kind, G, cb) for kind, G in (("dmaV", 0), ("dmaK", 2), ("dmaV", 1), ("dmaK", 3), ("dmaV", 2)) for cb in range(3)]
    todo = [item_insts(("qld", i // 6, i % 6), 0, 0) for i in range(P["qpre"], 24)] + [dma_piece(*r) for r in rest]
    for i in range(24):
        start += q_chunk(i // 6, i % 6)
        n = -(-len(todo) // (24 - i))
        for _ in range(n):
            start += todo.pop(0)
    start += phase_setup()
    head = [label(f"L_head_{wp}")] + stamp(1) + [waitsite()]
    loop_in = [salu("s_mov_b32", sCnt, 7)] + stamp(2)
    loop_lab = [raw(".p2align 6", kind="label"), label(f"L_loop_{wp}")]
    loop_end = [salu("s_mov_b32", S(82), S(86)), salu("s_mov_b32", S(87), S(92)), salu("s_mul_i32", S(91), S(92), 48), salu("s_mov_b32", S(85), S(88)),
                salu("s_sub_u32", sCnt, sCnt, 1), scmp("s_cmp_lg_u32", sCnt, 0), branch("s_cbranch_scc1", f"L_loop_{wp}")]
    body5 = segs[5]
    segs[5] = body5[:-2] + loop_end[:-1] + body5[-2:] + loop_end[-1:]
    after_loop = stamp(3) + [scmp("s_cmp_eq_u32", sPh, 1), branch("s_cbranch_scc1", f"L_final_{wp}")]
    pre, ch = epilogue(wp, False)
    epi_a = stamp(4) + pre
    qc = [q_chunk(i // 6, i % 6) for i in range(24)]
    if P["ilv"]:
        skip = 0 if P["qst"] else 4
        for i, c in enumerate(ch):
            epi_a += [waitsite()] + c
            if qleft:
                epi_a += item_insts(qleft.pop(0), wp, 0)
            if i >= skip and qc:
                epi_a += qc.pop(0)
    else:
        for c in ch:
            epi_a += c
            if qleft:
                epi_a += item_insts(qleft.pop(0), wp, 0)
    assert not qleft
    epi_a += stamp(5)
    for c in qc:
        epi_a += c
    epi_a += [salu("s_add_u32", sPh, sPh, 1)]
    if P["stamp"]:
        epi_a.append(salu("s_add_u32", S(66), S(66), 64))
    epi_a += phase_setup() + stamp(0) + [branch("s_branch", f"L_head_{wp}")]
    pre, ch = epilogue(wp, True)
    epi_b = stamp(4) + pre + [i for c in ch for i in c] + stamp(5) + [raw("s_endpgm")]
    fin_lab = [label(f"L_final_{wp}")]

    static = (start + head + segs[-1] + segs[0] + segs[1] + loop_in + loop_lab + segs[2] + segs[3] + segs[4] + segs[5] + after_loop
              + segs[(30, False)] + segs[(31, False)] + epi_a + fin_lab + segs[(30, True)] + segs[(31, True)] + epi_b)

    def dyn(ph):
        b = 32 * ph
        d = [(i, b) for i in (start if ph == 0 else [])] + [(i, b) for i in head]
        for e in (-1, 0, 1):
            d += [(i, b + e) for i in segs[e]]
        d += [(i, b) for i in loop_in]
        for it in range(7):
            for e in range(2, 6):
                d += [(i, b + e + 4 * it) for i in segs[e]]
        d += [(i, b) for i in after_loop]
        for e in (30, 31):
            d += [(i, b + e) for i in segs[(e, ph == 1)]]
        d += [(i, b) for i in (epi_b if ph else epi_a)]
        return d

    rare = []
    if P["check"]:
        for typ in (0, 1):
            mine = [(n, s) for n, s in enumerate(sc.sites) if buf(s[1], wp) == typ]
            for n, (lab, e, replay) in mine:
                rare.append(label(f"{lab}_rare"))
                rare.append(salu("s_mov_b32", sRet, n))
                rare.append(salu("s_mov_b32", sT[10], 0 if e == NG - 1 else 1))
                rare.append(salu("s_mul_i32", sT[11], sPh, HEADK))
                if 2 <= e <= 5:
                    rare.append(salu("s_sub_u32", sT[12], 7, sCnt))
                    rare.append(salu("s_mul_i32", sT[12], sT[12], 4 * GRP))
                    rare.append(salu("s_add_u32", sT[11], sT[11], sT[12]))
                rare.append(salu("s_add_u32", sT[11], sT[11], e * GRP))
                rare.append(branch("s_branch", f"L_rare_{wp}_{typ}"))
            com = rare_common(wp, typ)
            Sim().run([(i, 0) for i in com])
            rare += com
            for n, (lab, e, replay) in mine:
                rare.append(scmp("s_cmp_eq_u32", sRet, n))
                rare.append(branch("s_cbranch_scc1", f"{lab}_replay"))
            rare.append(raw("s_endpgm"))
            for n, (lab, e, replay) in mine:
                rp = [label(f"{lab}_replay")]
                for k in replay:
                    rp += item_insts(k, wp, e)
                rp.append(raw("s_nop 4"))
                Sim().run([(i, 0) for i in rp])
                rare += rp
                rare.append(branch("s_branch", f"{lab}_back"))
    return static, dyn, rare


def main():
    pro = prologue()
    text = []
    body = []
    for wp in (0, 1):
        static, dyn, rare = build_phase(wp)
        for _ in range(2):
            sim = Sim()
            sim.run([(i, 0) for i in pro] + dyn(0) + dyn(1))
        if P["verbose"]:
            nn = sum(i.nop for i in static)
            print(f"wp{wp}: static insts {len(static)} nops {nn} max vq {sim.maxvq}", file=sys.stderr)
        body.append((static, rare))
    hdr = open("standalone__gqa_softmax__near_ridge.s.ref").read().splitlines()
    for ln in hdr:
        if ln.startswith("; @launch"):
            text.append(f"; @launch grid=(256,1,1) block=(256,1,1) lds={LDS_BYTES}")
        elif ln.startswith(";"):
            text.append(ln)
        else:
            break
    text += ["; Generated by gen/genk.py " + " ".join(sys.argv[2:]),
             '.amdgcn_target "amdgcn-amd-amdhsa--gfx950"', ".text", f".globl {NAME}", ".p2align 8",
             f".type {NAME},@function", f"{NAME}:"]
    text += render(pro)
    for static, rare in body:
        text += render(static)
    for static, rare in body:
        text += render(rare)
    text += ["L_end:", "    s_endpgm", '.section .rodata,"a"', ".p2align 6", f".amdhsa_kernel {NAME}",
             "  .amdhsa_next_free_vgpr 512", "  .amdhsa_next_free_sgpr 102", "  .amdhsa_accum_offset 256",
             "  .amdhsa_group_segment_fixed_size 0", "  .amdhsa_kernarg_size 48", "  .amdhsa_user_sgpr_count 2",
             "  .amdhsa_user_sgpr_kernarg_segment_ptr 1", "  .amdhsa_system_sgpr_workgroup_id_x 1", ".end_amdhsa_kernel", ""]
    open(sys.argv[1], "w").write("\n".join(text))


main()
```

```python
import sys, struct, math
sys.path.insert(0, "gen")
from asmlib import *

P = dict(
    LAT=4,
    LDSLAT=8,
    THR=20,
    check=1,
    stamp=0,
    verbose=0,
    nobar=0,
    qst=1,
    dsp=12,
    qlsp=8,
    qpre=10,
    ilv=1,
    kvmod="",
    qmod="",
    omod="",
)
for a in sys.argv[2:]:
    k, v = a.split("=")
    P[k] = type(P[k])(v) if k in P else v

NAME = "standalone__gqa_softmax__near_ridge_kernel"
ROWB = 384
GRP = 12288
HEADQ = 432 * ROWB
HEADK = 1024 * ROWB
KBASE, VBASE, RBASE = 0, 49152, 98304
RW = 16384
STGO = 6656
LDS_BYTES = RBASE + 4 * RW
NG = 32
MIDBAR = 40

sQ, sK, sV, sO = S(12, 4), S(16, 4), S(20, 4), S(24, 4)
sW, sKoff, sVoff, sCnt, sPh, sWb, sC, sTh, sRet = (S(i) for i in range(28, 37))
sRowOwn, sRowSh, sNRowOwn, sNRowSh = S(37), S(38), S(39), S(40)
sT = [S(i) for i in range(44, 60)]
sQp, sOp = S(4, 2), S(10, 2)
sWs = S(60, 4)
sStamp = S(64, 2)
sKR = S(76, 4)
sPF = S(80, 4)

vLane = V(1)
vKA = [V(2), V(3)]
vVA = [V(4 + i) for i in range(4)]
vDK, vDV = V(8), V(9)
vQO, vOO = V(10), V(11)
vL = [V(12 + t) for t in range(4)]
vLG = [[V(16 + 4 * b + t) for t in range(4)] for b in range(2)]
vT = [V(24 + i) for i in range(24)]
vCI = [V(48 + 4 * t, 4) for t in range(4)]
vS = [[V(64 + 8 * t + 4 * kt, 4) for kt in range(2)] for t in range(4)]
vP = [[V(96 + 16 * b + 4 * t, 4) for t in range(4)] for b in range(2)]
vVF = [V(128 + 4 * i, 4) for i in range(8)]
vQ = [[V(160 + 24 * t + 4 * s, 4) for s in range(6)] for t in range(4)]
aO = [[A(48 * t + 4 * dt, 4) for dt in range(12)] for t in range(4)]
aKF = [[A(192 + 24 * kt + 4 * s, 4) for s in range(6)] for kt in range(2)]
vChk = V(28)
vQoff = [V(24 + t) for t in range(4)]
vPFo = V(23)
sQSo, sQSm, sRg = S(84), S(89), S(90)


def vf(G, dt):
    return vVF[(dt + (4 if G == NG - 1 else 0)) % 8]


def f32bits(x):
    return struct.unpack("<I", struct.pack("<f", x))[0]


def mods(k):
    return "".join(" " + x for x in P[k].split("+") if x)


def tiles(G, wp):
    return [0, 1, 2, 3] if (G % 2) == wp else [0, 1, 2]


def buf(G, wp):
    return 0 if (G % 2) == wp else 1


def item_insts(key, wp, e):
    k = key[0]
    if k == "exp":
        _, G, t, kt, r = key
        x = vS[t][kt].sub(r)
        return [trans("v_exp_f32", x, x)]
    if k == "add":
        _, G, t, i = key
        lg = vLG[buf(G, wp)][t]
        if i == 0:
            return [valu("v_add_f32", lg, vS[t][0].sub(0), vS[t][0].sub(1))]
        j = i + 1
        return [valu("v_add_f32", lg, lg, vS[t][j // 4].sub(j % 4))]
    if k == "cvt":
        _, G, t, kt, h = key
        return [valu("v_cvt_pk_bf16_f32", vP[buf(G, wp)][t].sub(2 * kt + h), vS[t][kt].sub(2 * h), vS[t][kt].sub(2 * h + 1))]
    if k == "chkA":
        lg = vLG[buf(key[1], wp)]
        return [valu("v_max3_f32", vChk, lg[0], lg[1], lg[2])]
    if k == "chkB":
        lg = vLG[buf(key[1], wp)]
        return [valu("v_max_f32", vChk, vChk, lg[3])]
    if k == "chkC":
        return [Inst(f"v_cmp_lt_f32 vcc, {sTh}, {vChk}", "valu", rd=vChk.regs() + sTh.regs(), wr=["vcc"])]
    if k == "ladd":
        _, G, t = key
        lg = vLG[buf(G, wp)][t]
        first = (G == 0) if t < 3 else (G == wp)
        if first:
            return [valu("v_mov_b32", vL[t], lg)]
        return [valu("v_add_f32", vL[t], vL[t], lg)]
    if k == "vrd":
        _, G, dt, hf = key
        return [dsr("ds_read_b64_tr_b16", vf(G, dt).sub(2 * hf, 2), vVA[dt % 4], (G % 4) * GRP + hf * 6144 + (dt // 4) * 1024)]
    if k == "krd":
        _, G, kt, s = key
        return [dsr("ds_read_b128", aKF[kt][s], vKA[s % 2], (G % 4) * GRP + kt * 6144 + (s // 2) * 1024)]
    if k == "dmaV":
        _, G, cb = key
        return [bdma(vDV, sV, sVoff, cb * 128, tag=("V", G - e), mods=mods("kvmod"))]
    if k == "dmaK":
        _, G, cb = key
        return [bdma(vDK, sK, sKoff, cb * 128, tag=("K", G - e), mods=mods("kvmod"))]
    if k == "qadd":
        _, t = key
        if t < 3:
            return [valu("v_add_u32", vQoff[t], sT[t], vQO)]
        return [valu("v_add_u32", vQoff[t], sNRowSh, vQO)]
    if k == "qld":
        _, t, s = key
        return [bload(vQ[t][s], vQoff[t], sQ, 0, 64 * s, mods=mods("qmod"))]
    if k == "dmaQ":
        return [bdma(vPFo, sPF, sQSo, key[2] * 128, tag=("Q", -e), mods=mods("kvmod"))]
    if k == "pfa":
        return [valu("v_xor_b32", vPFo, S(87), vPFo)]
    if k == "qra":
        return [valu("v_add_u32", vQoff[key[1]], sRg, vKA[key[1]])]
    if k == "qrd":
        _, t, s = key
        return [dsr("ds_read_b128", vQ[t][s], vQoff[s % 2], t * 6144 + (s // 2) * 1024)]
    if k == "mx":
        _, t, i = key
        m, s0, s1 = vT[8 + 2 * t], vS[t][0], vS[t][1]
        m2 = vT[9 + 2 * t]
        if i == 0:
            return [valu("v_max3_f32", m, s0.sub(0), s0.sub(1), s0.sub(2))]
        if i == 1:
            return [valu("v_max3_f32", m, m, s0.sub(3), s1.sub(0))]
        if i == 2:
            return [valu("v_max3_f32", m, m, s1.sub(1), s1.sub(2))]
        if i == 3:
            return [valu("v_max_f32", m, m, s1.sub(3))]
        if i in (4, 7):
            return [valu("v_mov_b32", m2, m)]
        if i == 5:
            return [perm("v_permlane32_swap_b32", m, m2)]
        if i == 8:
            return [perm("v_permlane16_swap_b32", m, m2)]
        if i in (6, 9):
            return [valu("v_max_f32", m, m, m2)]
    if k == "ci":
        _, t, r = key
        return [valu("v_sub_f32", vCI[t].sub(r), 0, vT[8 + 2 * t])]
    if k == "sub":
        _, t, kt, r = key
        x = vS[t][kt].sub(r)
        return [valu("v_sub_f32", x, x, vT[8 + 2 * t])]
    raise KeyError(key)


def m0_for(key):
    k, G, cb = key
    if k == "dmaQ":
        return salu("s_add_u32", "m0", sQSm, cb * (1024 - 128))
    base = (KBASE if k == "dmaK" else VBASE) + (G % 4) * GRP + cb * (1024 - 128)
    return salu("s_add_u32", "m0", sWb, base)


CLS = dict(exp=("exp", 8), add=("valu", 4), cvt=("valu", 4), chkA=("valu", 4), chkB=("valu", 4), chkC=("valu", 4),
           ladd=("valu", 4), vrd=("lds", 4), krd=("lds", 4), dmaV=("dma", 8), dmaK=("dma", 8), qadd=("valu", 4),
           qld=("dma", 8), dmaQ=("dma", 8), pfa=("valu", 4), qra=("valu", 4), qrd=("lds", 4), mx=("valu", 4), ci=("valu", 4), sub=("valu", 4))


class Item:
    def __init__(self, key, hard, soft, dead, deps=()):
        self.key, self.hard, self.soft, self.dead = key, hard, max(hard, soft), dead
        self.deps = list(deps)
        self.cls, self.cost = CLS[key[0]]
        self.placed = None


class Region:
    def __init__(self, wp, e0, e1, regular=False, final=False):
        self.wp, self.e0, self.e1, self.regular, self.final = wp, e0, e1, regular, final
        self.mf = []
        self.qs, self.qe, self.pvs, self.pvu, self.pvd = {}, {}, {}, {}, {}
        self.kfl = {}
        self.ql = {}
        self.st, self.en = {}, {}
        last = NG - 1
        for e in range(e0, e1 + 1):
            self.st[e] = len(self.mf)
            G = e + 1
            if regular or G <= last:
                if e == -1:
                    order = [(t, kt) for t in range(4) for kt in range(2)]
                else:
                    order = [(t, kt) for kt in range(2) for t in tiles(G, wp)]
                for t, kt in order:
                    self.qs[(G, t, kt)] = len(self.mf)
                    for s in range(6):
                        self.kfl[(G, kt, s)] = len(self.mf)
                        self.ql[(t, s)] = len(self.mf)
                        self.mf.append((e, ("qk", G, t, kt, s)))
                    self.qe[(G, t, kt)] = len(self.mf) - 1
            else:
                self.mf.append((e, None))
            if e >= 0:
                self.pvs[e] = len(self.mf)
                for dt in range(12):
                    self.pvu[(e, dt)] = len(self.mf)
                    for t in tiles(e, wp):
                        self.mf.append((e, ("pv", e, t, dt)))
                    self.pvd[(e, dt)] = len(self.mf) - 1
            self.en[e] = len(self.mf) - 1
        self.n = len(self.mf)

    def sm_items(self, G, only=None, skip=None):
        wp = self.wp
        BIG = 10 ** 6
        items = {}
        pvs = self.pvs.get(G, BIG)

        def add(it):
            items[it.key] = it

        for t in tiles(G, wp):
            G2 = G + 1 if t < 3 else G + 2
            qd = {}
            for kt in range(2):
                ov = self.qs.get((G2, t, kt), BIG)
                qd[kt] = min(ov - 1, pvs - 6)
                qe = self.qe.get((G, t, kt), -1)
                for r in range(4):
                    deps = [("sub", t, kt, r)] if G == 0 and not self.regular else []
                    add(Item(("exp", G, t, kt, r), qe, qe + P["LAT"], qd[kt] - 3, deps))
                for h in range(2):
                    add(Item(("cvt", G, t, kt, h), qe, 0, qd[kt], [("exp", G, t, kt, 2 * h), ("exp", G, t, kt, 2 * h + 1)]))
            for i in range(7):
                j = i + 1
                deps = [("exp", G, t, j // 4, j % 4)]
                deps.append(("exp", G, t, 0, 0) if i == 0 else ("add", G, t, i - 1))
                add(Item(("add", G, t, i), -1, 0, qd[j // 4], deps))
            add(Item(("ladd", G, t), pvs, 0, self.en.get(G, BIG), [("add", G, t, 6)]))
        if P["check"] and (G > 0 or self.regular):
            add(Item(("chkA", G), -1, 0, pvs - 5, [("add", G, t, 6) for t in range(3)]))
            lastk = ("chkA", G)
            if len(tiles(G, wp)) == 4:
                add(Item(("chkB", G), -1, 0, pvs - 4, [lastk, ("add", G, 3, 6)]))
                lastk = ("chkB", G)
            add(Item(("chkC", G), -1, 0, pvs - 3, [lastk]))
        out = []
        for k, it in items.items():
            if only is not None and k not in only:
                continue
            if skip is not None and k in skip:
                continue
            out.append(it)
        return out

    def mem_items(self, e):
        items = []
        st, en = self.st[e], self.en[e]
        L = P["LDSLAT"]
        last = NG - 1
        if e >= 0:
            for dt in range(12):
                if e == last and not self.regular:
                    early = max(self.st[e - 1] + MIDBAR + 1, self.pvd[(e - 1, dt + 4)]) if dt < 8 else self.pvd[(e, dt - 8)]
                else:
                    early = st if dt < 8 else self.pvd[(e, dt - 8)]
                for hf in range(2):
                    items.append(Item(("vrd", e, dt, hf), early, 0, max(early, min(self.pvu[(e, dt)] - 1 - L, en - L))))
        G = e + 2
        if self.regular or G <= last:
            for kt in range(2):
                for s in range(6):
                    early = self.kfl[(G - 1, kt, s)]
                    items.append(Item(("krd", G, kt, s), early, 0, max(early, en - L)))
        dm = []
        if e >= 0 and not self.final and (self.regular or e < last):
            dm += [("dmaV", e + 3, cb) for cb in range(3)]
            if e == 0 and not self.regular:
                dm += [("dmaK", 4, cb) for cb in range(3)]
            dm += [("dmaK", e + 5, cb) for cb in range(3)]
        prev = None
        for j, k in enumerate(dm):
            sp = P["dsp"] * 6 // len(dm)
            it = Item(k, st + 1, st + 1 + sp * j, min(st + 4 + sp * j, en), [prev] if prev else [])
            items.append(it)
            prev = k
        if e == last and not self.regular and not self.final:
            pv = self.pvs[e]
            direct = [2, 3] if P["qst"] else [0, 1, 2, 3]
            if P["qst"]:
                for j in range(2):
                    items.append(Item(("qra", j), pv, 0, pv))
                for t in range(2):
                    for s in range(6):
                        items.append(Item(("qrd", t, s), pv, 0, en - 4, [("qra", s % 2)]))
            self.qleft = []
            n = 0
            for t in direct:
                items.append(Item(("qadd", t), pv, 0, pv + 1))
                for s in range(6):
                    at = pv + 2 + n * P["qlsp"]
                    if at <= en:
                        items.append(Item(("qld", t, s), pv, at, min(at + 2, en), [("qadd", t)]))
                    else:
                        self.qleft.append(("qld", t, s))
                    n += 1
        if e == -1:
            for t in range(4):
                qe = self.qe[(0, t, 1)]
                dead = self.qs.get((1, t, 0), self.qs.get((2, t, 0), en + 1)) - 1
                dead = min(dead, self.en[0])
                for i in range(10):
                    items.append(Item(("mx", t, i), qe, qe + P["LAT"], dead - 8, [("mx", t, i - 1)] if i else []))
                for r in range(4):
                    items.append(Item(("ci", t, r), qe, 0, dead - 1, [("mx", t, 9)]))
                if t in tiles(0, self.wp):
                    for kt in range(2):
                        for r in range(4):
                            items.append(Item(("sub", t, kt, r), qe, 0, dead - 6, [("mx", t, 9)]))
        return items

    def schedule(self, items):
        byk = {it.key: it for it in items}
        for i, it in enumerate(items):
            it.seq = i
            it.deps = [byk[d] for d in it.deps if d in byk]
        gaps = [[] for _ in range(self.n)]
        pending = list(items)
        self.over = 0
        lastdma = -10
        lastb128 = -10

        def ready(it, g, soft=True):
            if (it.soft if soft else it.hard) > g:
                return False
            for d in it.deps:
                if d.placed is None:
                    return False
                if d.placed == g and not (d.cls == "valu" and it.cls in ("valu", "exp")) and soft:
                    return False
            return True

        for g in range(self.n):
            cap = 8
            nl = 0

            def put(it):
                nonlocal cap, nl, lastdma, lastb128
                it.placed = g
                gaps[g].append(it)
                pending.remove(it)
                cap -= it.cost
                if it.cls == "lds":
                    nl += 1
                    if it.key[0] in ("krd", "qrd"):
                        lastb128 = g
                if it.key[0] in ("dmaK", "dmaV"):
                    lastdma = g

            def force(it):
                for d in it.deps:
                    if d.placed is None:
                        force(d)
                assert it.hard <= g, (it.key, it.hard, g)
                put(it)

            def fits(it):
                if it.cost > cap:
                    return False
                if it.cls == "lds" and (nl >= 1 or (it.key[0] in ("krd", "qrd") and lastb128 == g - 1)):
                    return False
                if it.key[0] in ("dmaK", "dmaV") and lastdma >= g - 1:
                    return False
                return True

            for it in sorted([x for x in pending if x.dead <= g], key=lambda x: (x.dead, x.seq)):
                if it.placed is None:
                    force(it)
            while cap > 0:
                c = sorted([x for x in pending if ready(x, g) and fits(x)], key=lambda x: (x.dead, x.seq))
                if not c:
                    break
                top = c[0]
                if cap == 8 and top.cost == 4:
                    lds = [x for x in c if x.cls == "lds"]
                    val = [x for x in c if x.cls == "valu"]
                    big = [x for x in c if x.cost == 8]
                    if top.cls == "lds":
                        haspartner = bool(val)
                    else:
                        haspartner = bool(lds) or len(val) > 1 or any(top in x.deps and x.cls == "valu" and all(d is top or d.placed is not None for d in x.deps) for x in pending)
                    if not haspartner and big and top.dead > g + 3:
                        put(big[0])
                        continue
                    put(top)
                    if top.cls == "valu" and lds and fits(lds[0]):
                        put(lds[0])
                    continue
                put(top)
            if cap < 0 and self.mf[g][1] is not None:
                self.over += -cap
        self.left = pending
        self.gaps = gaps
        return gaps


def mf_inst(key, wp, regular=False):
    if key[0] == "qk":
        _, G, t, kt, s = key
        d = vS[t][kt]
        c = d if s else (0 if (G == 0 and not regular) else vCI[t])
        return mfma(d, aKF[kt][s], vQ[t][s], c)
    _, G, t, dt = key
    first = (G == 0) if t < 3 else (G == wp)
    d = aO[t][dt]
    return mfma(d, vf(G, dt), vP[buf(G, wp)][t], 0 if first else d)


def relkey(key, e):
    if key[0] in ("qadd", "qld", "mx", "ci", "sub", "qra", "qrd"):
        return key
    return (key[0], key[1] - e) + key[2:]


def abskey(key, e):
    return (key[0], key[1] + e) + key[2:]


def steady_template(wp):
    R = Region(wp, 2, 21, regular=True)
    items = []
    for G in range(3, 23):
        items += R.sm_items(G)
    for e in range(2, 22):
        items += R.mem_items(e)
    gaps = R.schedule(items)
    tm = {}
    for e in range(8, 18):
        cur = [[relkey(it.key, e) for it in gaps[g]] for g in range(R.st[e], R.en[e] + 1)]
        if e % 2 in tm:
            assert tm[e % 2] == cur, f"template not periodic at step {e}"
        tm[e % 2] = cur
    if P["verbose"]:
        for par in (0, 1):
            use = sum(CLS[k[0]][1] for g in tm[par] for k in g)
            ov = sum(max(0, sum(CLS[k[0]][1] for k in g) - 8) for g in tm[par])
            print(f"wp{wp} step parity {par}: fill {use}/{8 * len(tm[par])} overflow {ov}", file=sys.stderr)
            if P["verbose"] > 1:
                for i, g in enumerate(tm[par]):
                    print(i, g, file=sys.stderr)
    return tm


class StepCode:
    def __init__(self, wp):
        self.wp = wp
        self.sites = []

    def emit(self, mf, gapkeys, e, tagname, pvs_local, end_need, extra=(), midbar=None):
        wp = self.wp
        G = []
        for i, mk in enumerate(mf):
            g = dict(mf=mf_inst(mk, wp) if mk else None, wait=waitsite(), salu=[], mem=[], val=[], keys=gapkeys[i], post=[])
            for k in gapkeys[i]:
                cls = CLS[k[0]][0]
                (g["mem"] if cls in ("lds", "dma") else g["val"]).append((k, item_insts(k, wp, e)))
            G.append(g)
        late = []
        for i, g in enumerate(G):
            newmem = []
            nd = 0
            for k, ins in g["mem"]:
                if k[0] in ("dmaK", "dmaV", "dmaQ"):
                    prev_has = i == 0 or any(kk and kk[0] in ("dmaK", "dmaV", "dmaQ") for kk, _ in G[i - 1]["mem"])
                    if nd == 0 and not prev_has:
                        G[i - 1]["salu"].append(m0_for(k))
                    else:
                        newmem.append((None, [m0_for(k)]))
                    nd += 1
                    newmem.append((k, ins))
                    if k[2] == 2 and k[0] != "dmaQ":
                        so = sKoff if k[0] == "dmaK" else sVoff
                        upd = salu("s_add_u32", so, so, GRP)
                        nxt = [j for j in range(i + 1, len(G)) if any(kk and kk[0] == k[0] for kk, _ in G[j]["mem"])]
                        lim = nxt[0] if nxt else len(G) - 1
                        late.append((i + 1, lim, [upd]))
                else:
                    newmem.append((k, ins))
            g["mem"] = newmem

        def room(g):
            used = sum(CLS[k[0]][1] for k in g["keys"])
            return (1 if not g["salu"] else 0) + max(0, 8 - used - 4 * max(0, len(g["salu"]) - 1)) // 4

        for lo, hi, ins in late + [(lo, len(G) - 1, ins) for lo, ins in extra]:
            hi = min(hi, len(G) - 1)
            c = [j for j in range(lo, hi + 1) if room(G[j]) >= len(ins) + 1] or [j for j in range(lo, hi + 1) if room(G[j]) >= len(ins)] or [min(lo, hi)]
            G[c[0]]["salu"] += ins
        out = []
        for i, g in enumerate(G):
            if g["mf"] is not None:
                out.append(g["mf"])
            out.append(g["wait"])
            if pvs_local is not None and i == pvs_local - 1 and P["check"] and e > 0 and g["mf"] is not None:
                out += self.site(e, tagname, G[:i])
            out += g["salu"]
            for _, ins in g["mem"]:
                out += ins
            for _, ins in g["val"]:
                out += ins
            if pvs_local is not None and i == pvs_local - 1 and P["check"] and e > 0 and g["mf"] is None:
                out.append(raw("s_nop 4"))
                out += self.site(e, tagname, G[:i + 1])
            if g["mf"] is None:
                out.append(waitsite(dict(vm=[("Q", -e + 4 * i) for i in range(7)])))
            if midbar is not None and i == MIDBAR:
                out.append(waitsite(dict(vm=midbar)))
                out.append(barrier())
        if end_need is not None:
            out.append(waitsite(dict(lgkm0=True, vm=end_need)))
            out.append(barrier() if not (P["nobar"] and 2 <= e <= 5) else raw("s_nop 0"))
        return out

    def site(self, e, tagname, done_gaps):
        sid = len(self.sites)
        replay = [k for g in done_gaps for k in g["keys"] if k[0] in ("exp", "add", "cvt") and k[1] == e + 1]
        lab = f"L_{tagname}"
        self.sites.append((lab, e, replay))
        return [branch("s_cbranch_vccnz", f"{lab}_rare"), label(f"{lab}_back")]


def stamp(idx):
    if not P["stamp"]:
        return []
    if P["stamp"] == 2:
        o = [raw("s_memrealtime s[68:69]"), raw("s_waitcnt lgkmcnt(0)"), salu("s_sub_u32", S(64), S(68), S(72)),
             valu("v_mov_b32", vT[22], S(64)), valu("v_mov_b32", vT[23], S(66)),
             raw("s_mov_b64 exec, 1"),
             Inst(f"buffer_atomic_umax {vT[22]}, {vT[23]}, {sWs}, 0 offen offset:{4 * idx}", "vst", rd=vT[22].regs() + vT[23].regs())]
        if idx == 5:
            o += [raw("s_nop 1"), valu("v_mov_b32", vT[22], S(68)), valu("v_mov_b32", vT[23], 0),
                  Inst(f"buffer_atomic_umax {vT[22]}, {vT[23]}, {sWs}, 0 offen offset:48", "vst", rd=vT[22].regs() + vT[23].regs()),
                  raw("s_nop 1"), salu("s_not_b32", S(64), S(72)), valu("v_mov_b32", vT[22], S(64)),
                  Inst(f"buffer_atomic_umax {vT[22]}, {vT[23]}, {sWs}, 0 offen offset:52", "vst", rd=vT[22].regs() + vT[23].regs())]
        o += [raw("s_mov_b64 exec, -1"), raw("s_nop 4")]
        return o
    return [raw(f"s_memtime {sStamp}"), raw("s_memrealtime s[68:69]"), raw("s_waitcnt lgkmcnt(0)"),
            valu("v_mov_b32", vT[22], S(64)), valu("v_mov_b32", vT[23], S(66)),
            bstore(vT[22], vT[23], sWs, 0, 4 * idx), raw("s_nop 1"),
            valu("v_mov_b32", vT[22], S(68)), bstore(vT[22], vT[23], sWs, 0, 4 * idx + 32), raw("s_nop 1")]


def q_chunk(t, s):
    out = [waitsite()]
    q = vQ[t][s]
    tb = 152
    for r in range(4):
        out.append(valu("v_lshlrev_b32", V(tb + 2 * r), 16, q.sub(r)))
        out.append(valu("v_and_b32", V(tb + 2 * r + 1), "0xffff0000", q.sub(r)))
    for r in range(4):
        pr = V(tb + 2 * r, 2)
        out.append(Inst(f"v_pk_mul_f32 {pr}, {pr}, {S(42, 2)}", "valu", rd=pr.regs() + ["s42", "s43"], wr=pr.regs()))
    for r in range(4):
        out.append(valu("v_cvt_pk_bf16_f32", q.sub(r), V(tb + 2 * r), V(tb + 2 * r + 1)))
    return out


def dma_piece(kind, G, cb, e=0):
    k = (kind, G, cb)
    r = [m0_for(k)] + item_insts(k, 0, e)
    if cb == 2:
        so = sKoff if kind == "dmaK" else sVoff
        r.append(salu("s_add_u32", so, so, GRP))
    return r


def lane_reduce(x, tmp, op):
    return [valu("v_mov_b32", tmp, x), perm("v_permlane32_swap_b32", x, tmp), valu(op, x, x, tmp),
            valu("v_mov_b32", tmp, x), perm("v_permlane16_swap_b32", x, tmp), valu(op, x, x, tmp)]


def epilogue(wp, final):
    out = [waitsite()]
    for t in (3, 0, 1, 2):
        out += lane_reduce(vL[t], vT[8 + t], "v_add_f32")
        if t == 3:
            send = range(6 * (1 - wp), 6 * (1 - wp) + 6)
            xa, xb = vT[12], vT[13]
            out.append(salu("s_mov_b32", sT[4], sRg))
            out.append(salu("s_xor_b32", sT[5], sRg, RW))
            out.append(valu("v_lshl_add_u32", xa, vLane, 4, sT[4]))
            out.append(valu("v_lshl_add_u32", xb, vLane, 4, sT[5]))
            ml = V(vT[14].b, 2)
            out.append(valu("v_mov_b32", vT[14], vCI[3].sub(0)))
            out.append(valu("v_mov_b32", vT[15], vL[3]))
            out.append(valu("v_lshl_add_u32", vT[16], vLane, 3, sT[4]))
            out.append(valu("v_lshl_add_u32", vT[17], vLane, 3, sT[5]))
            for j, dt in enumerate(send):
                out.append(dsw("ds_write_b128", xa, aO[3][dt], 1024 * j))
            out.append(dsw("ds_write_b64", vT[16], ml, 6144))
    sw, sr, go = vT[4], vT[6], vT[7]
    out.append(salu("s_add_u32", sT[4], sRg, STGO))
    out.append(valu("v_and_b32", vT[8], 15, vLane))
    out.append(valu("v_lshlrev_b32", vT[8], 4, vT[8]))
    out.append(valu("v_add3_u32", sw, vOO, vT[8], sT[4]))
    out.append(valu("v_lshrrev_b32", vT[8], 3, vLane))
    out.append(valu("v_and_b32", vT[9], 7, vLane))
    out.append(valu("v_lshlrev_b32", vT[9], 4, vT[9]))
    out.append(valu("v_mul_u32_u24", vT[10], 400, vT[8]))
    out.append(valu("v_add3_u32", sr, vT[10], vT[9], sT[4]))
    out.append(valu("v_mul_u32_u24", vT[10], ROWB, vT[8]))
    out.append(valu("v_add3_u32", go, vT[10], vT[9], sRowOwn))
    out.append(waitsite(dict(lgkm0=True, vm=[] if final else [("K", 32), ("K", 33)])))
    out.append(barrier())
    X = [V(128 + 4 * j, 4) for j in range(6)]
    oml = V(vT[18].b, 2)
    out.append(dsr("ds_read_b64", oml, vT[17], 6144))
    for j in range(6):
        out.append(dsr("ds_read_b128", X[j], xb, 1024 * j))
    if not final:
        for cb in range(3):
            out += dma_piece("dmaV", 34, cb)
        for kt in range(2):
            for s in range(6):
                out += item_insts(("krd", 0, kt, s), wp, 0)
    pre = out

    def pack(src, k):
        d = V(96 + 4 * (k % 2), 4)
        o = [valu("v_cvt_pk_bf16_f32", d.sub(i), src[2 * i], src[2 * i + 1]) for i in range(4)]
        sw_ = [perm("v_permlane16_swap_b32", d.sub(0), d.sub(2)), perm("v_permlane16_swap_b32", d.sub(1), d.sub(3))]
        return o, sw_, d

    chunks = []
    k = 0
    tail = []
    RB = [V(104 + 4 * j, 4) for j in range(6)]

    def readback():
        return [dsr("ds_read_b128", RB[j], sr, (j // 3) * 3200 + (j % 3) * 128) for j in range(6)]

    def store(j):
        o = [waitsite(), bstore(RB[j], go, sO, 0, (j // 3) * 3072 + (j % 3) * 128, mods=mods("omod"))]
        if j == 5:
            o.append(valu("v_add_u32", go, 6144, go))
        return o

    for t in range(3):
        inv = V(vT[20].b, 2)
        for p in range(6):
            c = []
            if p == 0:
                c.append(trans("v_rcp_f32", vT[20], vL[t]))
            base = 64 + 8 * (k % 4)
            src = [V(base + i) for i in range(8)]
            for i in range(8):
                c.append(valu("v_accvgpr_read_b32", src[i], aO[t][2 * p + i // 4].sub(i % 4)))
            if p == 0:
                c.append(valu("v_mov_b32", vT[21], vT[20]))
            c += tail
            if p == 0 and t > 0:
                c += readback()
            for i in range(4):
                pr = V(base + 2 * i, 2)
                c.append(Inst(f"v_pk_mul_f32 {pr}, {pr}, {inv}", "valu", rd=pr.regs() + inv.regs(), wr=pr.regs()))
            o, sw_, d = pack(src, k)
            c += o
            tail = sw_ + [dsw("ds_write_b128", sw, d, 64 * p)]
            if t > 0:
                c += store(p)
            chunks.append(c)
            k += 1
    c = [waitsite()]
    nm_own, nm_oth, l_oth = vCI[3].sub(0), vT[18], vT[19]
    M = vT[8]
    fo, fx = vT[9], vT[10]
    c.append(valu("v_min_f32", M, nm_own, nm_oth))
    c.append(valu("v_sub_f32", fo, M, nm_own))
    c.append(valu("v_sub_f32", fx, M, nm_oth))
    c += tail + readback()
    tail = []
    c.append(trans("v_exp_f32", fo, fo))
    c.append(trans("v_exp_f32", fx, fx))
    c.append(valu("v_add_u32", vT[5], sRowSh, vOO))
    c.append(valu("v_mul_f32", vT[11], vL[3], fo))
    c.append(valu("v_fma_f32", vT[11], l_oth, fx, vT[11]))
    c.append(trans("v_rcp_f32", vT[11], vT[11]))
    c.append(valu("v_mul_f32", fo, fo, vT[11]))
    c.append(valu("v_mul_f32", fx, fx, vT[11]))
    for p3 in range(3):
        p = 3 * wp + p3
        base = 64 + 8 * (k % 4)
        src = [V(base + i) for i in range(8)]
        for i in range(8):
            c.append(valu("v_accvgpr_read_b32", src[i], aO[3][2 * p + i // 4].sub(i % 4)))
        c += tail
        for i in range(8):
            c.append(valu("v_mul_f32", src[i], src[i], fo))
        c += store(2 * p3)
        for i in range(8):
            c.append(valu("v_fma_f32", src[i], X[2 * p3 + i // 4].sub(i % 4), fx, src[i]))
        o, sw_, d = pack(src, k)
        c += o
        c += store(2 * p3 + 1)
        tail = sw_ + [bstore(d, vT[5], sO, 0, 64 * p, mods=mods("omod"))]
        chunks.append(c)
        c = []
        k += 1
    chunks.append(tail)
    return pre, chunks


def phase_setup():
    o = []
    o.append(salu("s_add_u32", sT[4], sT[8], sPh))
    o.append(salu("s_mul_i32", sT[5], sT[4], HEADQ))
    o.append(salu("s_add_u32", S(24), S(10), sT[5]))
    o.append(salu("s_addc_u32", S(25), S(11), 0))
    o.append(salu("s_mov_b32", sRowOwn, sNRowOwn))
    o.append(salu("s_mov_b32", sRowSh, sNRowSh))
    o += next_q_setup(1)
    o.append(salu("s_mov_b32", S(80), S(12)))
    o.append(salu("s_mov_b32", S(81), S(13)))
    o.append(salu("s_mov_b32", S(82), 0))
    o.append(salu("s_mov_b32", S(85), 2 * HEADK))
    o.append(salu("s_mov_b32", S(87), 0))
    o.append(salu("s_mov_b32", S(91), 0))
    o.append(salu("s_mov_b32", sQSo, sNRowOwn))
    o.append(salu("s_mov_b32", sQSm, sRg))
    return o


def next_q_setup(d):
    o = []
    o.append(salu("s_add_u32", sT[4], sPh, d))
    o.append(salu("s_xor_b32", sT[5], sT[4], sT[9]))
    o.append(salu("s_and_b32", sT[5], sT[5], 1))
    o.append(salu("s_mul_i32", sT[5], sT[5], 224 * ROWB))
    o.append(salu("s_mov_b32", sT[7], sT[5]))
    o.append(salu("s_mul_i32", sT[6], sW, 48 * ROWB))
    o.append(salu("s_add_u32", sNRowOwn, sT[5], sT[6]))
    o.append(salu("s_lshr_b32", sT[6], sW, 1))
    o.append(salu("s_mul_i32", sT[6], sT[6], 16 * ROWB))
    o.append(salu("s_add_u32", sT[6], sT[6], 192 * ROWB))
    o.append(salu("s_add_u32", sNRowSh, sT[5], sT[6]))
    o.append(salu("s_mov_b32", sT[0], sNRowOwn))
    o.append(salu("s_add_u32", sT[1], sNRowOwn, 6144))
    o.append(salu("s_add_u32", sT[2], sNRowOwn, 12288))
    o.append(scmp("s_cmp_lt_u32", sT[4], 2))
    o.append(salu("s_cselect_b32", S(14), HEADQ, 0))
    o.append(salu("s_min_u32", sT[4], sT[4], 1))
    o.append(salu("s_add_u32", sT[4], sT[4], sT[8]))
    o.append(salu("s_mul_i32", sT[5], sT[4], HEADQ))
    o.append(salu("s_add_u32", S(12), S(4), sT[5]))
    o.append(salu("s_addc_u32", S(13), S(5), 0))
    return o


def prologue():
    o = []
    o.append(scmp("s_cmp_ge_u32", S(2), 256))
    o.append(branch("s_cbranch_scc1", "L_end"))
    o.append(raw("s_load_dwordx4 s[4:7], s[0:1], 0"))
    o.append(raw("s_load_dwordx4 s[8:11], s[0:1], 16"))
    if P["stamp"]:
        o.append(raw(f"s_load_dwordx2 s[60:61], s[0:1], {40 if P['stamp'] == 1 else 32}"))
        o.append(raw("s_memtime s[70:71]"))
        o.append(raw("s_memrealtime s[72:73]"))
    o.append(valu("v_lshrrev_b32", vT[0], 6, V(0)))
    o.append(valu("v_and_b32", vLane, 63, V(0)))
    o.append(rfl(sW, vT[0]))
    o.append(salu("s_lshr_b32", sT[4], S(2), 4))
    o.append(salu("s_lshl_b32", sT[4], sT[4], 3))
    o.append(salu("s_and_b32", sT[5], S(2), 7))
    o.append(salu("s_add_u32", sT[4], sT[4], sT[5]))
    o.append(salu("s_lshl_b32", sT[8], sT[4], 1))
    o.append(salu("s_lshr_b32", sT[9], S(2), 3))
    o.append(salu("s_and_b32", sT[9], sT[9], 1))
    o.append(salu("s_mul_i32", sT[7], sT[4], 2 * HEADK))
    o.append(salu("s_mul_i32", sWb, sW, 3072))
    o.append(salu("s_mov_b32", sPh, 0))
    o.append(salu("s_mov_b32", sKoff, 0))
    o.append(salu("s_mov_b32", sVoff, 0))
    c = f32bits(math.log2(math.e) / math.sqrt(192.0))
    o.append(salu("s_mov_b32", S(42), hex(c)))
    o.append(salu("s_mov_b32", S(43), hex(c)))
    o.append(salu("s_mov_b32", sTh, hex(f32bits(2.0 ** P["THR"]))))
    l = vLane
    t0, t1, t2, t3 = vT[0], vT[1], vT[2], vT[3]
    o.append(valu("v_lshrrev_b32", t0, 3, l))
    o.append(salu("s_lshl_b32", sT[5], sW, 3))
    o.append(valu("v_add_u32", t0, sT[5], t0))
    o.append(valu("v_mul_u32_u24", t1, ROWB, t0))
    o.append(valu("v_and_b32", t2, 7, l))
    o.append(valu("v_bfe_u32", t3, t0, 1, 3))
    o.append(valu("v_xor_b32", t3, t3, t2))
    o.append(valu("v_lshl_add_u32", vDK, t3, 4, t1))
    o.append(valu("v_bfe_u32", t3, t0, 1, 2))
    o.append(valu("v_lshlrev_b32", t3, 1, t3))
    o.append(valu("v_xor_b32", t3, t3, t2))
    o.append(valu("v_lshl_add_u32", vDV, t3, 4, t1))
    o.append(raw("s_waitcnt lgkmcnt(0)"))
    o.append(salu("s_add_u32", S(16), S(6), sT[7]))
    o.append(salu("s_addc_u32", S(17), S(7), 0))
    o.append(salu("s_mov_b32", S(18), 2 * HEADK))
    o.append(salu("s_mov_b32", S(19), "0x20000"))
    o.append(salu("s_add_u32", S(20), S(8), sT[7]))
    o.append(salu("s_addc_u32", S(21), S(9), 0))
    o.append(salu("s_mov_b32", S(22), 2 * HEADK))
    o.append(salu("s_mov_b32", S(23), "0x20000"))
    o.append(salu("s_mov_b32", S(15), "0x20000"))
    o.append(salu("s_mov_b32", S(26), HEADQ))
    o.append(salu("s_mov_b32", S(27), "0x20000"))
    if P["stamp"]:
        o.append(salu("s_mov_b32", S(62), "0x100000" if P["stamp"] == 1 else 256))
        o.append(salu("s_mov_b32", S(63), "0x20000"))
        o.append(salu("s_lshl_b32", S(66), S(2), 2))
        o.append(salu("s_add_u32", S(66), S(66), sW))
        o.append(salu("s_lshl_b32", S(66), S(66), 8))
        if P["stamp"] == 2:
            o.append(salu("s_mov_b32", S(66), 0))

    for i in range(4):
        o.append(salu("s_mov_b32", S(76 + i), S(16 + i)))
    o.append(salu("s_mov_b32", S(83), "0x20000"))
    o.append(salu("s_mov_b32", S(86), 0))
    o.append(salu("s_mov_b32", S(92), 0))
    o.append(salu("s_mov_b32", S(88), 2 * HEADK))
    o.append(salu("s_lshl_b32", sRg, sW, 14))
    o.append(salu("s_add_u32", sRg, sRg, RBASE))

    def dma_group(kind, G):
        return [i for cb in range(3) for i in dma_piece(kind, G, cb)]

    o += dma_group("dmaK", 0)
    o += dma_group("dmaK", 1)
    o.append(valu("v_and_b32", t0, 15, l))
    o.append(valu("v_lshrrev_b32", t1, 4, l))
    o.append(valu("v_mul_u32_u24", t2, ROWB, t0))
    o.append(valu("v_lshl_add_u32", vQO, t1, 4, t2))
    o += next_q_setup(0)
    for t in range(4):
        o += item_insts(("qadd", t), 0, 0)
    for i in range(P["qpre"]):
        o += item_insts(("qld", i // 6, i % 6), 0, 0)
    t0, t1, t2, t3 = vT[4], vT[5], vT[6], vT[7]
    o.append(valu("v_and_b32", t0, 15, l))
    o.append(valu("v_lshrrev_b32", t1, 4, l))
    o.append(valu("v_mul_u32_u24", t2, ROWB, t0))
    o.append(valu("v_and_b32", t3, 1, t1))
    o.append(valu("v_lshl_add_u32", t2, t3, 5, t2))
    o.append(valu("v_lshrrev_b32", t3, 1, t1))
    o.append(valu("v_lshl_add_u32", vOO, t3, 4, t2))
    o.append(valu("v_lshrrev_b32", t2, 3, l))
    o.append(valu("v_mul_u32_u24", t2, ROWB, t2))
    o.append(valu("v_and_b32", t3, 7, l))
    o.append(valu("v_xor_b32", t3, t3, t1))
    o.append(valu("v_lshl_add_u32", vPFo, t3, 4, t2))
    o.append(valu("v_lshrrev_b32", t2, 3, t0))
    o.append(valu("v_mul_u32_u24", t2, 3072, t2))
    o.append(valu("v_and_b32", t3, 7, t0))
    o.append(valu("v_lshl_add_u32", t2, t3, 7, t2))
    o.append(valu("v_lshrrev_b32", t3, 1, t0))
    o.append(valu("v_xor_b32", t3, t3, t1))
    o.append(valu("v_lshl_add_u32", vKA[0], t3, 4, t2))
    if KBASE:
        o.append(valu("v_add_u32", vKA[0], KBASE, vKA[0]))
    o.append(valu("v_xor_b32", vKA[1], 64, vKA[0]))
    o.append(valu("v_lshrrev_b32", t2, 2, t0))
    o.append(valu("v_and_b32", t3, 1, t1))
    o.append(valu("v_lshl_add_u32", t2, t3, 2, t2))
    o.append(valu("v_lshrrev_b32", t3, 1, t1))
    o.append(valu("v_mul_u32_u24", t3, 3072, t3))
    o.append(valu("v_lshl_add_u32", t3, t2, 7, t3))
    o.append(valu("v_and_b32", t0, 3, l))
    o.append(valu("v_lshl_add_u32", t3, t0, 3, t3))
    o.append(valu("v_add_u32", t3, VBASE, t3))
    o.append(valu("v_lshrrev_b32", t2, 1, t2))
    o.append(valu("v_lshl_add_u32", vVA[0], t2, 5, t3))
    for j in range(1, 4):
        o.append(valu("v_xor_b32", vVA[j], 32 * j, vVA[0]))
    if P["stamp"] == 1:
        o += [valu("v_mov_b32", vT[22], S(70)), valu("v_mov_b32", vT[23], S(66)), bstore(vT[22], vT[23], sWs, 0, 4 * 6), raw("s_nop 1"),
              valu("v_mov_b32", vT[22], S(72)), bstore(vT[22], vT[23], sWs, 0, 4 * 6 + 32), raw("s_nop 1")]
    o.append(salu("s_and_b32", sT[4], sW, 1))
    o.append(scmp("s_cmp_eq_u32", sT[4], 1))
    o.append(branch("s_cbranch_scc1", "L_start_1"))
    return o


def rare_common(wp, typ):
    Gp = wp if typ == 0 else 1 - wp
    o = [label(f"L_rare_{wp}_{typ}"), raw("s_nop 15"), raw("s_nop 15")]
    kt_ = [V(vT[0].b + 4 * s, 4) for s in range(6)]
    ka = V(0)

    def recompute(G, soff, cfun):
        r = []
        for kt in range(2):
            r.append(valu("v_add_u32", ka, 6144 * kt, vQO))
            for s in range(6):
                r.append(bload(kt_[s], ka, sKR, soff, 64 * s))
            r.append(raw("s_waitcnt vmcnt(0)"))
            r.append(waitsite(dict(vm0=True)))
            for t in tiles(G, wp):
                for s in range(6):
                    r.append(mfma(vS[t][kt], kt_[s], vQ[t][s], vS[t][kt] if s else cfun(t)))
            r.append(raw("s_nop 15"))
        return r

    o += recompute(Gp, sT[11], lambda t: 0)
    m, m2, f = vT[0], vT[1], vT[2]
    for t in tiles(Gp, wp):
        s0, s1 = vS[t]
        o.append(valu("v_max3_f32", m, s0.sub(0), s0.sub(1), s0.sub(2)))
        o.append(valu("v_max3_f32", m, m, s0.sub(3), s1.sub(0)))
        o.append(valu("v_max3_f32", m, m, s1.sub(1), s1.sub(2)))
        o.append(valu("v_max_f32", m, m, s1.sub(3)))
        o += lane_reduce(m, m2, "v_max_f32")
        o.append(valu("v_sub_f32", m2, 0, vCI[t].sub(0)))
        o.append(valu("v_max_f32", m, m, m2))
        o.append(valu("v_sub_f32", f, m2, m))
        o.append(trans("v_exp_f32", f, f))
        for r in range(4):
            o.append(valu("v_sub_f32", vCI[t].sub(r), 0, m))
        o.append(valu("v_mul_f32", vL[t], vL[t], f))
        for dt in range(12):
            for r in range(4):
                o.append(valu("v_accvgpr_read_b32", vT[4 + r], aO[t][dt].sub(r)))
            for r in range(4):
                o.append(valu("v_mul_f32", vT[4 + r], vT[4 + r], f))
            for r in range(4):
                o.append(valu("v_accvgpr_write_b32", aO[t][dt].sub(r), vT[4 + r]))
        for kt in range(2):
            for r in range(4):
                x = vS[t][kt].sub(r)
                o.append(valu("v_sub_f32", x, x, m))
                o += item_insts(("exp", Gp, t, kt, r), wp, 0)
        for i in range(7):
            o += item_insts(("add", Gp, t, i), wp, 0)
        for kt in range(2):
            for h in range(2):
                o += item_insts(("cvt", Gp, t, kt, h), wp, 0)
    o.append(scmp("s_cmp_eq_u32", sT[10], 0))
    o.append(branch("s_cbranch_scc1", f"L_rare_{wp}_{typ}_ret"))
    o.append(salu("s_add_u32", sT[11], sT[11], GRP))
    o += recompute(Gp + 1, sT[11], lambda t: vCI[t])
    o.append(label(f"L_rare_{wp}_{typ}_ret"))
    return o


def build_phase(wp):
    tm = steady_template(wp)
    sc = StepCode(wp)
    segs = {}
    H = Region(wp, -1, 1)
    done2 = {abskey(k, 1) for g in tm[1 % 2] for k in g if k[0] in ("exp", "add", "cvt", "chkA", "chkB", "chkC") and k[1] == 1}
    items = H.sm_items(0) + H.sm_items(1)
    g2 = H.sm_items(2, only=done2)
    for it in g2:
        it.dead = min(it.dead, H.n - 1)
    items += g2
    for e in (-1, 0, 1):
        items += H.mem_items(e)
    gaps = H.schedule(items)
    assert not H.left, [x.key for x in H.left]
    if P["verbose"]:
        print(f"wp{wp} head overflow {H.over}", file=sys.stderr)

    def cut(R, gaps, e):
        mf = [R.mf[i][1] for i in range(R.st[e], R.en[e] + 1)]
        gk = [[it.key for it in gaps[i]] for i in range(R.st[e], R.en[e] + 1)]
        pv = R.pvs[e] - R.st[e] if e in R.pvs else None
        return mf, gk, pv

    for e in (-1, 0, 1):
        mf, gk, pv = cut(H, gaps, e)
        segs[e] = sc.emit(mf, gk, e, f"h{wp}_{e + 1}", pv, [("V", 1), ("K", 3)])
    R = Region(wp, 2, 5, regular=True)
    for e in range(2, 6):
        mf = [R.mf[i][1] for i in range(R.st[e], R.en[e] + 1)]
        gk = [[abskey(k, e) for k in g] for g in tm[e % 2]]
        extra = []
        btype = len(tiles(e, wp)) == 4
        lastB = e == (4 if len(tiles(4, wp)) == 4 else 5)
        qend = 0
        if btype and P["qst"]:
            free = [i for i, g in enumerate(gk) if not g and i > 0 and not any(k[0].startswith("dma") for k in gk[i - 1] + gk[min(i + 1, 83)])]
            cbs = [2] if lastB else [0, 1]
            pos = [free[0], free[len(free) // 2]]
            for cb, i in zip(cbs, pos):
                gk[i].append(("dmaQ", 0, cb))
                qend = i
            if lastB:
                gk[free[2]].append(("pfa",))
        lastdma = max(i for i, g in enumerate(gk) for k in g if k[0] in ("dmaK", "dmaV"))
        if e == 2:
            extra.append((lastdma + 1, [salu("s_mov_b32", S(18), S(85))]))
        if e == 4:
            extra.append((lastdma + 1, [salu("s_mov_b32", S(22), S(85))]))
        if lastB:
            extra.append((qend + 1, [salu("s_add_u32", sQSo, sQSo, S(91)), salu("s_add_u32", sQSm, sQSm, S(91))]))
            extra.append((20, [scmp("s_cmp_le_u32", sCnt, 5), salu("s_cselect_b32", S(86), S(14), 0), salu("s_cselect_b32", S(92), 64, 0)]))
            extra.append((20, [salu("s_lshl_b32", sT[13], sPh, 3), salu("s_add_u32", sT[13], sT[13], sCnt)]))
            extra.append((70, [scmp("s_cmp_eq_u32", sT[13], 8 + 2), salu("s_cselect_b32", S(88), 0, 2 * HEADK)]))
        segs[e] = sc.emit(mf, gk, e, f"b{wp}_{e}", R.pvs[e] - R.st[e], [("V", 1), ("K", 3)], extra=extra)
    done30 = {abskey(k, 29) for g in tm[29 % 2] for k in g if k[1] == 1}
    for final in (False, True):
        T = Region(wp, 30, 31, final=final)
        items = T.sm_items(30, skip=done30) + T.sm_items(31)
        for e in (30, 31):
            items += T.mem_items(e)
        gaps = T.schedule(items)
        if not final:
            qleft = T.qleft
        assert not T.left, [x.key for x in T.left]
        if P["verbose"]:
            print(f"wp{wp} tail{int(final)} overflow {T.over}", file=sys.stderr)
        for e in (30, 31):
            mf, gk, pv = cut(T, gaps, e)
            segs[(e, final)] = sc.emit(mf, gk, e, f"t{wp}{int(final)}_{e}", pv, None, midbar=[("V", 1)] if e == 30 else None)

    start = [label(f"L_start_{wp}")] + stamp(0)
    start += [waitsite(dict(vm=[("K", 0), ("K", 1)])), barrier()]
    for kt in range(2):
        for s in range(6):
            start += item_insts(("krd", 0, kt, s), wp, 0)
    rest = [(kind, G, cb) for kind, G in (("dmaV", 0), ("dmaK", 2), ("dmaV", 1), ("dmaK", 3), ("dmaV", 2)) for cb in range(3)]
    todo = [item_insts(("qld", i // 6, i % 6), 0, 0) for i in range(P["qpre"], 24)] + [dma_piece(*r) for r in rest]
    for i in range(24):
        start += q_chunk(i // 6, i % 6)
        n = -(-len(todo) // (24 - i))
        for _ in range(n):
            start += todo.pop(0)
    start += phase_setup()
    head = [label(f"L_head_{wp}")] + stamp(1) + [waitsite()]
    loop_in = [salu("s_mov_b32", sCnt, 7)] + stamp(2)
    loop_lab = [raw(".p2align 6", kind="label"), label(f"L_loop_{wp}")]
    loop_end = [salu("s_mov_b32", S(82), S(86)), salu("s_mov_b32", S(87), S(92)), salu("s_mul_i32", S(91), S(92), 48), salu("s_mov_b32", S(85), S(88)),
                salu("s_sub_u32", sCnt, sCnt, 1), scmp("s_cmp_lg_u32", sCnt, 0), branch("s_cbranch_scc1", f"L_loop_{wp}")]
    body5 = segs[5]
    segs[5] = body5[:-2] + loop_end[:-1] + body5[-2:] + loop_end[-1:]
    after_loop = stamp(3) + [scmp("s_cmp_eq_u32", sPh, 1), branch("s_cbranch_scc1", f"L_final_{wp}")]
    pre, ch = epilogue(wp, False)
    epi_a = stamp(4) + pre
    qc = [q_chunk(i // 6, i % 6) for i in range(24)]
    if P["ilv"]:
        skip = 0 if P["qst"] else 4
        for i, c in enumerate(ch):
            epi_a += [waitsite()] + c
            if qleft:
                epi_a += item_insts(qleft.pop(0), wp, 0)
            if i >= skip and qc:
                epi_a += qc.pop(0)
    else:
        for c in ch:
            epi_a += c
            if qleft:
                epi_a += item_insts(qleft.pop(0), wp, 0)
    assert not qleft
    epi_a += stamp(5)
    for c in qc:
        epi_a += c
    epi_a += [salu("s_add_u32", sPh, sPh, 1)]
    if P["stamp"]:
        epi_a.append(salu("s_add_u32", S(66), S(66), 64 if P["stamp"] == 1 else 24))
    epi_a += phase_setup() + stamp(0) + [branch("s_branch", f"L_head_{wp}")]
    pre, ch = epilogue(wp, True)
    epi_b = stamp(4) + pre + [i for c in ch for i in c] + stamp(5) + [raw("s_endpgm")]
    fin_lab = [label(f"L_final_{wp}")]

    static = (start + head + segs[-1] + segs[0] + segs[1] + loop_in + loop_lab + segs[2] + segs[3] + segs[4] + segs[5] + after_loop
              + segs[(30, False)] + segs[(31, False)] + epi_a + fin_lab + segs[(30, True)] + segs[(31, True)] + epi_b)

    def dyn(ph):
        b = 32 * ph
        d = [(i, b) for i in (start if ph == 0 else [])] + [(i, b) for i in head]
        for e in (-1, 0, 1):
            d += [(i, b + e) for i in segs[e]]
        d += [(i, b) for i in loop_in]
        for it in range(7):
            for e in range(2, 6):
                d += [(i, b + e + 4 * it) for i in segs[e]]
        d += [(i, b) for i in after_loop]
        for e in (30, 31):
            d += [(i, b + e) for i in segs[(e, ph == 1)]]
        d += [(i, b) for i in (epi_b if ph else epi_a)]
        return d

    rare = []
    if P["check"]:
        for typ in (0, 1):
            mine = [(n, s) for n, s in enumerate(sc.sites) if buf(s[1], wp) == typ]
            for n, (lab, e, replay) in mine:
                rare.append(label(f"{lab}_rare"))
                rare.append(salu("s_mov_b32", sRet, n))
                rare.append(salu("s_mov_b32", sT[10], 0 if e == NG - 1 else 1))
                rare.append(salu("s_mul_i32", sT[11], sPh, HEADK))
                if 2 <= e <= 5:
                    rare.append(salu("s_sub_u32", sT[12], 7, sCnt))
                    rare.append(salu("s_mul_i32", sT[12], sT[12], 4 * GRP))
                    rare.append(salu("s_add_u32", sT[11], sT[11], sT[12]))
                rare.append(salu("s_add_u32", sT[11], sT[11], e * GRP))
                rare.append(branch("s_branch", f"L_rare_{wp}_{typ}"))
            com = rare_common(wp, typ)
            Sim().run([(i, 0) for i in com])
            rare += com
            for n, (lab, e, replay) in mine:
                rare.append(scmp("s_cmp_eq_u32", sRet, n))
                rare.append(branch("s_cbranch_scc1", f"{lab}_replay"))
            rare.append(raw("s_endpgm"))
            for n, (lab, e, replay) in mine:
                rp = [label(f"{lab}_replay")]
                for k in replay:
                    rp += item_insts(k, wp, e)
                rp.append(raw("s_nop 4"))
                Sim().run([(i, 0) for i in rp])
                rare += rp
                rare.append(branch("s_branch", f"{lab}_back"))
    return static, dyn, rare


def main():
    pro = prologue()
    text = []
    body = []
    for wp in (0, 1):
        static, dyn, rare = build_phase(wp)
        for _ in range(2):
            sim = Sim()
            sim.run([(i, 0) for i in pro] + dyn(0) + dyn(1))
        if P["verbose"]:
            nn = sum(i.nop for i in static)
            print(f"wp{wp}: static insts {len(static)} nops {nn} max vq {sim.maxvq}", file=sys.stderr)
        body.append((static, rare))
    hdr = open("standalone__gqa_softmax__near_ridge.s.ref").read().splitlines()
    for ln in hdr:
        if ln.startswith("; @launch"):
            text.append(f"; @launch grid=(256,1,1) block=(256,1,1) lds={LDS_BYTES}")
        elif ln.startswith(";"):
            text.append(ln)
        else:
            break
    text += ["; Generated by gen/genk.py " + " ".join(sys.argv[2:]),
             '.amdgcn_target "amdgcn-amd-amdhsa--gfx950"', ".text", f".globl {NAME}", ".p2align 8",
             f".type {NAME},@function", f"{NAME}:"]
    text += render(pro)
    for static, rare in body:
        text += render(static)
    for static, rare in body:
        text += render(rare)
    text += ["L_end:", "    s_endpgm", '.section .rodata,"a"', ".p2align 6", f".amdhsa_kernel {NAME}",
             "  .amdhsa_next_free_vgpr 512", "  .amdhsa_next_free_sgpr 102", "  .amdhsa_accum_offset 256",
             "  .amdhsa_group_segment_fixed_size 0", "  .amdhsa_kernarg_size 48", "  .amdhsa_user_sgpr_count 2",
             "  .amdhsa_user_sgpr_kernarg_segment_ptr 1", "  .amdhsa_system_sgpr_workgroup_id_x 1", ".end_amdhsa_kernel", ""]
    open(sys.argv[1], "w").write("\n".join(text))


main()
```

```python
import re


def regs(prefix, base, n=1):
    return [f"{prefix}{base + i}" for i in range(n)]


def rng(prefix, base, n):
    return f"{prefix}{base}" if n == 1 else f"{prefix}[{base}:{base + n - 1}]"


class Op:
    __slots__ = ("p", "b", "n")

    def __init__(self, p, b, n=1):
        self.p, self.b, self.n = p, b, n

    def __str__(self):
        return rng(self.p, self.b, self.n)

    def regs(self):
        return regs(self.p, self.b, self.n)

    def sub(self, i, n=1):
        assert i + n <= self.n
        return Op(self.p, self.b + i, n)


def V(b, n=1):
    return Op("v", b, n)


def A(b, n=1):
    return Op("a", b, n)


def S(b, n=1):
    return Op("s", b, n)


class Inst:
    __slots__ = ("text", "kind", "rd", "wr", "tag", "need", "srcc", "lgk", "vm", "note", "nop")

    def __init__(self, text, kind, rd=(), wr=(), tag=None, need=None, srcc=(), note=""):
        self.text = text
        self.kind = kind
        self.rd = set(rd)
        self.wr = set(wr)
        self.tag = tag
        self.need = need
        self.srcc = set(srcc)
        self.lgk = None
        self.vm = None
        self.note = note
        self.nop = 0


def _rr(*ops):
    out = []
    for o in ops:
        if isinstance(o, Op):
            out += o.regs()
        elif isinstance(o, str) and o in ("vcc", "m0", "exec", "scc"):
            out.append(o)
    return out


def mfma(d, a, b, c):
    cs = str(c)
    return Inst(f"v_mfma_f32_16x16x32_bf16 {d}, {a}, {b}, {cs}", "mfma", rd=_rr(a, b, c), wr=_rr(d), srcc=_rr(c))


def valu(op, d, *src, kind="valu", extra_rd=(), extra_wr=()):
    s = ", ".join(str(x) for x in (d,) + src)
    srcs = []
    for x in src:
        if isinstance(x, Op):
            srcs.append(x)
    return Inst(f"{op} {s}", kind, rd=_rr(*srcs) + list(extra_rd), wr=_rr(d) + list(extra_wr))


def trans(op, d, s):
    return valu(op, d, s, kind="trans")


def perm(op, a, b):
    return Inst(f"{op} {a}, {b}", "perm", rd=_rr(a, b), wr=_rr(a, b))


def rfl(d, s):
    return Inst(f"v_readfirstlane_b32 {d}, {s}", "rfl", rd=_rr(s), wr=_rr(d))


def salu(op, d, *src):
    s = ", ".join(str(x) for x in (d,) + src)
    k = "m0" if d == "m0" else "salu"
    return Inst(f"{op} {s}", k, rd=_rr(*src), wr=_rr(d))


def scmp(op, a, b):
    return Inst(f"{op} {a}, {b}", "salu", rd=_rr(a, b))


def dsr(op, d, addr, off=0):
    o = f" offset:{off}" if off else ""
    assert 0 <= off < 65536, off
    return Inst(f"{op} {d}, {addr}{o}", "lds", rd=_rr(addr), wr=_rr(d))


def dsw(op, addr, data, off=0):
    o = f" offset:{off}" if off else ""
    assert 0 <= off < 65536, off
    return Inst(f"{op} {addr}, {data}{o}", "ldsw", rd=_rr(addr, data))


def bload(d, voff, srd, soff, off=0, tag=None, mods=""):
    o = f" offset:{off}" if off else ""
    assert 0 <= off < 4096
    return Inst(f"buffer_load_dwordx4 {d}, {voff}, {srd}, {soff} offen{o}{mods}", "vmem", rd=_rr(voff, srd, soff), wr=_rr(d), tag=tag)


def bdma(voff, srd, soff, off=0, tag=None, mods=""):
    o = f" offset:{off}" if off else ""
    assert 0 <= off < 4096
    return Inst(f"buffer_load_dwordx4 {voff}, {srd}, {soff} offen{o}{mods} lds", "dma", rd=_rr(voff, srd, soff, "m0"), tag=tag)


def bstore(data, voff, srd, soff, off=0, tag=None, mods=""):
    o = f" offset:{off}" if off else ""
    assert 0 <= off < 4096
    n = data.n
    op = {1: "buffer_store_dword", 2: "buffer_store_dwordx2", 4: "buffer_store_dwordx4"}[n]
    return Inst(f"{op} {data}, {voff}, {srd}, {soff} offen{o}{mods}", "vst", rd=_rr(data, voff, srd, soff), tag=tag)


def waitsite(need=None):
    return Inst("", "wait", need=need or {})


def label(name):
    return Inst(f"{name}:", "label")


def branch(op, target):
    return Inst(f"{op} {target}", "branch")


def barrier():
    return Inst("s_barrier", "barrier")


def raw(text, kind="raw", rd=(), wr=()):
    return Inst(text, kind, rd=rd, wr=wr)


VALU_KINDS = ("valu", "trans", "perm", "rfl")


class Sim:
    def __init__(self):
        self.lq = []
        self.vq = []
        self.hist = []
        self.maxvq = 0
        self.nm = 0
        self.lage = {}
        self.eager = 7

    @staticmethod
    def _abs(tag, base):
        if tag is None:
            return None
        return (tag[0], tag[1] + base)

    def run(self, seq):
        for i, (ins, base) in enumerate(seq):
            if ins.kind == "wait":
                self._resolve_wait(seq, i)
                continue
            if ins.kind == "label":
                continue
            self._check_covered(ins)
            self._hazard(ins)
            if ins.kind == "mfma":
                self.nm += 1
            if ins.kind in ("lds", "ldsw"):
                self.lq.append(ins)
                self.lage[id(ins)] = self.nm
            elif ins.kind in ("vmem", "vst", "dma"):
                self.vq.append((ins, self._abs(ins.tag, base)))
                self.maxvq = max(self.maxvq, len(self.vq))
            self.hist.append(ins)
            if len(self.hist) > 40:
                self.hist.pop(0)

    def _resolve_wait(self, seq, i):
        w, base = seq[i]
        touched = set()
        j = i + 1
        while j < len(seq) and seq[j][0].kind != "wait":
            touched |= seq[j][0].rd | seq[j][0].wr
            j += 1
        need = -1
        for k, o in enumerate(self.lq):
            if o.wr & touched:
                need = k
        if w.need.get("lgkm0") and self.lq:
            need = len(self.lq) - 1
        if need >= 0:
            for k, o in enumerate(self.lq):
                if self.nm - self.lage[id(o)] >= self.eager:
                    need = max(need, k)
            cnt = min(len(self.lq) - 1 - need, 15)
            w.lgk = cnt if w.lgk is None else min(w.lgk, cnt)
        if w.lgk is not None and w.lgk < len(self.lq):
            self.lq = self.lq[len(self.lq) - w.lgk:]
        need = -1
        tags = [self._abs(t, base) for t in w.need.get("vm", ())]
        for k, (o, t) in enumerate(self.vq):
            if (o.wr & touched) or w.need.get("vm0") or (t is not None and t in tags):
                need = k
        if need >= 0:
            cnt = min(len(self.vq) - 1 - need, 63)
            w.vm = cnt if w.vm is None else min(w.vm, cnt)
        if w.vm is not None and w.vm < len(self.vq):
            self.vq = self.vq[len(self.vq) - w.vm:]

    def _check_covered(self, ins):
        t = ins.rd | ins.wr
        for o in self.lq:
            if o.wr & t:
                raise RuntimeError(f"uncovered LDS dependency: '{ins.text}' touches result of '{o.text}'")
        for o, _ in self.vq:
            if o.wr & t:
                raise RuntimeError(f"uncovered VMEM dependency: '{ins.text}' touches result of '{o.text}'")

    def _hazard(self, ins):
        need = 0
        dist = 0
        for p in reversed(self.hist):
            req = self._req(p, ins)
            if req > dist:
                need = max(need, req - dist)
            dist += 1 + p.nop
            if p.kind == "raw":
                m = re.match(r"s_nop (\d+)", p.text)
                if m:
                    dist += int(m.group(1))
            if dist > 24:
                break
        if need > ins.nop:
            ins.nop = need

    @staticmethod
    def _req(p, c):
        pk, ck = p.kind, c.kind
        r = 0
        if pk in VALU_KINDS:
            vw = {x for x in p.wr if x[0] in "va" and x != "vcc"}
            sw = {x for x in p.wr if x[0] == "s" or x == "vcc"}
            if ck == "mfma" and vw & c.rd:
                r = max(r, 2)
            if pk == "trans" and ck in ("valu", "perm", "rfl") and vw & c.rd:
                r = max(r, 1)
            if ck == "perm" and vw & c.rd:
                r = max(r, 2)
            if ck == "rfl" and vw & c.rd:
                r = max(r, 1)
            if sw and ck in VALU_KINDS and sw & c.rd:
                r = max(r, 2)
            if sw and ck in ("vmem", "vst", "dma") and sw & c.rd:
                r = max(r, 5)
        if pk == "mfma":
            if ck in VALU_KINDS and p.wr & (c.rd | c.wr):
                r = max(r, 8)
            if ck in ("lds", "ldsw", "vmem", "vst", "dma") and p.wr & (c.rd | c.wr):
                r = max(r, 8)
            if ck == "mfma":
                ab = c.rd - c.srcc
                if p.wr & ab:
                    r = max(r, 8)
                if p.wr & c.srcc and p.wr != c.srcc:
                    r = max(r, 6)
                if p.wr & c.wr and not (p.wr & c.srcc):
                    r = max(r, 6)
            if ck in VALU_KINDS and p.srcc & c.wr:
                r = max(r, 3)
        if pk == "m0" and ck == "dma":
            r = max(r, 1)
        if pk == "vst" and ck in VALU_KINDS and (p.rd & c.wr):
            r = max(r, 2)
        if pk == "vst" and ck in ("lds", "vmem", "mfma") and (p.rd & c.wr):
            r = max(r, 1)
        return r


def render(seq):
    out = []
    for ins in seq:
        if ins.kind == "wait":
            parts = []
            if ins.vm is not None:
                parts.append(f"vmcnt({ins.vm})")
            if ins.lgk is not None:
                parts.append(f"lgkmcnt({ins.lgk})")
            if parts:
                out.append("    s_waitcnt " + " ".join(parts))
            continue
        n = ins.nop
        while n > 0:
            k = min(n, 16)
            out.append(f"    s_nop {k - 1}")
            n -= k
        if ins.kind == "label":
            out.append(ins.text)
        else:
            out.append("    " + ins.text + (f"   ; {ins.note}" if ins.note else ""))
    return out
```

```python
import sys, struct, math
sys.path.insert(0, "gen")
from asmlib import *

P = dict(
    LAT=4,
    LDSLAT=8,
    THR=20,
    check=1,
    stamp=0,
    verbose=0,
    nobar=0,
    ssync=1,
    BR=11,
    ARR=12,
    qst=1,
    kst=3,
    dsp=13,
    qlsp=8,
    qpre=10,
    ilv=1,
    kvmod="nt",
    qmod="",
    omod="sc0+sc1",
    omoda="sc0+sc1",
)
for a in sys.argv[2:]:
    k, v = a.split("=")
    P[k] = type(P[k])(v) if k in P else v

NAME = "standalone__gqa_softmax__near_ridge_kernel"
ROWB = 384
GRP = 12288
HEADQ = 432 * ROWB
HEADK = 1024 * ROWB
KBASE, VBASE, RBASE = 0, 49152, 98304
RW = 16384
STGO = 6656
LDS_BYTES = RBASE + 4 * RW
NG = 32
MIDBAR = 40

sQ, sK, sV, sO = S(12, 4), S(16, 4), S(20, 4), S(24, 4)
sW, sKoff, sVoff, sCnt, sPh, sWb, sC, sTh, sRet = (S(i) for i in range(28, 37))
sRowOwn, sRowSh, sNRowOwn, sNRowSh = S(37), S(38), S(39), S(40)
sT = [S(i) for i in range(44, 60)]
sQp, sOp = S(4, 2), S(10, 2)
sWs = S(60, 4)
sStamp = S(64, 2)
sKR = S(76, 4)
sPF = S(80, 4)

vLane = V(1)
vKA = [V(2), V(3)]
vVA = [V(4 + i) for i in range(4)]
vDK, vDV = V(8), V(9)
vQO, vOO = V(10), V(11)
vL = [V(12 + t) for t in range(4)]
vLG = [[V(16 + 4 * b + t) for t in range(4)] for b in range(2)]
vT = [V(24 + i) for i in range(24)]
vCI = [V(48 + 4 * t, 4) for t in range(4)]
vS = [[V(64 + 8 * t + 4 * kt, 4) for kt in range(2)] for t in range(4)]
vP = [[V(96 + 16 * b + 4 * t, 4) for t in range(4)] for b in range(2)]
vVF = [V(128 + 4 * i, 4) for i in range(8)]
vQ = [[V(160 + 24 * t + 4 * s, 4) for s in range(6)] for t in range(4)]
aO = [[A(48 * t + 4 * dt, 4) for dt in range(12)] for t in range(4)]
aKF = [[A(192 + 24 * kt + 4 * s, 4) for s in range(6)] for kt in range(2)]
vChk = V(28)
vQoff = [V(24 + t) for t in range(4)]
vSt0, vSt1 = V(0), V(29)
vCa, vCr = V(46), V(30)
sTgt, sCm = S(93), S(94, 2)
CNT_ADDR = RBASE + 15360
ACTIVE = set()
vPFo = V(23)
sQSo, sQSm, sRg = S(84), S(89), S(90)


def vf(G, dt):
    return vVF[(dt + (4 if G == NG - 1 else 0)) % 8]


def f32bits(x):
    return struct.unpack("<I", struct.pack("<f", x))[0]


def mods(k):
    return "".join(" " + x for x in P[k].split("+") if x)


def tiles(G, wp):
    return [0, 1, 2, 3] if (G % 2) == wp else [0, 1, 2]


def buf(G, wp):
    return 0 if (G % 2) == wp else 1


def item_insts(key, wp, e):
    k = key[0]
    if k == "exp":
        _, G, t, kt, r = key
        x = vS[t][kt].sub(r)
        return [trans("v_exp_f32", x, x)]
    if k == "add":
        _, G, t, i = key
        lg = vLG[buf(G, wp)][t]
        if i == 0:
            return [valu("v_add_f32", lg, vS[t][0].sub(0), vS[t][0].sub(1))]
        j = i + 1
        return [valu("v_add_f32", lg, lg, vS[t][j // 4].sub(j % 4))]
    if k == "cvt":
        _, G, t, kt, h = key
        return [valu("v_cvt_pk_bf16_f32", vP[buf(G, wp)][t].sub(2 * kt + h), vS[t][kt].sub(2 * h), vS[t][kt].sub(2 * h + 1))]
    if k == "chkA":
        lg = vLG[buf(key[1], wp)]
        return [valu("v_max3_f32", vChk, lg[0], lg[1], lg[2])]
    if k == "chkB":
        lg = vLG[buf(key[1], wp)]
        return [valu("v_max_f32", vChk, vChk, lg[3])]
    if k == "chkC":
        return [Inst(f"v_cmp_lt_f32 vcc, {sTh}, {vChk}", "valu", rd=vChk.regs() + sTh.regs(), wr=["vcc"])]
    if k == "ladd":
        _, G, t = key
        lg = vLG[buf(G, wp)][t]
        first = (G == 0) if t < 3 else (G == wp)
        if first:
            return [valu("v_mov_b32", vL[t], lg)]
        return [valu("v_add_f32", vL[t], vL[t], lg)]
    if k == "vrd":
        _, G, dt, hf = key
        return [dsr("ds_read_b64_tr_b16", vf(G, dt).sub(2 * hf, 2), vVA[dt % 4], (G % 4) * GRP + hf * 6144 + (dt // 4) * 1024)]
    if k == "krd":
        _, G, kt, s = key
        return [dsr("ds_read_b128", aKF[kt][s], vKA[s % 2], (G % 4) * GRP + kt * 6144 + (s // 2) * 1024)]
    if k == "dmaV":
        _, G, cb = key
        return [bdma(vDV, sV, sVoff, cb * 128, tag=("V", G - e), mods=mods("kvmod"))]
    if k == "dmaK":
        _, G, cb = key
        return [bdma(vDK, sK, sKoff, cb * 128, tag=("K", G - e), mods=mods("kvmod"))]
    if k == "qadd":
        _, t = key
        if t < 3:
            return [valu("v_add_u32", vQoff[t], sT[t], vQO)]
        return [valu("v_add_u32", vQoff[t], sNRowSh, vQO)]
    if k == "qld":
        _, t, s = key
        return [bload(vQ[t][s], vQoff[t], sQ, 0, 64 * s, mods=mods("qmod"))]
    if k == "dmaQ":
        return [bdma(vPFo, sPF, sQSo, key[2] * 128, tag=("Q", -e), mods=mods("kvmod"))]
    if k == "arr":
        return [dsw("ds_inc_u32", vCa, vCa)]
    if k == "crd":
        return [dsr("ds_read_b32", vCr, vCa)]
    if k == "ccmp":
        return [Inst(f"v_cmp_gt_u32 {sCm}, {sTgt}, {vCr}", "valu", rd=vCr.regs() + sTgt.regs(), wr=sCm.regs())]
    if k == "pfa":
        return [valu("v_xor_b32", vPFo, S(87), vPFo)]
    if k == "qra":
        return [valu("v_add_u32", vQoff[key[1]], sRg, vKA[key[1]])]
    if k == "qrd":
        _, t, s = key
        return [dsr("ds_read_b128", vQ[t][s], vQoff[s % 2], t * 6144 + (s // 2) * 1024)]
    if k == "mx":
        _, t, i = key
        m, s0, s1 = vT[8 + 2 * t], vS[t][0], vS[t][1]
        m2 = vT[9 + 2 * t]
        if i == 0:
            return [valu("v_max3_f32", m, s0.sub(0), s0.sub(1), s0.sub(2))]
        if i == 1:
            return [valu("v_max3_f32", m, m, s0.sub(3), s1.sub(0))]
        if i == 2:
            return [valu("v_max3_f32", m, m, s1.sub(1), s1.sub(2))]
        if i == 3:
            return [valu("v_max_f32", m, m, s1.sub(3))]
        if i in (4, 7):
            return [valu("v_mov_b32", m2, m)]
        if i == 5:
            return [perm("v_permlane32_swap_b32", m, m2)]
        if i == 8:
            return [perm("v_permlane16_swap_b32", m, m2)]
        if i in (6, 9):
            return [valu("v_max_f32", m, m, m2)]
    if k == "ci":
        _, t, r = key
        return [valu("v_sub_f32", vCI[t].sub(r), 0, vT[8 + 2 * t])]
    if k == "sub":
        _, t, kt, r = key
        x = vS[t][kt].sub(r)
        return [valu("v_sub_f32", x, x, vT[8 + 2 * t])]
    raise KeyError(key)


def m0_for(key):
    k, G, cb = key
    if k == "dmaQ":
        return salu("s_add_u32", "m0", sQSm, cb * (1024 - 128))
    base = (KBASE if k == "dmaK" else VBASE) + (G % 4) * GRP + cb * (1024 - 128)
    return salu("s_add_u32", "m0", sWb, base)


CLS = dict(exp=("exp", 8), add=("valu", 4), cvt=("valu", 4), chkA=("valu", 4), chkB=("valu", 4), chkC=("valu", 4),
           ladd=("valu", 4), vrd=("lds", 4), krd=("lds", 4), dmaV=("dma", 8), dmaK=("dma", 8), qadd=("valu", 4),
           qld=("dma", 8), dmaQ=("dma", 8), arr=("lds", 4), crd=("lds", 4), ccmp=("valu", 4), pfa=("valu", 4), qra=("valu", 4), qrd=("lds", 4), mx=("valu", 4), ci=("valu", 4), sub=("valu", 4))


class Item:
    def __init__(self, key, hard, soft, dead, deps=()):
        self.key, self.hard, self.soft, self.dead = key, hard, max(hard, soft), dead
        self.deps = list(deps)
        self.cls, self.cost = CLS[key[0]]
        self.placed = None


class Region:
    def __init__(self, wp, e0, e1, regular=False, final=False):
        self.wp, self.e0, self.e1, self.regular, self.final = wp, e0, e1, regular, final
        self.mf = []
        self.qs, self.qe, self.pvs, self.pvu, self.pvd = {}, {}, {}, {}, {}
        self.kfl = {}
        self.ql = {}
        self.st, self.en = {}, {}
        last = NG - 1
        for e in range(e0, e1 + 1):
            self.st[e] = len(self.mf)
            G = e + 1
            if regular or G <= last:
                if e == -1:
                    order = [(t, kt) for t in range(4) for kt in range(2)]
                else:
                    order = [(t, kt) for kt in range(2) for t in tiles(G, wp)]
                for t, kt in order:
                    self.qs[(G, t, kt)] = len(self.mf)
                    for s in range(6):
                        self.kfl[(G, kt, s)] = len(self.mf)
                        self.ql[(t, s)] = len(self.mf)
                        self.mf.append((e, ("qk", G, t, kt, s)))
                    self.qe[(G, t, kt)] = len(self.mf) - 1
            else:
                self.mf.append((e, None))
            if e >= 0:
                self.pvs[e] = len(self.mf)
                for dt in range(12):
                    self.pvu[(e, dt)] = len(self.mf)
                    for t in tiles(e, wp):
                        self.mf.append((e, ("pv", e, t, dt)))
                    self.pvd[(e, dt)] = len(self.mf) - 1
            self.en[e] = len(self.mf) - 1
        self.n = len(self.mf)

    def has_sync(self, e):
        return bool(P["ssync"]) and (self.regular or 1 <= e <= NG - 2)

    def has_arr(self, e):
        return bool(P["ssync"]) and (self.regular or 0 <= e <= NG - 3)

    def chk_gap(self, e):
        if self.has_sync(e) and (self.regular or e >= 2):
            return self.st[e] + P["BR"]
        return self.pvs[e] - 1

    def sm_items(self, G, only=None, skip=None):
        wp = self.wp
        BIG = 10 ** 6
        items = {}
        pvs = self.chk_gap(G) + 1 if G in self.pvs else BIG

        def add(it):
            items[it.key] = it

        for t in tiles(G, wp):
            G2 = G + 1 if t < 3 else G + 2
            qd = {}
            for kt in range(2):
                ov = self.qs.get((G2, t, kt), BIG)
                qd[kt] = min(ov - 1, pvs - 6)
                qe = self.qe.get((G, t, kt), -1)
                for r in range(4):
                    deps = [("sub", t, kt, r)] if G == 0 and not self.regular else []
                    add(Item(("exp", G, t, kt, r), qe, qe + P["LAT"], qd[kt] - 3, deps))
                for h in range(2):
                    add(Item(("cvt", G, t, kt, h), qe, 0, qd[kt], [("exp", G, t, kt, 2 * h), ("exp", G, t, kt, 2 * h + 1)]))
            for i in range(7):
                j = i + 1
                deps = [("exp", G, t, j // 4, j % 4)]
                deps.append(("exp", G, t, 0, 0) if i == 0 else ("add", G, t, i - 1))
                add(Item(("add", G, t, i), -1, 0, qd[j // 4], deps))
            add(Item(("ladd", G, t), pvs, 0, self.en.get(G, BIG), [("add", G, t, 6)]))
        if P["check"] and (G > 0 or self.regular):
            add(Item(("chkA", G), -1, 0, pvs - 5, [("add", G, t, 6) for t in range(3)]))
            lastk = ("chkA", G)
            if len(tiles(G, wp)) == 4:
                add(Item(("chkB", G), -1, 0, pvs - 4, [lastk, ("add", G, 3, 6)]))
                lastk = ("chkB", G)
            add(Item(("chkC", G), -1, 0, pvs - 3, [lastk]))
        out = []
        for k, it in items.items():
            if only is not None and k not in only:
                continue
            if skip is not None and k in skip:
                continue
            out.append(it)
        return out

    def mem_items(self, e):
        items = []
        st, en = self.st[e], self.en[e]
        L = P["LDSLAT"]
        last = NG - 1
        st0 = st
        if self.has_sync(e):
            items.append(Item(("crd", e), st, st + 1, st + 2))
            items.append(Item(("ccmp", e), st + 3, st + P["BR"] - 3, st + P["BR"] - 2, [("crd", e)]))
            st = st + P["BR"]
        if self.has_arr(e):
            L = P["ARR"] + 1
        nrd = len(items)
        if e >= 0:
            for dt in range(12):
                if e == last and not self.regular:
                    early = max(self.st[e - 1] + MIDBAR + 1, self.pvd[(e - 1, dt + 4)]) if dt < 8 else self.pvd[(e, dt - 8)]
                else:
                    early = st if dt < 8 else self.pvd[(e, dt - 8)]
                for hf in range(2):
                    items.append(Item(("vrd", e, dt, hf), early, 0, max(early, min(self.pvu[(e, dt)] - 1 - P["LDSLAT"], en - L))))
        G = e + 2
        if self.regular or G <= last:
            for kt in range(2):
                for s in range(6):
                    early = max(self.kfl[(G - 1, kt, s)], st)
                    items.append(Item(("krd", G, kt, s), early, 0, max(early, en - L - P["kst"] * (11 - 6 * kt - s))))
        if self.has_arr(e):
            items.append(Item(("arr", e), st, en - P["ARR"] - 2, en - P["ARR"], [it.key for it in items[nrd:]]))
        dm = []
        if e >= 0 and not self.final and (self.regular or e < last):
            dm += [("dmaV", e + 3, cb) for cb in range(3)]
            if e == 0 and not self.regular:
                dm += [("dmaK", 4, cb) for cb in range(3)]
            dm += [("dmaK", e + 5, cb) for cb in range(3)]
        prev = None
        for j, k in enumerate(dm):
            sp = P["dsp"] * 6 // len(dm)
            it = Item(k, st + 1, st + 1 + sp * j, min(st + 4 + sp * j, en), [prev] if prev else [])
            items.append(it)
            prev = k
        if e == last and not self.regular and not self.final:
            pv = self.pvs[e]
            direct = [2, 3] if P["qst"] else [0, 1, 2, 3]
            if P["qst"]:
                for j in range(2):
                    items.append(Item(("qra", j), pv, 0, pv))
                for t in range(2):
                    for s in range(6):
                        items.append(Item(("qrd", t, s), pv, 0, en - 4, [("qra", s % 2)]))
            self.qleft = []
            n = 0
            for t in direct:
                items.append(Item(("qadd", t), pv, 0, pv + 1))
                for s in range(6):
                    at = pv + 2 + n * P["qlsp"]
                    if at <= en:
                        items.append(Item(("qld", t, s), pv, at, min(at + 2, en), [("qadd", t)]))
                    else:
                        self.qleft.append(("qld", t, s))
                    n += 1
        if e == -1:
            for t in range(4):
                qe = self.qe[(0, t, 1)]
                dead = self.qs.get((1, t, 0), self.qs.get((2, t, 0), en + 1)) - 1
                dead = min(dead, self.en[0])
                for i in range(10):
                    items.append(Item(("mx", t, i), qe, qe + P["LAT"], dead - 8, [("mx", t, i - 1)] if i else []))
                for r in range(4):
                    items.append(Item(("ci", t, r), qe, 0, dead - 1, [("mx", t, 9)]))
                if t in tiles(0, self.wp):
                    for kt in range(2):
                        for r in range(4):
                            items.append(Item(("sub", t, kt, r), qe, 0, dead - 6, [("mx", t, 9)]))
        return items

    def schedule(self, items):
        byk = {it.key: it for it in items}
        for i, it in enumerate(items):
            it.seq = i
            it.deps = [byk[d] for d in it.deps if d in byk]
        gaps = [[] for _ in range(self.n)]
        pending = list(items)
        self.over = 0
        lastdma = -10
        lastb128 = -10

        def ready(it, g, soft=True):
            if (it.soft if soft else it.hard) > g:
                return False
            for d in it.deps:
                if d.placed is None:
                    return False
                if d.placed == g and not (d.cls == "valu" and it.cls in ("valu", "exp")) and soft:
                    return False
            return True

        for g in range(self.n):
            cap = 8
            nl = 0

            def put(it):
                nonlocal cap, nl, lastdma, lastb128
                it.placed = g
                gaps[g].append(it)
                pending.remove(it)
                cap -= it.cost
                if it.cls == "lds":
                    nl += 1
                    if it.key[0] in ("krd", "qrd"):
                        lastb128 = g
                if it.key[0] in ("dmaK", "dmaV"):
                    lastdma = g

            def force(it):
                for d in it.deps:
                    if d.placed is None:
                        force(d)
                assert it.hard <= g, (it.key, it.hard, g)
                put(it)

            def fits(it, pair=False):
                if it.cost > cap:
                    return False
                if it.cls == "lds":
                    big = it.key[0] in ("krd", "qrd")
                    if nl >= 1 and (big or lastb128 == g or not pair):
                        return False
                    if big and lastb128 == g - 1:
                        return False
                if it.key[0] in ("dmaK", "dmaV") and lastdma >= g - 1:
                    return False
                return True

            for it in sorted([x for x in pending if x.dead <= g], key=lambda x: (x.dead, x.seq)):
                if it.placed is None:
                    force(it)
            while cap > 0:
                c = sorted([x for x in pending if ready(x, g) and fits(x)], key=lambda x: (x.dead, x.seq))
                if not c:
                    c = sorted([x for x in pending if ready(x, g) and fits(x, True)], key=lambda x: (x.dead, x.seq))
                    if not c:
                        break
                top = c[0]
                if cap == 8 and top.cost == 4:
                    lds = [x for x in c if x.cls == "lds"]
                    val = [x for x in c if x.cls == "valu"]
                    big = [x for x in c if x.cost == 8]
                    if top.cls == "lds":
                        haspartner = bool(val)
                    else:
                        haspartner = bool(lds) or len(val) > 1 or any(top in x.deps and x.cls == "valu" and all(d is top or d.placed is not None for d in x.deps) for x in pending)
                    if not haspartner and big and top.dead > g + 3:
                        put(big[0])
                        continue
                    put(top)
                    if top.cls == "valu" and lds and fits(lds[0]):
                        put(lds[0])
                    continue
                put(top)
            if cap < 0 and self.mf[g][1] is not None:
                self.over += -cap
        self.left = pending
        self.gaps = gaps
        return gaps


def mf_inst(key, wp, regular=False):
    if key[0] == "qk":
        _, G, t, kt, s = key
        d = vS[t][kt]
        c = d if s else (0 if (G == 0 and not regular) else vCI[t])
        return mfma(d, aKF[kt][s], vQ[t][s], c)
    _, G, t, dt = key
    first = (G == 0) if t < 3 else (G == wp)
    d = aO[t][dt]
    return mfma(d, vf(G, dt), vP[buf(G, wp)][t], 0 if first else d)


def relkey(key, e):
    if key[0] in ("qadd", "qld", "mx", "ci", "sub", "qra", "qrd"):
        return key
    return (key[0], key[1] - e) + key[2:]


def abskey(key, e):
    return (key[0], key[1] + e) + key[2:]


def steady_template(wp):
    R = Region(wp, 2, 21, regular=True)
    items = []
    for G in range(3, 23):
        items += R.sm_items(G)
    for e in range(2, 22):
        items += R.mem_items(e)
    gaps = R.schedule(items)
    tm = {}
    for e in range(8, 18):
        cur = [[relkey(it.key, e) for it in gaps[g]] for g in range(R.st[e], R.en[e] + 1)]
        if e % 2 in tm:
            assert tm[e % 2] == cur, f"template not periodic at step {e}"
        tm[e % 2] = cur
    if P["verbose"]:
        for par in (0, 1):
            use = sum(CLS[k[0]][1] for g in tm[par] for k in g)
            ov = sum(max(0, sum(CLS[k[0]][1] for k in g) - 8) for g in tm[par])
            print(f"wp{wp} step parity {par}: fill {use}/{8 * len(tm[par])} overflow {ov}", file=sys.stderr)
            if P["verbose"] > 1:
                for i, g in enumerate(tm[par]):
                    print(i, g, file=sys.stderr)
    return tm


class StepCode:
    def __init__(self, wp):
        self.wp = wp
        self.sites = []

    def emit(self, mf, gapkeys, e, tagname, chk, sync, end_need, arr_need=None, extra=(), midbar=None):
        wp = self.wp
        G = []
        if not P["check"]:
            chk = None
        for i, mk in enumerate(mf):
            g = dict(mf=mf_inst(mk, wp) if mk else None, wait=waitsite(), salu=[], mem=[], val=[], keys=gapkeys[i], fix=0)
            g["wait"].note = (tagname, i)
            if (tagname, i) in ACTIVE:
                g["fix"] += 1
            if i in (chk, sync):
                g["fix"] += 1
            for k in gapkeys[i]:
                cls = CLS[k[0]][0]
                (g["mem"] if cls in ("lds", "dma") else g["val"]).append((k, item_insts(k, wp, e)))
                if k[0] == "arr":
                    g["wait"].need = dict(vm=arr_need)
            G.append(g)

        def room(g):
            used = sum(CLS[k[0]][1] for k in g["keys"])
            return 1 + max(0, 8 - used) // 4 - g["fix"] - len(g["salu"])

        def place(lo, hi, ins, latest=False):
            hi = min(hi, len(G) - 1)
            r = list(range(lo, hi + 1))
            if latest:
                r.reverse()
            c = [j for j in r if room(G[j]) >= len(ins)] or [r[0]]
            G[c[0]]["salu"] += ins
            return c[0]

        DM = ("dmaK", "dmaV", "dmaQ")
        late = []
        if sync is not None:
            cg = max(i for i, g in enumerate(G[:sync]) if any(k[0] in ("ccmp", "chkC") for k in g["keys"]))
            assert cg + 1 <= sync - 1
            if chk == sync:
                place(cg + 1, sync - 1, [Inst(f"s_or_b64 vcc, vcc, {sCm}", "salu", rd=sCm.regs() + ["vcc"], wr=["vcc"])], latest=True)
            late.append((sync + 1, len(G) - 1, [salu("s_add_u32", sTgt, sTgt, 4)]))
        prevd = -1
        for i, g in enumerate(G):
            newmem = []
            for k, ins in g["mem"]:
                if k[0] in DM:
                    if prevd + 1 <= i - 1:
                        place(prevd + 1, i - 1, [m0_for(k)], latest=True)
                    else:
                        newmem.append((None, [m0_for(k)]))
                    prevd = i
                    newmem.append((k, ins))
                    if k[2] == 2 and k[0] != "dmaQ":
                        so = sKoff if k[0] == "dmaK" else sVoff
                        upd = salu("s_add_u32", so, so, GRP)
                        nxt = [j for j in range(i + 1, len(G)) if any(kk and kk[0] == k[0] for kk, _ in G[j]["mem"])]
                        lim = nxt[0] if nxt else len(G) - 1
                        late.append((i + 1, lim, [upd]))
                else:
                    newmem.append((k, ins))
            g["mem"] = newmem
        for lo, hi, ins in late:
            place(lo, hi, ins)
        for lo, hi, groups in extra:
            for ins in groups:
                lo = place(lo, hi, ins)
        self.over = getattr(self, "over", 0) + sum(max(0, -room(g)) for g in G if g["mf"] is not None and 2 <= e <= 5)
        out = []
        for i, g in enumerate(G):
            if g["mf"] is not None:
                out.append(g["mf"])
            out.append(g["wait"])
            if g["mf"] is not None and i in (chk, sync):
                out += self.site(e, tagname, G[:i], i == chk, i == sync)
            out += g["salu"]
            for _, ins in g["mem"]:
                out += ins
            for _, ins in g["val"]:
                out += ins
            if g["mf"] is None:
                if i == chk:
                    out.append(raw("s_nop 4"))
                    out += self.site(e, tagname, G[:i + 1], True, False)
                out.append(waitsite(dict(vm=[("Q", -e + 4 * j) for j in range(7)])))
            if midbar is not None and i == MIDBAR:
                out.append(waitsite(dict(vm=midbar)))
                out.append(barrier())
        if end_need is not None:
            out.append(waitsite(dict(lgkm0=True, vm=end_need)))
            out.append(barrier() if not (P["nobar"] and 2 <= e <= 5) else raw("s_nop 0"))
        return out

    def site(self, e, tagname, done_gaps, chk, sync):
        replay = [k for g in done_gaps for k in g["keys"] if k[0] in ("exp", "add", "cvt") and k[1] == e + 1]
        lab = f"L_{tagname}{'c' if chk else ''}{'s' if sync else ''}"
        self.sites.append((lab, e, replay, chk, sync))
        if sync and not chk:
            return [raw(f"s_cmp_lg_u64 {sCm}, 0", kind="salu", rd=sCm.regs()), branch("s_cbranch_scc1", f"{lab}_rare"), label(f"{lab}_back")]
        return [branch("s_cbranch_vccnz", f"{lab}_rare"), label(f"{lab}_back")]


def stamp(idx):
    if not P["stamp"]:
        return []
    if P["stamp"] == 2:
        o = [raw("s_memrealtime s[68:69]"), raw("s_waitcnt lgkmcnt(0)"), salu("s_sub_u32", S(64), S(68), S(72)),
             valu("v_mov_b32", vSt0, S(64)), valu("v_mov_b32", vSt1, S(66)),
             raw("s_mov_b64 exec, 1"),
             Inst(f"buffer_atomic_umax {vSt0}, {vSt1}, {sWs}, 0 offen offset:{4 * idx}", "vst", rd=vSt0.regs() + vSt1.regs())]
        if idx == 5:
            o += [raw("s_nop 1"), valu("v_mov_b32", vSt0, S(68)), valu("v_mov_b32", vSt1, 0),
                  Inst(f"buffer_atomic_umax {vSt0}, {vSt1}, {sWs}, 0 offen offset:48", "vst", rd=vSt0.regs() + vSt1.regs()),
                  raw("s_nop 1"), salu("s_not_b32", S(64), S(72)), valu("v_mov_b32", vSt0, S(64)),
                  Inst(f"buffer_atomic_umax {vSt0}, {vSt1}, {sWs}, 0 offen offset:52", "vst", rd=vSt0.regs() + vSt1.regs())]
        o += [raw("s_mov_b64 exec, -1"), raw("s_nop 4")]
        return o
    return [raw(f"s_memtime {sStamp}"), raw("s_memrealtime s[68:69]"), raw("s_waitcnt lgkmcnt(0)"),
            valu("v_mov_b32", vSt0, S(64)), valu("v_mov_b32", vSt1, S(66)),
            bstore(vSt0, vSt1, sWs, 0, 4 * idx), raw("s_nop 1"),
            valu("v_mov_b32", vSt0, S(68)), bstore(vSt0, vSt1, sWs, 0, 4 * idx + 32), raw("s_nop 1")]


def q_chunk(t, s):
    out = [waitsite()]
    q = vQ[t][s]
    tb = 152
    for r in range(4):
        out.append(valu("v_lshlrev_b32", V(tb + 2 * r), 16, q.sub(r)))
        out.append(valu("v_and_b32", V(tb + 2 * r + 1), "0xffff0000", q.sub(r)))
    for r in range(4):
        pr = V(tb + 2 * r, 2)
        out.append(Inst(f"v_pk_mul_f32 {pr}, {pr}, {S(42, 2)}", "valu", rd=pr.regs() + ["s42", "s43"], wr=pr.regs()))
    for r in range(4):
        out.append(valu("v_cvt_pk_bf16_f32", q.sub(r), V(tb + 2 * r), V(tb + 2 * r + 1)))
    return out


def dma_piece(kind, G, cb, e=0):
    k = (kind, G, cb)
    r = [m0_for(k)] + item_insts(k, 0, e)
    if cb == 2:
        so = sKoff if kind == "dmaK" else sVoff
        r.append(salu("s_add_u32", so, so, GRP))
    return r


def lane_reduce(x, tmp, op):
    return [valu("v_mov_b32", tmp, x), perm("v_permlane32_swap_b32", x, tmp), valu(op, x, x, tmp),
            valu("v_mov_b32", tmp, x), perm("v_permlane16_swap_b32", x, tmp), valu(op, x, x, tmp)]


def epilogue(wp, final):
    out = [waitsite()]
    for t in (3, 0, 1, 2):
        out += lane_reduce(vL[t], vT[8 + t], "v_add_f32")
        if t == 3:
            send = range(6 * (1 - wp), 6 * (1 - wp) + 6)
            xa, xb = vT[12], vT[13]
            out.append(salu("s_mov_b32", sT[4], sRg))
            out.append(salu("s_xor_b32", sT[5], sRg, RW))
            out.append(valu("v_lshl_add_u32", xa, vLane, 4, sT[4]))
            out.append(valu("v_lshl_add_u32", xb, vLane, 4, sT[5]))
            ml = V(vT[14].b, 2)
            out.append(valu("v_mov_b32", vT[14], vCI[3].sub(0)))
            out.append(valu("v_mov_b32", vT[15], vL[3]))
            out.append(valu("v_lshl_add_u32", vT[16], vLane, 3, sT[4]))
            out.append(valu("v_lshl_add_u32", vT[17], vLane, 3, sT[5]))
            for j, dt in enumerate(send):
                out.append(dsw("ds_write_b128", xa, aO[3][dt], 1024 * j))
            out.append(dsw("ds_write_b64", vT[16], ml, 6144))
    sw, sr, go = vT[4], vT[6], vT[7]
    out.append(salu("s_add_u32", sT[4], sRg, STGO))
    out.append(valu("v_and_b32", vT[8], 15, vLane))
    out.append(valu("v_lshlrev_b32", vT[8], 4, vT[8]))
    out.append(valu("v_add3_u32", sw, vOO, vT[8], sT[4]))
    out.append(valu("v_lshrrev_b32", vT[8], 3, vLane))
    out.append(valu("v_and_b32", vT[9], 7, vLane))
    out.append(valu("v_lshlrev_b32", vT[9], 4, vT[9]))
    out.append(valu("v_mul_u32_u24", vT[10], 400, vT[8]))
    out.append(valu("v_add3_u32", sr, vT[10], vT[9], sT[4]))
    out.append(valu("v_mul_u32_u24", vT[10], ROWB, vT[8]))
    out.append(valu("v_add3_u32", go, vT[10], vT[9], sRowOwn))
    out.append(waitsite(dict(lgkm0=True, vm=[] if final else [("K", 32), ("K", 33)])))
    out.append(barrier())
    X = [V(128 + 4 * j, 4) for j in range(6)]
    oml = V(vT[18].b, 2)
    out.append(dsr("ds_read_b64", oml, vT[17], 6144))
    for j in range(6):
        out.append(dsr("ds_read_b128", X[j], xb, 1024 * j))
    if not final:
        for cb in range(3):
            out += dma_piece("dmaV", 34, cb)
        for kt in range(2):
            for s in range(6):
                out += item_insts(("krd", 0, kt, s), wp, 0)
    pre = out

    def pack(src, k):
        d = V(96 + 4 * (k % 2), 4)
        o = [valu("v_cvt_pk_bf16_f32", d.sub(i), src[2 * i], src[2 * i + 1]) for i in range(4)]
        sw_ = [perm("v_permlane16_swap_b32", d.sub(0), d.sub(2)), perm("v_permlane16_swap_b32", d.sub(1), d.sub(3))]
        return o, sw_, d

    chunks = []
    k = 0
    tail = []
    RB = [V(104 + 4 * j, 4) for j in range(6)]

    def readback():
        return [dsr("ds_read_b128", RB[j], sr, (j // 3) * 3200 + (j % 3) * 128) for j in range(6)]

    def store(j):
        o = [waitsite(), bstore(RB[j], go, sO, 0, (j // 3) * 3072 + (j % 3) * 128, mods=mods("omod" if final else "omoda"))]
        if j == 5:
            o.append(valu("v_add_u32", go, 6144, go))
        return o

    for t in range(3):
        inv = V(vT[20].b, 2)
        for p in range(6):
            c = []
            if p == 0:
                c.append(trans("v_rcp_f32", vT[20], vL[t]))
            base = 64 + 8 * (k % 4)
            src = [V(base + i) for i in range(8)]
            for i in range(8):
                c.append(valu("v_accvgpr_read_b32", src[i], aO[t][2 * p + i // 4].sub(i % 4)))
            if p == 0:
                c.append(valu("v_mov_b32", vT[21], vT[20]))
            c += tail
            if p == 0 and t > 0:
                c += readback()
            for i in range(4):
                pr = V(base + 2 * i, 2)
                c.append(Inst(f"v_pk_mul_f32 {pr}, {pr}, {inv}", "valu", rd=pr.regs() + inv.regs(), wr=pr.regs()))
            o, sw_, d = pack(src, k)
            c += o
            tail = sw_ + [dsw("ds_write_b128", sw, d, 64 * p)]
            if t > 0:
                c += store(p)
            chunks.append(c)
            k += 1
    c = [waitsite()]
    nm_own, nm_oth, l_oth = vCI[3].sub(0), vT[18], vT[19]
    M = vT[8]
    fo, fx = vT[9], vT[10]
    c.append(valu("v_min_f32", M, nm_own, nm_oth))
    c.append(valu("v_sub_f32", fo, M, nm_own))
    c.append(valu("v_sub_f32", fx, M, nm_oth))
    c += tail + readback()
    tail = []
    c.append(trans("v_exp_f32", fo, fo))
    c.append(trans("v_exp_f32", fx, fx))
    c.append(valu("v_add_u32", vT[5], sRowSh, vOO))
    c.append(valu("v_mul_f32", vT[11], vL[3], fo))
    c.append(valu("v_fma_f32", vT[11], l_oth, fx, vT[11]))
    c.append(trans("v_rcp_f32", vT[11], vT[11]))
    c.append(valu("v_mul_f32", fo, fo, vT[11]))
    c.append(valu("v_mul_f32", fx, fx, vT[11]))
    for p3 in range(3):
        p = 3 * wp + p3
        base = 64 + 8 * (k % 4)
        src = [V(base + i) for i in range(8)]
        for i in range(8):
            c.append(valu("v_accvgpr_read_b32", src[i], aO[3][2 * p + i // 4].sub(i % 4)))
        c += tail
        for i in range(8):
            c.append(valu("v_mul_f32", src[i], src[i], fo))
        c += store(2 * p3)
        for i in range(8):
            c.append(valu("v_fma_f32", src[i], X[2 * p3 + i // 4].sub(i % 4), fx, src[i]))
        o, sw_, d = pack(src, k)
        c += o
        c += store(2 * p3 + 1)
        tail = sw_ + [bstore(d, vT[5], sO, 0, 64 * p, mods=mods("omod" if final else "omoda"))]
        chunks.append(c)
        c = []
        k += 1
    chunks.append(tail)
    return pre, chunks


def phase_setup():
    o = []
    o.append(salu("s_add_u32", sT[4], sT[8], sPh))
    o.append(salu("s_mul_i32", sT[5], sT[4], HEADQ))
    o.append(salu("s_add_u32", S(24), S(10), sT[5]))
    o.append(salu("s_addc_u32", S(25), S(11), 0))
    o.append(salu("s_mov_b32", sRowOwn, sNRowOwn))
    o.append(salu("s_mov_b32", sRowSh, sNRowSh))
    o += next_q_setup(1)
    o.append(salu("s_mov_b32", S(80), S(12)))
    o.append(salu("s_mov_b32", S(81), S(13)))
    o.append(salu("s_mov_b32", S(82), 0))
    o.append(salu("s_mov_b32", S(85), 2 * HEADK))
    o.append(salu("s_mov_b32", S(87), 0))
    o.append(salu("s_mov_b32", S(91), 0))
    o.append(salu("s_mov_b32", sQSo, sNRowOwn))
    o.append(salu("s_mov_b32", sQSm, sRg))
    o.append(salu("s_lshr_b32", S(96), S(14), 6))
    o.append(salu("s_sub_u32", S(97), 1, sPh))
    return o


def next_q_setup(d):
    o = []
    o.append(salu("s_add_u32", sT[4], sPh, d))
    o.append(salu("s_xor_b32", sT[5], sT[4], sT[9]))
    o.append(salu("s_and_b32", sT[5], sT[5], 1))
    o.append(salu("s_mul_i32", sT[5], sT[5], 224 * ROWB))
    o.append(salu("s_mov_b32", sT[7], sT[5]))
    o.append(salu("s_mul_i32", sT[6], sW, 48 * ROWB))
    o.append(salu("s_add_u32", sNRowOwn, sT[5], sT[6]))
    o.append(salu("s_lshr_b32", sT[6], sW, 1))
    o.append(salu("s_mul_i32", sT[6], sT[6], 16 * ROWB))
    o.append(salu("s_add_u32", sT[6], sT[6], 192 * ROWB))
    o.append(salu("s_add_u32", sNRowSh, sT[5], sT[6]))
    o.append(salu("s_mov_b32", sT[0], sNRowOwn))
    o.append(salu("s_add_u32", sT[1], sNRowOwn, 6144))
    o.append(salu("s_add_u32", sT[2], sNRowOwn, 12288))
    o.append(scmp("s_cmp_lt_u32", sT[4], 2))
    o.append(salu("s_cselect_b32", S(14), HEADQ, 0))
    o.append(salu("s_min_u32", sT[4], sT[4], 1))
    o.append(salu("s_add_u32", sT[4], sT[4], sT[8]))
    o.append(salu("s_mul_i32", sT[5], sT[4], HEADQ))
    o.append(salu("s_add_u32", S(12), S(4), sT[5]))
    o.append(salu("s_addc_u32", S(13), S(5), 0))
    return o


def prologue():
    o = []
    o.append(scmp("s_cmp_ge_u32", S(2), 256))
    o.append(branch("s_cbranch_scc1", "L_end"))
    o.append(raw("s_load_dwordx4 s[4:7], s[0:1], 0"))
    o.append(raw("s_load_dwordx4 s[8:11], s[0:1], 16"))
    if P["stamp"]:
        o.append(raw(f"s_load_dwordx2 s[60:61], s[0:1], {40 if P['stamp'] == 1 else 32}"))
        o.append(raw("s_memtime s[70:71]"))
        o.append(raw("s_memrealtime s[72:73]"))
    o.append(valu("v_lshrrev_b32", vT[0], 6, V(0)))
    o.append(valu("v_and_b32", vLane, 63, V(0)))
    o.append(rfl(sW, vT[0]))
    o.append(salu("s_lshr_b32", sT[4], S(2), 4))
    o.append(salu("s_lshl_b32", sT[4], sT[4], 3))
    o.append(salu("s_and_b32", sT[5], S(2), 7))
    o.append(salu("s_add_u32", sT[4], sT[4], sT[5]))
    o.append(salu("s_lshl_b32", sT[8], sT[4], 1))
    o.append(salu("s_lshr_b32", sT[9], S(2), 3))
    o.append(salu("s_and_b32", sT[9], sT[9], 1))
    o.append(salu("s_mul_i32", sT[7], sT[4], 2 * HEADK))
    o.append(salu("s_mul_i32", sWb, sW, 3072))
    o.append(salu("s_mov_b32", sPh, 0))
    o.append(salu("s_mov_b32", sKoff, 0))
    o.append(salu("s_mov_b32", sVoff, 0))
    c = f32bits(math.log2(math.e) / math.sqrt(192.0))
    o.append(salu("s_mov_b32", S(42), hex(c)))
    o.append(salu("s_mov_b32", S(43), hex(c)))
    o.append(salu("s_mov_b32", sTh, hex(f32bits(2.0 ** P["THR"]))))
    l = vLane
    t0, t1, t2, t3 = vT[0], vT[1], vT[2], vT[3]
    o.append(valu("v_lshrrev_b32", t0, 3, l))
    o.append(salu("s_lshl_b32", sT[5], sW, 3))
    o.append(valu("v_add_u32", t0, sT[5], t0))
    o.append(valu("v_mul_u32_u24", t1, ROWB, t0))
    o.append(valu("v_and_b32", t2, 7, l))
    o.append(valu("v_bfe_u32", t3, t0, 1, 3))
    o.append(valu("v_xor_b32", t3, t3, t2))
    o.append(valu("v_lshl_add_u32", vDK, t3, 4, t1))
    o.append(valu("v_bfe_u32", t3, t0, 1, 2))
    o.append(valu("v_lshlrev_b32", t3, 1, t3))
    o.append(valu("v_xor_b32", t3, t3, t2))
    o.append(valu("v_lshl_add_u32", vDV, t3, 4, t1))
    o.append(raw("s_waitcnt lgkmcnt(0)"))
    o.append(salu("s_add_u32", S(16), S(6), sT[7]))
    o.append(salu("s_addc_u32", S(17), S(7), 0))
    o.append(salu("s_mov_b32", S(18), 2 * HEADK))
    o.append(salu("s_mov_b32", S(19), "0x20000"))
    o.append(salu("s_add_u32", S(20), S(8), sT[7]))
    o.append(salu("s_addc_u32", S(21), S(9), 0))
    o.append(salu("s_mov_b32", S(22), 2 * HEADK))
    o.append(salu("s_mov_b32", S(23), "0x20000"))
    o.append(salu("s_mov_b32", S(15), "0x20000"))
    o.append(salu("s_mov_b32", S(26), HEADQ))
    o.append(salu("s_mov_b32", S(27), "0x20000"))
    if P["stamp"]:
        o.append(salu("s_mov_b32", S(62), "0x100000" if P["stamp"] == 1 else 256))
        o.append(salu("s_mov_b32", S(63), "0x20000"))
        o.append(salu("s_lshl_b32", S(66), S(2), 2))
        o.append(salu("s_add_u32", S(66), S(66), sW))
        o.append(salu("s_lshl_b32", S(66), S(66), 8))
        if P["stamp"] == 2:
            o.append(salu("s_mov_b32", S(66), 0))

    for i in range(4):
        o.append(salu("s_mov_b32", S(76 + i), S(16 + i)))
    o.append(salu("s_mov_b32", S(83), "0x20000"))
    o.append(salu("s_lshl_b32", sRg, sW, 14))
    o.append(salu("s_add_u32", sRg, sRg, RBASE))

    def dma_group(kind, G):
        return [i for cb in range(3) for i in dma_piece(kind, G, cb)]

    o += dma_group("dmaK", 0)
    o += dma_group("dmaK", 1)
    o.append(valu("v_and_b32", t0, 15, l))
    o.append(valu("v_lshrrev_b32", t1, 4, l))
    o.append(valu("v_mul_u32_u24", t2, ROWB, t0))
    o.append(valu("v_lshl_add_u32", vQO, t1, 4, t2))
    o += next_q_setup(0)
    for t in range(4):
        o += item_insts(("qadd", t), 0, 0)
    for i in range(P["qpre"]):
        o += item_insts(("qld", i // 6, i % 6), 0, 0)
    t0, t1, t2, t3 = vT[4], vT[5], vT[6], vT[7]
    o.append(valu("v_and_b32", t0, 15, l))
    o.append(valu("v_lshrrev_b32", t1, 4, l))
    o.append(valu("v_mul_u32_u24", t2, ROWB, t0))
    o.append(valu("v_and_b32", t3, 1, t1))
    o.append(valu("v_lshl_add_u32", t2, t3, 5, t2))
    o.append(valu("v_lshrrev_b32", t3, 1, t1))
    o.append(valu("v_lshl_add_u32", vOO, t3, 4, t2))
    o.append(valu("v_lshrrev_b32", t2, 3, l))
    o.append(valu("v_mul_u32_u24", t2, ROWB, t2))
    o.append(valu("v_and_b32", t3, 7, l))
    o.append(valu("v_xor_b32", t3, t3, t1))
    o.append(valu("v_lshl_add_u32", vPFo, t3, 4, t2))
    o.append(valu("v_lshrrev_b32", t2, 3, t0))
    o.append(valu("v_mul_u32_u24", t2, 3072, t2))
    o.append(valu("v_and_b32", t3, 7, t0))
    o.append(valu("v_lshl_add_u32", t2, t3, 7, t2))
    o.append(valu("v_lshrrev_b32", t3, 1, t0))
    o.append(valu("v_xor_b32", t3, t3, t1))
    o.append(valu("v_lshl_add_u32", vKA[0], t3, 4, t2))
    if KBASE:
        o.append(valu("v_add_u32", vKA[0], KBASE, vKA[0]))
    o.append(valu("v_xor_b32", vKA[1], 64, vKA[0]))
    o.append(valu("v_lshrrev_b32", t2, 2, t0))
    o.append(valu("v_and_b32", t3, 1, t1))
    o.append(valu("v_lshl_add_u32", t2, t3, 2, t2))
    o.append(valu("v_lshrrev_b32", t3, 1, t1))
    o.append(valu("v_mul_u32_u24", t3, 3072, t3))
    o.append(valu("v_lshl_add_u32", t3, t2, 7, t3))
    o.append(valu("v_and_b32", t0, 3, l))
    o.append(valu("v_lshl_add_u32", t3, t0, 3, t3))
    o.append(valu("v_add_u32", t3, VBASE, t3))
    o.append(valu("v_lshrrev_b32", t2, 1, t2))
    o.append(valu("v_lshl_add_u32", vVA[0], t2, 5, t3))
    for j in range(1, 4):
        o.append(valu("v_xor_b32", vVA[j], 32 * j, vVA[0]))
    if P["stamp"] == 1:
        o += [valu("v_mov_b32", vSt0, S(70)), valu("v_mov_b32", vSt1, S(66)), bstore(vSt0, vSt1, sWs, 0, 4 * 6), raw("s_nop 1"),
              valu("v_mov_b32", vSt0, S(72)), bstore(vSt0, vSt1, sWs, 0, 4 * 6 + 32), raw("s_nop 1")]
    o += cnt_addr()
    o.append(valu("v_mov_b32", vCr, 0))
    o.append(dsw("ds_write_b32", vCa, vCr))
    o.append(salu("s_mov_b32", sTgt, 4))
    o.append(salu("s_and_b32", sT[4], sW, 1))
    o.append(scmp("s_cmp_eq_u32", sT[4], 1))
    o.append(branch("s_cbranch_scc1", "L_start_1"))
    return o


def cnt_addr():
    return [salu("s_mov_b32", sT[12], CNT_ADDR), valu("v_lshl_add_u32", vCa, vLane, 2, sT[12])]


def rare_common(wp, typ):
    Gp = wp if typ == 0 else 1 - wp
    o = [label(f"L_rare_{wp}_{typ}"), raw("s_nop 15"), raw("s_nop 15")]
    kt_ = [V(vT[0].b + 4 * s, 4) for s in range(6)]
    ka = V(0)

    def recompute(G, soff, cfun):
        r = []
        for kt in range(2):
            r.append(valu("v_add_u32", ka, 6144 * kt, vQO))
            for s in range(6):
                r.append(bload(kt_[s], ka, sKR, soff, 64 * s))
            r.append(raw("s_waitcnt vmcnt(0)"))
            r.append(waitsite(dict(vm0=True)))
            for t in tiles(G, wp):
                for s in range(6):
                    r.append(mfma(vS[t][kt], kt_[s], vQ[t][s], vS[t][kt] if s else cfun(t)))
            r.append(raw("s_nop 15"))
        return r

    o += recompute(Gp, sT[11], lambda t: 0)
    m, m2, f = vT[0], vT[1], vT[2]
    for t in tiles(Gp, wp):
        s0, s1 = vS[t]
        o.append(valu("v_max3_f32", m, s0.sub(0), s0.sub(1), s0.sub(2)))
        o.append(valu("v_max3_f32", m, m, s0.sub(3), s1.sub(0)))
        o.append(valu("v_max3_f32", m, m, s1.sub(1), s1.sub(2)))
        o.append(valu("v_max_f32", m, m, s1.sub(3)))
        o += lane_reduce(m, m2, "v_max_f32")
        o.append(valu("v_sub_f32", m2, 0, vCI[t].sub(0)))
        o.append(valu("v_max_f32", m, m, m2))
        o.append(valu("v_sub_f32", f, m2, m))
        o.append(trans("v_exp_f32", f, f))
        for r in range(4):
            o.append(valu("v_sub_f32", vCI[t].sub(r), 0, m))
        o.append(valu("v_mul_f32", vL[t], vL[t], f))
        for dt in range(12):
            for r in range(4):
                o.append(valu("v_accvgpr_read_b32", vT[4 + r], aO[t][dt].sub(r)))
            for r in range(4):
                o.append(valu("v_mul_f32", vT[4 + r], vT[4 + r], f))
            for r in range(4):
                o.append(valu("v_accvgpr_write_b32", aO[t][dt].sub(r), vT[4 + r]))
        for kt in range(2):
            for r in range(4):
                x = vS[t][kt].sub(r)
                o.append(valu("v_sub_f32", x, x, m))
                o += item_insts(("exp", Gp, t, kt, r), wp, 0)
        for i in range(7):
            o += item_insts(("add", Gp, t, i), wp, 0)
        for kt in range(2):
            for h in range(2):
                o += item_insts(("cvt", Gp, t, kt, h), wp, 0)
    o.append(scmp("s_cmp_eq_u32", sT[10], 0))
    o.append(branch("s_cbranch_scc1", f"L_rare_{wp}_{typ}_ret"))
    o.append(salu("s_add_u32", sT[11], sT[11], GRP))
    o += recompute(Gp + 1, sT[11], lambda t: vCI[t])
    o.append(label(f"L_rare_{wp}_{typ}_ret"))
    o += cnt_addr()
    return o


def build_phase(wp):
    tm = steady_template(wp)
    sc = StepCode(wp)
    segs = {}
    H = Region(wp, -1, 1)
    done2 = {abskey(k, 1) for g in tm[1 % 2] for k in g if k[0] in ("exp", "add", "cvt", "chkA", "chkB", "chkC") and k[1] == 1}
    items = H.sm_items(0) + H.sm_items(1)
    g2 = H.sm_items(2, only=done2)
    for it in g2:
        it.dead = min(it.dead, H.n - 1)
    items += g2
    for e in (-1, 0, 1):
        items += H.mem_items(e)
    gaps = H.schedule(items)
    assert not H.left, [x.key for x in H.left]
    if P["verbose"]:
        print(f"wp{wp} head overflow {H.over}", file=sys.stderr)

    NEED = [("V", 1), ("K", 3)]

    def do_emit(R, gk, e, tag, **kw):
        mf = [R.mf[i][1] for i in range(R.st[e], R.en[e] + 1)]
        chk = R.chk_gap(e) - R.st[e] if e > 0 else None
        sync = P["BR"] if R.has_sync(e) else None
        end = None if (R.has_arr(e) or e >= NG - 2) else NEED
        return sc.emit(mf, gk, e, tag, chk, sync, end, arr_need=NEED, **kw)

    def cut(R, gaps, e):
        return [[it.key for it in gaps[i]] for i in range(R.st[e], R.en[e] + 1)]

    for e in (-1, 0, 1):
        segs[e] = do_emit(H, cut(H, gaps, e), e, f"h{wp}_{e + 1}")
    R = Region(wp, 2, 5, regular=True)
    gks = {e: [[abskey(k, e) for k in g] for g in tm[e % 2]] for e in range(2, 6)}
    qend = None
    if P["qst"]:
        free = [(e, i) for e in range(2, 6) for i, g in enumerate(gks[e])
                if not g and 0 < i < 82 and (e, i) > (2, 30) and not any(k[0].startswith("dma") for k in gks[e][i - 1] + gks[e][i + 1])]
        pick = [free[0], free[len(free) // 3], free[2 * len(free) // 3]]
        for cb, (e, i) in enumerate(pick):
            gks[e][i].append(("dmaQ", 0, cb))
        qend = pick[-1]
        e, i = [(e, i) for e in range(2, 6) for i, g in enumerate(gks[e]) if (e, i) > qend and sum(CLS[k[0]][1] for k in g) <= 4][0]
        gks[e][i].append(("pfa",))
    for e in range(2, 6):
        gk = gks[e]
        extra = []
        lastdma = max(i for i, g in enumerate(gk) for k in g if k[0] in ("dmaK", "dmaV"))
        if e == 2:
            extra.append((0, 29, [[salu("s_and_b32", sT[13], sCnt, 4)], [salu("s_lshl_b32", sT[13], sT[13], 4)],
                                  [salu("s_xor_b32", S(87), sT[13], 64)],
                                  [salu("s_mul_i32", S(91), S(87), 48)], [salu("s_mul_i32", S(82), S(87), S(96))],
                                  [salu("s_add_u32", sT[13], sCnt, S(97))],
                                  [salu("s_min_u32", sT[13], sT[13], 1)], [salu("s_mul_i32", S(85), sT[13], 2 * HEADK)]]))
            extra.append((lastdma + 1, 83, [[salu("s_mov_b32", S(18), S(85))]]))
        if e == 4:
            extra.append((lastdma + 1, 83, [[salu("s_mov_b32", S(22), S(85))]]))
        if qend and e == qend[0]:
            extra.append((qend[1] + 1, 82, [[salu("s_add_u32", sQSo, sQSo, S(91))], [salu("s_add_u32", sQSm, sQSm, S(91))]]))
        segs[e] = do_emit(R, gk, e, f"b{wp}_{e}", extra=extra)
    if P["verbose"]:
        print(f"wp{wp} loop salu overflow slots {sc.over}", file=sys.stderr)
    done30 = {abskey(k, 29) for g in tm[29 % 2] for k in g if k[1] == 1}
    for final in (False, True):
        T = Region(wp, 30, 31, final=final)
        items = T.sm_items(30, skip=done30) + T.sm_items(31)
        for e in (30, 31):
            items += T.mem_items(e)
        gaps = T.schedule(items)
        if not final:
            qleft = T.qleft
        assert not T.left, [x.key for x in T.left]
        if P["verbose"]:
            print(f"wp{wp} tail{int(final)} overflow {T.over}", file=sys.stderr)
        for e in (30, 31):
            segs[(e, final)] = do_emit(T, cut(T, gaps, e), e, f"t{wp}{int(final)}_{e}", midbar=[("V", 1)] if e == 30 else None)

    start = [label(f"L_start_{wp}")] + stamp(0)
    start += [waitsite(dict(lgkm0=True, vm=[("K", 0), ("K", 1)])), barrier()]
    for kt in range(2):
        for s in range(6):
            start += item_insts(("krd", 0, kt, s), wp, 0)
    rest = [(kind, G, cb) for kind, G in (("dmaV", 0), ("dmaK", 2), ("dmaV", 1), ("dmaK", 3), ("dmaV", 2)) for cb in range(3)]
    todo = [item_insts(("qld", i // 6, i % 6), 0, 0) for i in range(P["qpre"], 24)] + [dma_piece(*r) for r in rest]
    for i in range(24):
        start += q_chunk(i // 6, i % 6)
        n = -(-len(todo) // (24 - i))
        for _ in range(n):
            start += todo.pop(0)
    start += phase_setup()
    head = [label(f"L_head_{wp}")] + stamp(1) + [waitsite()]
    loop_in = [salu("s_mov_b32", sCnt, 6)] + stamp(2)
    loop_lab = [raw(".p2align 6", kind="label"), label(f"L_loop_{wp}")]
    segs[5] = segs[5] + [salu("s_sub_u32", sCnt, sCnt, 1), branch("s_cbranch_scc0", f"L_loop_{wp}")]
    after_loop = stamp(3) + [scmp("s_cmp_eq_u32", sPh, 1), branch("s_cbranch_scc1", f"L_final_{wp}")]
    pre, ch = epilogue(wp, False)
    epi_a = stamp(4) + pre
    qc = [q_chunk(i // 6, i % 6) for i in range(24)]
    if P["ilv"]:
        skip = 0 if P["qst"] else 4
        for i, c in enumerate(ch):
            epi_a += [waitsite()] + c
            if qleft:
                epi_a += item_insts(qleft.pop(0), wp, 0)
            if i >= skip and qc:
                epi_a += qc.pop(0)
    else:
        for c in ch:
            epi_a += c
            if qleft:
                epi_a += item_insts(qleft.pop(0), wp, 0)
    assert not qleft
    epi_a += stamp(5)
    for c in qc:
        epi_a += c
    epi_a += [salu("s_add_u32", sPh, sPh, 1)]
    if P["stamp"]:
        epi_a.append(salu("s_add_u32", S(66), S(66), 64 if P["stamp"] == 1 else 24))
    epi_a += phase_setup() + stamp(0) + [branch("s_branch", f"L_head_{wp}")]
    pre, ch = epilogue(wp, True)
    epi_b = stamp(4) + pre + [i for c in ch for i in c] + stamp(5) + [raw("s_endpgm")]
    fin_lab = [label(f"L_final_{wp}")]

    static = (start + head + segs[-1] + segs[0] + segs[1] + loop_in + loop_lab + segs[2] + segs[3] + segs[4] + segs[5] + after_loop
              + segs[(30, False)] + segs[(31, False)] + epi_a + fin_lab + segs[(30, True)] + segs[(31, True)] + epi_b)

    def dyn(ph):
        b = 32 * ph
        d = [(i, b) for i in (start if ph == 0 else [])] + [(i, b) for i in head]
        for e in (-1, 0, 1):
            d += [(i, b + e) for i in segs[e]]
        d += [(i, b) for i in loop_in]
        for it in range(7):
            for e in range(2, 6):
                d += [(i, b + e + 4 * it) for i in segs[e]]
        d += [(i, b) for i in after_loop]
        for e in (30, 31):
            d += [(i, b + e) for i in segs[(e, ph == 1)]]
        d += [(i, b) for i in (epi_b if ph else epi_a)]
        return d

    rare = []
    def spin(lab):
        return [salu("s_mov_b32", sT[14], 0), label(f"{lab}_spin"), raw(f"ds_read_b32 {vCr}, {vCa}"), salu("s_add_u32", sT[14], sT[14], 1),
                raw("s_waitcnt lgkmcnt(0)"), raw(f"v_cmp_gt_u32 {sCm}, {sTgt}, {vCr}"), scmp("s_cmp_gt_u32", sT[14], "0x40000"),
                branch("s_cbranch_scc1", f"{lab}_spun"), raw(f"s_cmp_lg_u64 {sCm}, 0"), branch("s_cbranch_scc1", f"{lab}_spin"),
                label(f"{lab}_spun")]

    for lab, e, replay, chk, sync in sc.sites:
        if sync and not chk:
            rare += [label(f"{lab}_rare")] + spin(lab) + [branch("s_branch", f"{lab}_back")]
    if P["check"]:
        for typ in (0, 1):
            mine = [(n, s) for n, s in enumerate(sc.sites) if buf(s[1], wp) == typ and s[3]]
            for n, (lab, e, replay, chk, sync) in mine:
                rare.append(label(f"{lab}_rare"))
                if sync:
                    rare += spin(lab)
                    rare += [raw(f"v_cmp_lt_f32 vcc, {sTh}, {vChk}"), raw("s_nop 4"), branch("s_cbranch_vccz", f"{lab}_back")]
                rare.append(salu("s_mov_b32", sRet, n))
                rare.append(salu("s_mov_b32", sT[10], 0 if e == NG - 1 else 1))
                rare.append(salu("s_mul_i32", sT[11], sPh, HEADK))
                if 2 <= e <= 5:
                    rare.append(salu("s_sub_u32", sT[12], 6, sCnt))
                    rare.append(salu("s_mul_i32", sT[12], sT[12], 4 * GRP))
                    rare.append(salu("s_add_u32", sT[11], sT[11], sT[12]))
                rare.append(salu("s_add_u32", sT[11], sT[11], e * GRP))
                rare.append(branch("s_branch", f"L_rare_{wp}_{typ}"))
            com = rare_common(wp, typ)
            Sim().run([(i, 0) for i in com])
            rare += com
            for n, (lab, e, replay, chk, sync) in mine:
                rare.append(scmp("s_cmp_eq_u32", sRet, n))
                rare.append(branch("s_cbranch_scc1", f"{lab}_replay"))
            rare.append(raw("s_endpgm"))
            for n, (lab, e, replay, chk, sync) in mine:
                rp = [label(f"{lab}_replay")]
                for k in replay:
                    rp += item_insts(k, wp, e)
                rp.append(raw("s_nop 4"))
                Sim().run([(i, 0) for i in rp])
                rare += rp
                rare.append(branch("s_branch", f"{lab}_back"))
    return static, dyn, rare


def main():
    pro = prologue()
    text = []
    body = []
    for wp in (0, 1):
        for pas in range(2):
            static, dyn, rare = build_phase(wp)
            for _ in range(2):
                sim = Sim()
                sim.run([(i, 0) for i in pro] + dyn(0) + dyn(1))
            for i in static:
                if i.kind == "wait" and i.note and (i.lgk is not None or i.vm is not None):
                    ACTIVE.add(i.note)
        if P["verbose"]:
            nn = sum(i.nop for i in static)
            print(f"wp{wp}: static insts {len(static)} nops {nn} max vq {sim.maxvq}", file=sys.stderr)
        body.append((static, rare))
    hdr = open("standalone__gqa_softmax__near_ridge.s.ref").read().splitlines()
    for ln in hdr:
        if ln.startswith("; @launch"):
            text.append(f"; @launch grid=(256,1,1) block=(256,1,1) lds={LDS_BYTES}")
        elif ln.startswith(";"):
            text.append(ln)
        else:
            break
    text += ["; Generated by gen/genk.py " + " ".join(sys.argv[2:]),
             '.amdgcn_target "amdgcn-amd-amdhsa--gfx950"', ".text", f".globl {NAME}", ".p2align 8",
             f".type {NAME},@function", f"{NAME}:"]
    text += render(pro)
    for static, rare in body:
        text += render(static)
    for static, rare in body:
        text += render(rare)
    text += ["L_end:", "    s_endpgm", '.section .rodata,"a"', ".p2align 6", f".amdhsa_kernel {NAME}",
             "  .amdhsa_next_free_vgpr 512", "  .amdhsa_next_free_sgpr 102", "  .amdhsa_accum_offset 256",
             "  .amdhsa_group_segment_fixed_size 0", "  .amdhsa_kernarg_size 48", "  .amdhsa_user_sgpr_count 2",
             "  .amdhsa_user_sgpr_kernarg_segment_ptr 1", "  .amdhsa_system_sgpr_workgroup_id_x 1", ".end_amdhsa_kernel", ""]
    open(sys.argv[1], "w").write("\n".join(text))


main()
```

```python
import sys, struct, math
sys.path.insert(0, "gen")
from asmlib import *

P = dict(
    LAT=4,
    LDSLAT=8,
    THR=20,
    check=1,
    stamp=0,
    stwave=404,
    verbose=0,
    nobar=0,
    ssync=1,
    BR=11,
    ARR=12,
    qst=1,
    kst=3,
    dsp=13,
    qlsp=8,
    qpre=10,
    ilv=1,
    kvmod="nt",
    qmod="",
    omod="sc0+sc1",
    omoda="sc0+sc1",
)
for a in sys.argv[2:]:
    k, v = a.split("=")
    P[k] = type(P[k])(v) if k in P else v

NAME = "standalone__gqa_softmax__near_ridge_kernel"
ROWB = 384
GRP = 12288
HEADQ = 432 * ROWB
HEADK = 1024 * ROWB
KBASE, VBASE, RBASE = 0, 49152, 98304
RW = 16384
STGO = 6656
LDS_BYTES = RBASE + 4 * RW
NG = 32
MIDBAR = 40

sQ, sK, sV, sO = S(12, 4), S(16, 4), S(20, 4), S(24, 4)
sW, sKoff, sVoff, sCnt, sPh, sWb, sC, sTh, sRet = (S(i) for i in range(28, 37))
sRowOwn, sRowSh, sNRowOwn, sNRowSh = S(37), S(38), S(39), S(40)
sT = [S(i) for i in range(44, 60)]
sQp, sOp = S(4, 2), S(10, 2)
sWs = S(60, 4)
sStamp = S(64, 2)
sKR = S(76, 4)
sPF = S(80, 4)

vLane = V(1)
vKA = [V(2), V(3)]
vVA = [V(4 + i) for i in range(4)]
vDK, vDV = V(8), V(9)
vQO, vOO = V(10), V(11)
vL = [V(12 + t) for t in range(4)]
vLG = [[V(16 + 4 * b + t) for t in range(4)] for b in range(2)]
vT = [V(24 + i) for i in range(24)]
vCI = [V(48 + 4 * t, 4) for t in range(4)]
vS = [[V(64 + 8 * t + 4 * kt, 4) for kt in range(2)] for t in range(4)]
vP = [[V(96 + 16 * b + 4 * t, 4) for t in range(4)] for b in range(2)]
vVF = [V(128 + 4 * i, 4) for i in range(8)]
vQ = [[V(160 + 24 * t + 4 * s, 4) for s in range(6)] for t in range(4)]
aO = [[A(48 * t + 4 * dt, 4) for dt in range(12)] for t in range(4)]
aKF = [[A(192 + 24 * kt + 4 * s, 4) for s in range(6)] for kt in range(2)]
vChk = V(28)
vQoff = [V(24 + t) for t in range(4)]
vSt0, vSt1 = V(0), V(29)
vCa, vCr = V(46), V(30)
sTgt, sCm = S(93), S(94, 2)
CNT_ADDR = RBASE + 15360
ACTIVE = set()
vPFo = V(23)
sQSo, sQSm, sRg = S(84), S(89), S(90)


def vf(G, dt):
    return vVF[(dt + (4 if G == NG - 1 else 0)) % 8]


def f32bits(x):
    return struct.unpack("<I", struct.pack("<f", x))[0]


def mods(k):
    return "".join(" " + x for x in P[k].split("+") if x)


def tiles(G, wp):
    return [0, 1, 2, 3] if (G % 2) == wp else [0, 1, 2]


def buf(G, wp):
    return 0 if (G % 2) == wp else 1


def item_insts(key, wp, e):
    k = key[0]
    if k == "exp":
        _, G, t, kt, r = key
        x = vS[t][kt].sub(r)
        return [trans("v_exp_f32", x, x)]
    if k == "add":
        _, G, t, i = key
        lg = vLG[buf(G, wp)][t]
        if i == 0:
            return [valu("v_add_f32", lg, vS[t][0].sub(0), vS[t][0].sub(1))]
        j = i + 1
        return [valu("v_add_f32", lg, lg, vS[t][j // 4].sub(j % 4))]
    if k == "cvt":
        _, G, t, kt, h = key
        return [valu("v_cvt_pk_bf16_f32", vP[buf(G, wp)][t].sub(2 * kt + h), vS[t][kt].sub(2 * h), vS[t][kt].sub(2 * h + 1))]
    if k == "chkA":
        lg = vLG[buf(key[1], wp)]
        return [valu("v_max3_f32", vChk, lg[0], lg[1], lg[2])]
    if k == "chkB":
        lg = vLG[buf(key[1], wp)]
        return [valu("v_max_f32", vChk, vChk, lg[3])]
    if k == "chkC":
        return [Inst(f"v_cmp_lt_f32 vcc, {sTh}, {vChk}", "valu", rd=vChk.regs() + sTh.regs(), wr=["vcc"])]
    if k == "ladd":
        _, G, t = key
        lg = vLG[buf(G, wp)][t]
        first = (G == 0) if t < 3 else (G == wp)
        if first:
            return [valu("v_mov_b32", vL[t], lg)]
        return [valu("v_add_f32", vL[t], vL[t], lg)]
    if k == "vrd":
        _, G, dt, hf = key
        return [dsr("ds_read_b64_tr_b16", vf(G, dt).sub(2 * hf, 2), vVA[dt % 4], (G % 4) * GRP + hf * 6144 + (dt // 4) * 1024)]
    if k == "krd":
        _, G, kt, s = key
        return [dsr("ds_read_b128", aKF[kt][s], vKA[s % 2], (G % 4) * GRP + kt * 6144 + (s // 2) * 1024)]
    if k == "dmaV":
        _, G, cb = key
        return [bdma(vDV, sV, sVoff, cb * 128, tag=("V", G - e), mods=mods("kvmod"))]
    if k == "dmaK":
        _, G, cb = key
        return [bdma(vDK, sK, sKoff, cb * 128, tag=("K", G - e), mods=mods("kvmod"))]
    if k == "qadd":
        _, t = key
        if t < 3:
            return [valu("v_add_u32", vQoff[t], sT[t], vQO)]
        return [valu("v_add_u32", vQoff[t], sNRowSh, vQO)]
    if k == "qld":
        _, t, s = key
        return [bload(vQ[t][s], vQoff[t], sQ, 0, 64 * s, mods=mods("qmod"))]
    if k == "dmaQ":
        return [bdma(vPFo, sPF, sQSo, key[2] * 128, tag=("Q", -e), mods=mods("kvmod"))]
    if k == "arr":
        return [dsw("ds_inc_u32", vCa, vCa)]
    if k == "crd":
        return [dsr("ds_read_b32", vCr, vCa)]
    if k == "ccmp":
        return [Inst(f"v_cmp_gt_u32 {sCm}, {sTgt}, {vCr}", "valu", rd=vCr.regs() + sTgt.regs(), wr=sCm.regs())]
    if k == "pfa":
        return [valu("v_xor_b32", vPFo, S(87), vPFo)]
    if k == "qra":
        return [valu("v_add_u32", vQoff[key[1]], sRg, vKA[key[1]])]
    if k == "qrd":
        _, t, s = key
        return [dsr("ds_read_b128", vQ[t][s], vQoff[s % 2], t * 6144 + (s // 2) * 1024)]
    if k == "mx":
        _, t, i = key
        m, s0, s1 = vT[8 + 2 * t], vS[t][0], vS[t][1]
        m2 = vT[9 + 2 * t]
        if i == 0:
            return [valu("v_max3_f32", m, s0.sub(0), s0.sub(1), s0.sub(2))]
        if i == 1:
            return [valu("v_max3_f32", m, m, s0.sub(3), s1.sub(0))]
        if i == 2:
            return [valu("v_max3_f32", m, m, s1.sub(1), s1.sub(2))]
        if i == 3:
            return [valu("v_max_f32", m, m, s1.sub(3))]
        if i in (4, 7):
            return [valu("v_mov_b32", m2, m)]
        if i == 5:
            return [perm("v_permlane32_swap_b32", m, m2)]
        if i == 8:
            return [perm("v_permlane16_swap_b32", m, m2)]
        if i in (6, 9):
            return [valu("v_max_f32", m, m, m2)]
    if k == "ci":
        _, t, r = key
        return [valu("v_sub_f32", vCI[t].sub(r), 0, vT[8 + 2 * t])]
    if k == "sub":
        _, t, kt, r = key
        x = vS[t][kt].sub(r)
        return [valu("v_sub_f32", x, x, vT[8 + 2 * t])]
    raise KeyError(key)


def m0_for(key):
    k, G, cb = key
    if k == "dmaQ":
        return salu("s_add_u32", "m0", sQSm, cb * (1024 - 128))
    base = (KBASE if k == "dmaK" else VBASE) + (G % 4) * GRP + cb * (1024 - 128)
    return salu("s_add_u32", "m0", sWb, base)


CLS = dict(exp=("exp", 8), add=("valu", 4), cvt=("valu", 4), chkA=("valu", 4), chkB=("valu", 4), chkC=("valu", 4),
           ladd=("valu", 4), vrd=("lds", 4), krd=("lds", 4), dmaV=("dma", 8), dmaK=("dma", 8), qadd=("valu", 4),
           qld=("dma", 8), dmaQ=("dma", 8), arr=("lds", 4), crd=("lds", 4), ccmp=("valu", 4), pfa=("valu", 4), qra=("valu", 4), qrd=("lds", 4), mx=("valu", 4), ci=("valu", 4), sub=("valu", 4))


class Item:
    def __init__(self, key, hard, soft, dead, deps=()):
        self.key, self.hard, self.soft, self.dead = key, hard, max(hard, soft), dead
        self.deps = list(deps)
        self.cls, self.cost = CLS[key[0]]
        self.placed = None


class Region:
    def __init__(self, wp, e0, e1, regular=False, final=False):
        self.wp, self.e0, self.e1, self.regular, self.final = wp, e0, e1, regular, final
        self.mf = []
        self.qs, self.qe, self.pvs, self.pvu, self.pvd = {}, {}, {}, {}, {}
        self.kfl = {}
        self.ql = {}
        self.st, self.en = {}, {}
        last = NG - 1
        for e in range(e0, e1 + 1):
            self.st[e] = len(self.mf)
            G = e + 1
            if regular or G <= last:
                if e == -1:
                    order = [(t, kt) for t in range(4) for kt in range(2)]
                else:
                    order = [(t, kt) for kt in range(2) for t in tiles(G, wp)]
                for t, kt in order:
                    self.qs[(G, t, kt)] = len(self.mf)
                    for s in range(6):
                        self.kfl[(G, kt, s)] = len(self.mf)
                        self.ql[(t, s)] = len(self.mf)
                        self.mf.append((e, ("qk", G, t, kt, s)))
                    self.qe[(G, t, kt)] = len(self.mf) - 1
            else:
                self.mf.append((e, None))
            if e >= 0:
                self.pvs[e] = len(self.mf)
                for dt in range(12):
                    self.pvu[(e, dt)] = len(self.mf)
                    for t in tiles(e, wp):
                        self.mf.append((e, ("pv", e, t, dt)))
                    self.pvd[(e, dt)] = len(self.mf) - 1
            self.en[e] = len(self.mf) - 1
        self.n = len(self.mf)

    def has_sync(self, e):
        return bool(P["ssync"]) and (self.regular or 1 <= e <= NG - 2)

    def has_arr(self, e):
        return bool(P["ssync"]) and (self.regular or 0 <= e <= NG - 3)

    def chk_gap(self, e):
        if self.has_sync(e) and (self.regular or e >= 2):
            return self.st[e] + P["BR"]
        return self.pvs[e] - 1

    def sm_items(self, G, only=None, skip=None):
        wp = self.wp
        BIG = 10 ** 6
        items = {}
        pvs = self.chk_gap(G) + 1 if G in self.pvs else BIG

        def add(it):
            items[it.key] = it

        for t in tiles(G, wp):
            G2 = G + 1 if t < 3 else G + 2
            qd = {}
            for kt in range(2):
                ov = self.qs.get((G2, t, kt), BIG)
                qd[kt] = min(ov - 1, pvs - 6)
                qe = self.qe.get((G, t, kt), -1)
                for r in range(4):
                    deps = [("sub", t, kt, r)] if G == 0 and not self.regular else []
                    add(Item(("exp", G, t, kt, r), qe, qe + P["LAT"], qd[kt] - 3, deps))
                for h in range(2):
                    add(Item(("cvt", G, t, kt, h), qe, 0, qd[kt], [("exp", G, t, kt, 2 * h), ("exp", G, t, kt, 2 * h + 1)]))
            for i in range(7):
                j = i + 1
                deps = [("exp", G, t, j // 4, j % 4)]
                deps.append(("exp", G, t, 0, 0) if i == 0 else ("add", G, t, i - 1))
                add(Item(("add", G, t, i), -1, 0, qd[j // 4], deps))
            add(Item(("ladd", G, t), pvs, 0, self.en.get(G, BIG), [("add", G, t, 6)]))
        if P["check"] and (G > 0 or self.regular):
            add(Item(("chkA", G), -1, 0, pvs - 5, [("add", G, t, 6) for t in range(3)]))
            lastk = ("chkA", G)
            if len(tiles(G, wp)) == 4:
                add(Item(("chkB", G), -1, 0, pvs - 4, [lastk, ("add", G, 3, 6)]))
                lastk = ("chkB", G)
            add(Item(("chkC", G), -1, 0, pvs - 3, [lastk]))
        out = []
        for k, it in items.items():
            if only is not None and k not in only:
                continue
            if skip is not None and k in skip:
                continue
            out.append(it)
        return out

    def mem_items(self, e):
        items = []
        st, en = self.st[e], self.en[e]
        L = P["LDSLAT"]
        last = NG - 1
        st0 = st
        if self.has_sync(e):
            items.append(Item(("crd", e), st, st + 1, st + 2))
            items.append(Item(("ccmp", e), st + 3, st + P["BR"] - 3, st + P["BR"] - 2, [("crd", e)]))
            st = st + P["BR"]
        if self.has_arr(e):
            L = P["ARR"] + 1
        nrd = len(items)
        if e >= 0:
            for dt in range(12):
                if e == last and not self.regular:
                    early = max(self.st[e - 1] + MIDBAR + 1, self.pvd[(e - 1, dt + 4)]) if dt < 8 else self.pvd[(e, dt - 8)]
                else:
                    early = st if dt < 8 else self.pvd[(e, dt - 8)]
                for hf in range(2):
                    items.append(Item(("vrd", e, dt, hf), early, 0, max(early, min(self.pvu[(e, dt)] - 1 - P["LDSLAT"], en - L))))
        G = e + 2
        if self.regular or G <= last:
            for kt in range(2):
                for s in range(6):
                    early = max(self.kfl[(G - 1, kt, s)], st)
                    items.append(Item(("krd", G, kt, s), early, 0, max(early, en - L - P["kst"] * (11 - 6 * kt - s))))
        if self.has_arr(e):
            items.append(Item(("arr", e), st, en - P["ARR"] - 2, en - P["ARR"], [it.key for it in items[nrd:]]))
        dm = []
        if e >= 0 and not self.final and (self.regular or e < last):
            dm += [("dmaV", e + 3, cb) for cb in range(3)]
            if e == 0 and not self.regular:
                dm += [("dmaK", 4, cb) for cb in range(3)]
            dm += [("dmaK", e + 5, cb) for cb in range(3)]
        prev = None
        for j, k in enumerate(dm):
            sp = P["dsp"] * 6 // len(dm)
            it = Item(k, st + 1, st + 1 + sp * j, min(st + 4 + sp * j, en), [prev] if prev else [])
            items.append(it)
            prev = k
        if e == last and not self.regular and not self.final:
            pv = self.pvs[e]
            direct = [2, 3] if P["qst"] else [0, 1, 2, 3]
            if P["qst"]:
                for j in range(2):
                    items.append(Item(("qra", j), pv, 0, pv))
                for t in range(2):
                    for s in range(6):
                        items.append(Item(("qrd", t, s), pv, 0, en - 4, [("qra", s % 2)]))
            self.qleft = []
            n = 0
            for t in direct:
                items.append(Item(("qadd", t), pv, 0, pv + 1))
                for s in range(6):
                    at = pv + 2 + n * P["qlsp"]
                    if at <= en:
                        items.append(Item(("qld", t, s), pv, at, min(at + 2, en), [("qadd", t)]))
                    else:
                        self.qleft.append(("qld", t, s))
                    n += 1
        if e == -1:
            for t in range(4):
                qe = self.qe[(0, t, 1)]
                dead = self.qs.get((1, t, 0), self.qs.get((2, t, 0), en + 1)) - 1
                dead = min(dead, self.en[0])
                for i in range(10):
                    items.append(Item(("mx", t, i), qe, qe + P["LAT"], dead - 8, [("mx", t, i - 1)] if i else []))
                for r in range(4):
                    items.append(Item(("ci", t, r), qe, 0, dead - 1, [("mx", t, 9)]))
                if t in tiles(0, self.wp):
                    for kt in range(2):
                        for r in range(4):
                            items.append(Item(("sub", t, kt, r), qe, 0, dead - 6, [("mx", t, 9)]))
        return items

    def schedule(self, items):
        byk = {it.key: it for it in items}
        for i, it in enumerate(items):
            it.seq = i
            it.deps = [byk[d] for d in it.deps if d in byk]
        gaps = [[] for _ in range(self.n)]
        pending = list(items)
        self.over = 0
        lastdma = -10
        lastb128 = -10

        def ready(it, g, soft=True):
            if (it.soft if soft else it.hard) > g:
                return False
            for d in it.deps:
                if d.placed is None:
                    return False
                if d.placed == g and not (d.cls == "valu" and it.cls in ("valu", "exp")) and soft:
                    return False
            return True

        for g in range(self.n):
            cap = 8
            nl = 0

            def put(it):
                nonlocal cap, nl, lastdma, lastb128
                it.placed = g
                gaps[g].append(it)
                pending.remove(it)
                cap -= it.cost
                if it.cls == "lds":
                    nl += 1
                    if it.key[0] in ("krd", "qrd"):
                        lastb128 = g
                if it.key[0] in ("dmaK", "dmaV"):
                    lastdma = g

            def force(it):
                for d in it.deps:
                    if d.placed is None:
                        force(d)
                assert it.hard <= g, (it.key, it.hard, g)
                put(it)

            def fits(it, pair=False):
                if it.cost > cap:
                    return False
                if it.cls == "lds":
                    big = it.key[0] in ("krd", "qrd")
                    if nl >= 1 and (big or lastb128 == g or not pair):
                        return False
                    if big and lastb128 == g - 1:
                        return False
                if it.key[0] in ("dmaK", "dmaV") and lastdma >= g - 1:
                    return False
                return True

            for it in sorted([x for x in pending if x.dead <= g], key=lambda x: (x.dead, x.seq)):
                if it.placed is None:
                    force(it)
            while cap > 0:
                c = sorted([x for x in pending if ready(x, g) and fits(x)], key=lambda x: (x.dead, x.seq))
                if not c:
                    c = sorted([x for x in pending if ready(x, g) and fits(x, True)], key=lambda x: (x.dead, x.seq))
                    if not c:
                        break
                top = c[0]
                if cap == 8 and top.cost == 4:
                    lds = [x for x in c if x.cls == "lds"]
                    val = [x for x in c if x.cls == "valu"]
                    big = [x for x in c if x.cost == 8]
                    if top.cls == "lds":
                        haspartner = bool(val)
                    else:
                        haspartner = bool(lds) or len(val) > 1 or any(top in x.deps and x.cls == "valu" and all(d is top or d.placed is not None for d in x.deps) for x in pending)
                    if not haspartner and big and top.dead > g + 3:
                        put(big[0])
                        continue
                    put(top)
                    if top.cls == "valu" and lds and fits(lds[0]):
                        put(lds[0])
                    continue
                put(top)
            if cap < 0 and self.mf[g][1] is not None:
                self.over += -cap
        self.left = pending
        self.gaps = gaps
        return gaps


def mf_inst(key, wp, regular=False):
    if key[0] == "qk":
        _, G, t, kt, s = key
        d = vS[t][kt]
        c = d if s else (0 if (G == 0 and not regular) else vCI[t])
        return mfma(d, aKF[kt][s], vQ[t][s], c)
    _, G, t, dt = key
    first = (G == 0) if t < 3 else (G == wp)
    d = aO[t][dt]
    return mfma(d, vf(G, dt), vP[buf(G, wp)][t], 0 if first else d)


def relkey(key, e):
    if key[0] in ("qadd", "qld", "mx", "ci", "sub", "qra", "qrd"):
        return key
    return (key[0], key[1] - e) + key[2:]


def abskey(key, e):
    return (key[0], key[1] + e) + key[2:]


def steady_template(wp):
    R = Region(wp, 2, 21, regular=True)
    items = []
    for G in range(3, 23):
        items += R.sm_items(G)
    for e in range(2, 22):
        items += R.mem_items(e)
    gaps = R.schedule(items)
    tm = {}
    for e in range(8, 18):
        cur = [[relkey(it.key, e) for it in gaps[g]] for g in range(R.st[e], R.en[e] + 1)]
        if e % 2 in tm:
            assert tm[e % 2] == cur, f"template not periodic at step {e}"
        tm[e % 2] = cur
    if P["verbose"]:
        for par in (0, 1):
            use = sum(CLS[k[0]][1] for g in tm[par] for k in g)
            ov = sum(max(0, sum(CLS[k[0]][1] for k in g) - 8) for g in tm[par])
            print(f"wp{wp} step parity {par}: fill {use}/{8 * len(tm[par])} overflow {ov}", file=sys.stderr)
            if P["verbose"] > 1:
                for i, g in enumerate(tm[par]):
                    print(i, g, file=sys.stderr)
    return tm


class StepCode:
    def __init__(self, wp):
        self.wp = wp
        self.sites = []

    def emit(self, mf, gapkeys, e, tagname, chk, sync, end_need, arr_need=None, extra=(), midbar=None):
        wp = self.wp
        G = []
        if not P["check"]:
            chk = None
        for i, mk in enumerate(mf):
            g = dict(mf=mf_inst(mk, wp) if mk else None, wait=waitsite(), salu=[], mem=[], val=[], keys=gapkeys[i], fix=0)
            g["wait"].note = (tagname, i)
            if (tagname, i) in ACTIVE:
                g["fix"] += 1
            if i in (chk, sync):
                g["fix"] += 1
            for k in gapkeys[i]:
                cls = CLS[k[0]][0]
                (g["mem"] if cls in ("lds", "dma") else g["val"]).append((k, item_insts(k, wp, e)))
                if k[0] == "arr":
                    g["wait"].need = dict(vm=arr_need)
            G.append(g)

        def room(g):
            used = sum(CLS[k[0]][1] for k in g["keys"])
            return 1 + max(0, 8 - used) // 4 - g["fix"] - len(g["salu"])

        def place(lo, hi, ins, latest=False):
            hi = min(hi, len(G) - 1)
            r = list(range(lo, hi + 1))
            if latest:
                r.reverse()
            c = [j for j in r if room(G[j]) >= len(ins)] or [r[0]]
            G[c[0]]["salu"] += ins
            return c[0]

        DM = ("dmaK", "dmaV", "dmaQ")
        late = []
        if sync is not None:
            cg = max(i for i, g in enumerate(G[:sync]) if any(k[0] in ("ccmp", "chkC") for k in g["keys"]))
            assert cg + 1 <= sync - 1
            if chk == sync:
                place(cg + 1, sync - 1, [Inst(f"s_or_b64 vcc, vcc, {sCm}", "salu", rd=sCm.regs() + ["vcc"], wr=["vcc"])], latest=True)
            late.append((sync + 1, len(G) - 1, [salu("s_add_u32", sTgt, sTgt, 4)]))
        prevd = -1
        for i, g in enumerate(G):
            newmem = []
            for k, ins in g["mem"]:
                if k[0] in DM:
                    if prevd + 1 <= i - 1:
                        place(prevd + 1, i - 1, [m0_for(k)], latest=True)
                    else:
                        newmem.append((None, [m0_for(k)]))
                    prevd = i
                    newmem.append((k, ins))
                    if k[2] == 2 and k[0] != "dmaQ":
                        so = sKoff if k[0] == "dmaK" else sVoff
                        upd = salu("s_add_u32", so, so, GRP)
                        nxt = [j for j in range(i + 1, len(G)) if any(kk and kk[0] == k[0] for kk, _ in G[j]["mem"])]
                        lim = nxt[0] if nxt else len(G) - 1
                        late.append((i + 1, lim, [upd]))
                else:
                    newmem.append((k, ins))
            g["mem"] = newmem
        for lo, hi, ins in late:
            place(lo, hi, ins)
        for lo, hi, groups in extra:
            for ins in groups:
                lo = place(lo, hi, ins)
        self.over = getattr(self, "over", 0) + sum(max(0, -room(g)) for g in G if g["mf"] is not None and 2 <= e <= 5)
        out = []
        for i, g in enumerate(G):
            if g["mf"] is not None:
                out.append(g["mf"])
            out.append(g["wait"])
            if g["mf"] is not None and i in (chk, sync):
                out += self.site(e, tagname, G[:i], i == chk, i == sync)
            out += g["salu"]
            for _, ins in g["mem"]:
                out += ins
            for _, ins in g["val"]:
                out += ins
            if g["mf"] is None:
                if i == chk:
                    out.append(raw("s_nop 4"))
                    out += self.site(e, tagname, G[:i + 1], True, False)
                out.append(waitsite(dict(vm=[("Q", -e + 4 * j) for j in range(7)])))
            if midbar is not None and i == MIDBAR:
                out.append(waitsite(dict(vm=midbar)))
                out.append(barrier())
        if end_need is not None:
            out.append(waitsite(dict(lgkm0=True, vm=end_need)))
            out.append(barrier() if not (P["nobar"] and 2 <= e <= 5) else raw("s_nop 0"))
        return out

    def site(self, e, tagname, done_gaps, chk, sync):
        replay = [k for g in done_gaps for k in g["keys"] if k[0] in ("exp", "add", "cvt") and k[1] == e + 1]
        lab = f"L_{tagname}{'c' if chk else ''}{'s' if sync else ''}"
        self.sites.append((lab, e, replay, chk, sync))
        if sync and not chk:
            return [raw(f"s_cmp_lg_u64 {sCm}, 0", kind="salu", rd=sCm.regs()), branch("s_cbranch_scc1", f"{lab}_rare"), label(f"{lab}_back")]
        return [branch("s_cbranch_vccnz", f"{lab}_rare"), label(f"{lab}_back")]


def stamp(idx):
    if not P["stamp"]:
        return []
    if P["stamp"] == 3:
        return [raw("s_memrealtime s[68:69]"), raw("s_waitcnt lgkmcnt(0)"), salu("s_sub_u32", S(64), S(68), S(72)),
                valu("v_mov_b32", vSt0, S(64)), valu("v_mov_b32", vSt1, S(66)), bstore(vSt0, vSt1, sWs, 0, 4 * idx), raw("s_nop 1")]
    if P["stamp"] == 2:
        o = [raw("s_memrealtime s[68:69]"), raw("s_waitcnt lgkmcnt(0)"), salu("s_sub_u32", S(64), S(68), S(72)),
             valu("v_mov_b32", vSt0, S(64)), valu("v_mov_b32", vSt1, S(66)),
             raw("s_mov_b64 exec, 1"),
             Inst(f"buffer_atomic_umax {vSt0}, {vSt1}, {sWs}, 0 offen offset:{4 * idx}", "vst", rd=vSt0.regs() + vSt1.regs())]
        if idx == 5:
            o += [raw("s_nop 1"), valu("v_mov_b32", vSt0, S(68)), valu("v_mov_b32", vSt1, 0),
                  Inst(f"buffer_atomic_umax {vSt0}, {vSt1}, {sWs}, 0 offen offset:48", "vst", rd=vSt0.regs() + vSt1.regs()),
                  raw("s_nop 1"), salu("s_not_b32", S(64), S(72)), valu("v_mov_b32", vSt0, S(64)),
                  Inst(f"buffer_atomic_umax {vSt0}, {vSt1}, {sWs}, 0 offen offset:52", "vst", rd=vSt0.regs() + vSt1.regs())]
        o += [raw("s_mov_b64 exec, -1"), raw("s_nop 4")]
        return o
    return [raw(f"s_memtime {sStamp}"), raw("s_memrealtime s[68:69]"), raw("s_waitcnt lgkmcnt(0)"),
            valu("v_mov_b32", vSt0, S(64)), valu("v_mov_b32", vSt1, S(66)),
            bstore(vSt0, vSt1, sWs, 0, 4 * idx), raw("s_nop 1"),
            valu("v_mov_b32", vSt0, S(68)), bstore(vSt0, vSt1, sWs, 0, 4 * idx + 32), raw("s_nop 1")]


def q_chunk(t, s):
    out = [waitsite()]
    q = vQ[t][s]
    tb = 152
    for r in range(4):
        out.append(valu("v_lshlrev_b32", V(tb + 2 * r), 16, q.sub(r)))
        out.append(valu("v_and_b32", V(tb + 2 * r + 1), "0xffff0000", q.sub(r)))
    for r in range(4):
        pr = V(tb + 2 * r, 2)
        out.append(Inst(f"v_pk_mul_f32 {pr}, {pr}, {S(42, 2)}", "valu", rd=pr.regs() + ["s42", "s43"], wr=pr.regs()))
    for r in range(4):
        out.append(valu("v_cvt_pk_bf16_f32", q.sub(r), V(tb + 2 * r), V(tb + 2 * r + 1)))
    return out


def dma_piece(kind, G, cb, e=0):
    k = (kind, G, cb)
    r = [m0_for(k)] + item_insts(k, 0, e)
    if cb == 2:
        so = sKoff if kind == "dmaK" else sVoff
        r.append(salu("s_add_u32", so, so, GRP))
    return r


def lane_reduce(x, tmp, op):
    return [valu("v_mov_b32", tmp, x), perm("v_permlane32_swap_b32", x, tmp), valu(op, x, x, tmp),
            valu("v_mov_b32", tmp, x), perm("v_permlane16_swap_b32", x, tmp), valu(op, x, x, tmp)]


def epilogue(wp, final):
    out = [waitsite()]
    for t in (3, 0, 1, 2):
        out += lane_reduce(vL[t], vT[8 + t], "v_add_f32")
        if t == 3:
            send = range(6 * (1 - wp), 6 * (1 - wp) + 6)
            xa, xb = vT[12], vT[13]
            out.append(salu("s_mov_b32", sT[4], sRg))
            out.append(salu("s_xor_b32", sT[5], sRg, RW))
            out.append(valu("v_lshl_add_u32", xa, vLane, 4, sT[4]))
            out.append(valu("v_lshl_add_u32", xb, vLane, 4, sT[5]))
            ml = V(vT[14].b, 2)
            out.append(valu("v_mov_b32", vT[14], vCI[3].sub(0)))
            out.append(valu("v_mov_b32", vT[15], vL[3]))
            out.append(valu("v_lshl_add_u32", vT[16], vLane, 3, sT[4]))
            out.append(valu("v_lshl_add_u32", vT[17], vLane, 3, sT[5]))
            for j, dt in enumerate(send):
                out.append(dsw("ds_write_b128", xa, aO[3][dt], 1024 * j))
            out.append(dsw("ds_write_b64", vT[16], ml, 6144))
    sw, sr, go = vT[4], vT[6], vT[7]
    out.append(salu("s_add_u32", sT[4], sRg, STGO))
    out.append(valu("v_and_b32", vT[8], 15, vLane))
    out.append(valu("v_lshlrev_b32", vT[8], 4, vT[8]))
    out.append(valu("v_add3_u32", sw, vOO, vT[8], sT[4]))
    out.append(valu("v_lshrrev_b32", vT[8], 3, vLane))
    out.append(valu("v_and_b32", vT[9], 7, vLane))
    out.append(valu("v_lshlrev_b32", vT[9], 4, vT[9]))
    out.append(valu("v_mul_u32_u24", vT[10], 400, vT[8]))
    out.append(valu("v_add3_u32", sr, vT[10], vT[9], sT[4]))
    out.append(valu("v_mul_u32_u24", vT[10], ROWB, vT[8]))
    out.append(valu("v_add3_u32", go, vT[10], vT[9], sRowOwn))
    out.append(waitsite(dict(lgkm0=True, vm=[] if final else [("K", 32), ("K", 33)])))
    out.append(barrier())
    X = [V(128 + 4 * j, 4) for j in range(6)]
    oml = V(vT[18].b, 2)
    out.append(dsr("ds_read_b64", oml, vT[17], 6144))
    for j in range(6):
        out.append(dsr("ds_read_b128", X[j], xb, 1024 * j))
    if not final:
        for cb in range(3):
            out += dma_piece("dmaV", 34, cb)
        for kt in range(2):
            for s in range(6):
                out += item_insts(("krd", 0, kt, s), wp, 0)
    pre = out

    def pack(src, k):
        d = V(96 + 4 * (k % 2), 4)
        o = [valu("v_cvt_pk_bf16_f32", d.sub(i), src[2 * i], src[2 * i + 1]) for i in range(4)]
        sw_ = [perm("v_permlane16_swap_b32", d.sub(0), d.sub(2)), perm("v_permlane16_swap_b32", d.sub(1), d.sub(3))]
        return o, sw_, d

    chunks = []
    k = 0
    tail = []
    RB = [V(104 + 4 * j, 4) for j in range(6)]

    def readback():
        return [dsr("ds_read_b128", RB[j], sr, (j // 3) * 3200 + (j % 3) * 128) for j in range(6)]

    def store(j):
        o = [waitsite(), bstore(RB[j], go, sO, 0, (j // 3) * 3072 + (j % 3) * 128, mods=mods("omod" if final else "omoda"))]
        if j == 5:
            o.append(valu("v_add_u32", go, 6144, go))
        return o

    for t in range(3):
        inv = V(vT[20].b, 2)
        for p in range(6):
            c = []
            if p == 0:
                c.append(trans("v_rcp_f32", vT[20], vL[t]))
            base = 64 + 8 * (k % 4)
            src = [V(base + i) for i in range(8)]
            for i in range(8):
                c.append(valu("v_accvgpr_read_b32", src[i], aO[t][2 * p + i // 4].sub(i % 4)))
            if p == 0:
                c.append(valu("v_mov_b32", vT[21], vT[20]))
            c += tail
            if p == 0 and t > 0:
                c += readback()
            for i in range(4):
                pr = V(base + 2 * i, 2)
                c.append(Inst(f"v_pk_mul_f32 {pr}, {pr}, {inv}", "valu", rd=pr.regs() + inv.regs(), wr=pr.regs()))
            o, sw_, d = pack(src, k)
            c += o
            tail = sw_ + [dsw("ds_write_b128", sw, d, 64 * p)]
            if t > 0:
                c += store(p)
            chunks.append(c)
            k += 1
    c = [waitsite()]
    nm_own, nm_oth, l_oth = vCI[3].sub(0), vT[18], vT[19]
    M = vT[8]
    fo, fx = vT[9], vT[10]
    c.append(valu("v_min_f32", M, nm_own, nm_oth))
    c.append(valu("v_sub_f32", fo, M, nm_own))
    c.append(valu("v_sub_f32", fx, M, nm_oth))
    c += tail + readback()
    tail = []
    c.append(trans("v_exp_f32", fo, fo))
    c.append(trans("v_exp_f32", fx, fx))
    c.append(valu("v_add_u32", vT[5], sRowSh, vOO))
    c.append(valu("v_mul_f32", vT[11], vL[3], fo))
    c.append(valu("v_fma_f32", vT[11], l_oth, fx, vT[11]))
    c.append(trans("v_rcp_f32", vT[11], vT[11]))
    c.append(valu("v_mul_f32", fo, fo, vT[11]))
    c.append(valu("v_mul_f32", fx, fx, vT[11]))
    for p3 in range(3):
        p = 3 * wp + p3
        base = 64 + 8 * (k % 4)
        src = [V(base + i) for i in range(8)]
        for i in range(8):
            c.append(valu("v_accvgpr_read_b32", src[i], aO[3][2 * p + i // 4].sub(i % 4)))
        c += tail
        for i in range(8):
            c.append(valu("v_mul_f32", src[i], src[i], fo))
        c += store(2 * p3)
        for i in range(8):
            c.append(valu("v_fma_f32", src[i], X[2 * p3 + i // 4].sub(i % 4), fx, src[i]))
        o, sw_, d = pack(src, k)
        c += o
        c += store(2 * p3 + 1)
        tail = sw_ + [bstore(d, vT[5], sO, 0, 64 * p, mods=mods("omod" if final else "omoda"))]
        chunks.append(c)
        c = []
        k += 1
    chunks.append(tail)
    return pre, chunks


def phase_setup():
    o = []
    o.append(salu("s_add_u32", sT[4], sT[8], sPh))
    o.append(salu("s_mul_i32", sT[5], sT[4], HEADQ))
    o.append(salu("s_add_u32", S(24), S(10), sT[5]))
    o.append(salu("s_addc_u32", S(25), S(11), 0))
    o.append(salu("s_mov_b32", sRowOwn, sNRowOwn))
    o.append(salu("s_mov_b32", sRowSh, sNRowSh))
    o += next_q_setup(1)
    o.append(salu("s_mov_b32", S(80), S(12)))
    o.append(salu("s_mov_b32", S(81), S(13)))
    o.append(salu("s_mov_b32", S(82), 0))
    o.append(salu("s_mov_b32", S(85), 2 * HEADK))
    o.append(salu("s_mov_b32", S(87), 0))
    o.append(salu("s_mov_b32", S(91), 0))
    o.append(salu("s_mov_b32", sQSo, sNRowOwn))
    o.append(salu("s_mov_b32", sQSm, sRg))
    o.append(salu("s_lshr_b32", S(96), S(14), 6))
    o.append(salu("s_sub_u32", S(97), 1, sPh))
    return o


def next_q_setup(d):
    o = []
    o.append(salu("s_add_u32", sT[4], sPh, d))
    o.append(salu("s_xor_b32", sT[5], sT[4], sT[9]))
    o.append(salu("s_and_b32", sT[5], sT[5], 1))
    o.append(salu("s_mul_i32", sT[5], sT[5], 224 * ROWB))
    o.append(salu("s_mov_b32", sT[7], sT[5]))
    o.append(salu("s_mul_i32", sT[6], sW, 48 * ROWB))
    o.append(salu("s_add_u32", sNRowOwn, sT[5], sT[6]))
    o.append(salu("s_lshr_b32", sT[6], sW, 1))
    o.append(salu("s_mul_i32", sT[6], sT[6], 16 * ROWB))
    o.append(salu("s_add_u32", sT[6], sT[6], 192 * ROWB))
    o.append(salu("s_add_u32", sNRowSh, sT[5], sT[6]))
    o.append(salu("s_mov_b32", sT[0], sNRowOwn))
    o.append(salu("s_add_u32", sT[1], sNRowOwn, 6144))
    o.append(salu("s_add_u32", sT[2], sNRowOwn, 12288))
    o.append(scmp("s_cmp_lt_u32", sT[4], 2))
    o.append(salu("s_cselect_b32", S(14), HEADQ, 0))
    o.append(salu("s_min_u32", sT[4], sT[4], 1))
    o.append(salu("s_add_u32", sT[4], sT[4], sT[8]))
    o.append(salu("s_mul_i32", sT[5], sT[4], HEADQ))
    o.append(salu("s_add_u32", S(12), S(4), sT[5]))
    o.append(salu("s_addc_u32", S(13), S(5), 0))
    return o


def prologue():
    o = []
    o.append(scmp("s_cmp_ge_u32", S(2), 256))
    o.append(branch("s_cbranch_scc1", "L_end"))
    o.append(raw("s_load_dwordx4 s[4:7], s[0:1], 0"))
    o.append(raw("s_load_dwordx4 s[8:11], s[0:1], 16"))
    if P["stamp"]:
        o.append(raw(f"s_load_dwordx2 s[60:61], s[0:1], {40 if P['stamp'] == 1 else 32}"))
        o.append(raw("s_memtime s[70:71]"))
        o.append(raw("s_memrealtime s[72:73]"))
    o.append(valu("v_lshrrev_b32", vT[0], 6, V(0)))
    o.append(valu("v_and_b32", vLane, 63, V(0)))
    o.append(rfl(sW, vT[0]))
    o.append(salu("s_lshr_b32", sT[4], S(2), 4))
    o.append(salu("s_lshl_b32", sT[4], sT[4], 3))
    o.append(salu("s_and_b32", sT[5], S(2), 7))
    o.append(salu("s_add_u32", sT[4], sT[4], sT[5]))
    o.append(salu("s_lshl_b32", sT[8], sT[4], 1))
    o.append(salu("s_lshr_b32", sT[9], S(2), 3))
    o.append(salu("s_and_b32", sT[9], sT[9], 1))
    o.append(salu("s_mul_i32", sT[7], sT[4], 2 * HEADK))
    o.append(salu("s_mul_i32", sWb, sW, 3072))
    o.append(salu("s_mov_b32", sPh, 0))
    o.append(salu("s_mov_b32", sKoff, 0))
    o.append(salu("s_mov_b32", sVoff, 0))
    c = f32bits(math.log2(math.e) / math.sqrt(192.0))
    o.append(salu("s_mov_b32", S(42), hex(c)))
    o.append(salu("s_mov_b32", S(43), hex(c)))
    o.append(salu("s_mov_b32", sTh, hex(f32bits(2.0 ** P["THR"]))))
    l = vLane
    t0, t1, t2, t3 = vT[0], vT[1], vT[2], vT[3]
    o.append(valu("v_lshrrev_b32", t0, 3, l))
    o.append(salu("s_lshl_b32", sT[5], sW, 3))
    o.append(valu("v_add_u32", t0, sT[5], t0))
    o.append(valu("v_mul_u32_u24", t1, ROWB, t0))
    o.append(valu("v_and_b32", t2, 7, l))
    o.append(valu("v_bfe_u32", t3, t0, 1, 3))
    o.append(valu("v_xor_b32", t3, t3, t2))
    o.append(valu("v_lshl_add_u32", vDK, t3, 4, t1))
    o.append(valu("v_bfe_u32", t3, t0, 1, 2))
    o.append(valu("v_lshlrev_b32", t3, 1, t3))
    o.append(valu("v_xor_b32", t3, t3, t2))
    o.append(valu("v_lshl_add_u32", vDV, t3, 4, t1))
    o.append(raw("s_waitcnt lgkmcnt(0)"))
    o.append(salu("s_add_u32", S(16), S(6), sT[7]))
    o.append(salu("s_addc_u32", S(17), S(7), 0))
    o.append(salu("s_mov_b32", S(18), 2 * HEADK))
    o.append(salu("s_mov_b32", S(19), "0x20000"))
    o.append(salu("s_add_u32", S(20), S(8), sT[7]))
    o.append(salu("s_addc_u32", S(21), S(9), 0))
    o.append(salu("s_mov_b32", S(22), 2 * HEADK))
    o.append(salu("s_mov_b32", S(23), "0x20000"))
    o.append(salu("s_mov_b32", S(15), "0x20000"))
    o.append(salu("s_mov_b32", S(26), HEADQ))
    o.append(salu("s_mov_b32", S(27), "0x20000"))
    if P["stamp"]:
        o.append(salu("s_mov_b32", S(62), "0x100000" if P["stamp"] == 1 else 256))
        o.append(salu("s_mov_b32", S(63), "0x20000"))
        o.append(salu("s_lshl_b32", S(66), S(2), 2))
        o.append(salu("s_add_u32", S(66), S(66), sW))
        o.append(salu("s_lshl_b32", S(66), S(66), 8))
        if P["stamp"] == 3:
            o.append(scmp("s_cmp_eq_u32", S(66), P["stwave"] * 256))
            o.append(salu("s_cselect_b32", S(62), 256, 0))
        if P["stamp"] >= 2:
            o.append(salu("s_mov_b32", S(66), 0))

    for i in range(4):
        o.append(salu("s_mov_b32", S(76 + i), S(16 + i)))
    o.append(salu("s_mov_b32", S(83), "0x20000"))
    o.append(salu("s_lshl_b32", sRg, sW, 14))
    o.append(salu("s_add_u32", sRg, sRg, RBASE))

    def dma_group(kind, G):
        return [i for cb in range(3) for i in dma_piece(kind, G, cb)]

    o += dma_group("dmaK", 0)
    o += dma_group("dmaK", 1)
    o.append(valu("v_and_b32", t0, 15, l))
    o.append(valu("v_lshrrev_b32", t1, 4, l))
    o.append(valu("v_mul_u32_u24", t2, ROWB, t0))
    o.append(valu("v_lshl_add_u32", vQO, t1, 4, t2))
    o += next_q_setup(0)
    for t in range(4):
        o += item_insts(("qadd", t), 0, 0)
    for i in range(P["qpre"]):
        o += item_insts(("qld", i // 6, i % 6), 0, 0)
    t0, t1, t2, t3 = vT[4], vT[5], vT[6], vT[7]
    o.append(valu("v_and_b32", t0, 15, l))
    o.append(valu("v_lshrrev_b32", t1, 4, l))
    o.append(valu("v_mul_u32_u24", t2, ROWB, t0))
    o.append(valu("v_and_b32", t3, 1, t1))
    o.append(valu("v_lshl_add_u32", t2, t3, 5, t2))
    o.append(valu("v_lshrrev_b32", t3, 1, t1))
    o.append(valu("v_lshl_add_u32", vOO, t3, 4, t2))
    o.append(valu("v_lshrrev_b32", t2, 3, l))
    o.append(valu("v_mul_u32_u24", t2, ROWB, t2))
    o.append(valu("v_and_b32", t3, 7, l))
    o.append(valu("v_xor_b32", t3, t3, t1))
    o.append(valu("v_lshl_add_u32", vPFo, t3, 4, t2))
    o.append(valu("v_lshrrev_b32", t2, 3, t0))
    o.append(valu("v_mul_u32_u24", t2, 3072, t2))
    o.append(valu("v_and_b32", t3, 7, t0))
    o.append(valu("v_lshl_add_u32", t2, t3, 7, t2))
    o.append(valu("v_lshrrev_b32", t3, 1, t0))
    o.append(valu("v_xor_b32", t3, t3, t1))
    o.append(valu("v_lshl_add_u32", vKA[0], t3, 4, t2))
    if KBASE:
        o.append(valu("v_add_u32", vKA[0], KBASE, vKA[0]))
    o.append(valu("v_xor_b32", vKA[1], 64, vKA[0]))
    o.append(valu("v_lshrrev_b32", t2, 2, t0))
    o.append(valu("v_and_b32", t3, 1, t1))
    o.append(valu("v_lshl_add_u32", t2, t3, 2, t2))
    o.append(valu("v_lshrrev_b32", t3, 1, t1))
    o.append(valu("v_mul_u32_u24", t3, 3072, t3))
    o.append(valu("v_lshl_add_u32", t3, t2, 7, t3))
    o.append(valu("v_and_b32", t0, 3, l))
    o.append(valu("v_lshl_add_u32", t3, t0, 3, t3))
    o.append(valu("v_add_u32", t3, VBASE, t3))
    o.append(valu("v_lshrrev_b32", t2, 1, t2))
    o.append(valu("v_lshl_add_u32", vVA[0], t2, 5, t3))
    for j in range(1, 4):
        o.append(valu("v_xor_b32", vVA[j], 32 * j, vVA[0]))
    if P["stamp"] == 1:
        o += [valu("v_mov_b32", vSt0, S(70)), valu("v_mov_b32", vSt1, S(66)), bstore(vSt0, vSt1, sWs, 0, 4 * 6), raw("s_nop 1"),
              valu("v_mov_b32", vSt0, S(72)), bstore(vSt0, vSt1, sWs, 0, 4 * 6 + 32), raw("s_nop 1")]
    o += cnt_addr()
    o.append(valu("v_mov_b32", vCr, 0))
    o.append(dsw("ds_write_b32", vCa, vCr))
    o.append(salu("s_mov_b32", sTgt, 4))
    o.append(salu("s_and_b32", sT[4], sW, 1))
    o.append(scmp("s_cmp_eq_u32", sT[4], 1))
    o.append(branch("s_cbranch_scc1", "L_start_1"))
    return o


def cnt_addr():
    return [salu("s_mov_b32", sT[12], CNT_ADDR), valu("v_lshl_add_u32", vCa, vLane, 2, sT[12])]


def rare_common(wp, typ):
    Gp = wp if typ == 0 else 1 - wp
    o = [label(f"L_rare_{wp}_{typ}"), raw("s_nop 15"), raw("s_nop 15")]
    kt_ = [V(vT[0].b + 4 * s, 4) for s in range(6)]
    ka = V(0)

    def recompute(G, soff, cfun):
        r = []
        for kt in range(2):
            r.append(valu("v_add_u32", ka, 6144 * kt, vQO))
            for s in range(6):
                r.append(bload(kt_[s], ka, sKR, soff, 64 * s))
            r.append(raw("s_waitcnt vmcnt(0)"))
            r.append(waitsite(dict(vm0=True)))
            for t in tiles(G, wp):
                for s in range(6):
                    r.append(mfma(vS[t][kt], kt_[s], vQ[t][s], vS[t][kt] if s else cfun(t)))
            r.append(raw("s_nop 15"))
        return r

    o += recompute(Gp, sT[11], lambda t: 0)
    m, m2, f = vT[0], vT[1], vT[2]
    for t in tiles(Gp, wp):
        s0, s1 = vS[t]
        o.append(valu("v_max3_f32", m, s0.sub(0), s0.sub(1), s0.sub(2)))
        o.append(valu("v_max3_f32", m, m, s0.sub(3), s1.sub(0)))
        o.append(valu("v_max3_f32", m, m, s1.sub(1), s1.sub(2)))
        o.append(valu("v_max_f32", m, m, s1.sub(3)))
        o += lane_reduce(m, m2, "v_max_f32")
        o.append(valu("v_sub_f32", m2, 0, vCI[t].sub(0)))
        o.append(valu("v_max_f32", m, m, m2))
        o.append(valu("v_sub_f32", f, m2, m))
        o.append(trans("v_exp_f32", f, f))
        for r in range(4):
            o.append(valu("v_sub_f32", vCI[t].sub(r), 0, m))
        o.append(valu("v_mul_f32", vL[t], vL[t], f))
        for dt in range(12):
            for r in range(4):
                o.append(valu("v_accvgpr_read_b32", vT[4 + r], aO[t][dt].sub(r)))
            for r in range(4):
                o.append(valu("v_mul_f32", vT[4 + r], vT[4 + r], f))
            for r in range(4):
                o.append(valu("v_accvgpr_write_b32", aO[t][dt].sub(r), vT[4 + r]))
        for kt in range(2):
            for r in range(4):
                x = vS[t][kt].sub(r)
                o.append(valu("v_sub_f32", x, x, m))
                o += item_insts(("exp", Gp, t, kt, r), wp, 0)
        for i in range(7):
            o += item_insts(("add", Gp, t, i), wp, 0)
        for kt in range(2):
            for h in range(2):
                o += item_insts(("cvt", Gp, t, kt, h), wp, 0)
    o.append(scmp("s_cmp_eq_u32", sT[10], 0))
    o.append(branch("s_cbranch_scc1", f"L_rare_{wp}_{typ}_ret"))
    o.append(salu("s_add_u32", sT[11], sT[11], GRP))
    o += recompute(Gp + 1, sT[11], lambda t: vCI[t])
    o.append(label(f"L_rare_{wp}_{typ}_ret"))
    o += cnt_addr()
    return o


def build_phase(wp):
    tm = steady_template(wp)
    sc = StepCode(wp)
    segs = {}
    H = Region(wp, -1, 1)
    done2 = {abskey(k, 1) for g in tm[1 % 2] for k in g if k[0] in ("exp", "add", "cvt", "chkA", "chkB", "chkC") and k[1] == 1}
    items = H.sm_items(0) + H.sm_items(1)
    g2 = H.sm_items(2, only=done2)
    for it in g2:
        it.dead = min(it.dead, H.n - 1)
    items += g2
    for e in (-1, 0, 1):
        items += H.mem_items(e)
    gaps = H.schedule(items)
    assert not H.left, [x.key for x in H.left]
    if P["verbose"]:
        print(f"wp{wp} head overflow {H.over}", file=sys.stderr)

    NEED = [("V", 1), ("K", 3)]

    def do_emit(R, gk, e, tag, **kw):
        mf = [R.mf[i][1] for i in range(R.st[e], R.en[e] + 1)]
        chk = R.chk_gap(e) - R.st[e] if e > 0 else None
        sync = P["BR"] if R.has_sync(e) else None
        end = None if (R.has_arr(e) or e >= NG - 2) else NEED
        return sc.emit(mf, gk, e, tag, chk, sync, end, arr_need=NEED, **kw)

    def cut(R, gaps, e):
        return [[it.key for it in gaps[i]] for i in range(R.st[e], R.en[e] + 1)]

    for e in (-1, 0, 1):
        segs[e] = do_emit(H, cut(H, gaps, e), e, f"h{wp}_{e + 1}")
    R = Region(wp, 2, 5, regular=True)
    gks = {e: [[abskey(k, e) for k in g] for g in tm[e % 2]] for e in range(2, 6)}
    qend = None
    if P["qst"]:
        free = [(e, i) for e in range(2, 6) for i, g in enumerate(gks[e])
                if not g and 0 < i < 82 and (e, i) > (2, 30) and not any(k[0].startswith("dma") for k in gks[e][i - 1] + gks[e][i + 1])]
        pick = [free[0], free[len(free) // 3], free[2 * len(free) // 3]]
        for cb, (e, i) in enumerate(pick):
            gks[e][i].append(("dmaQ", 0, cb))
        qend = pick[-1]
        e, i = [(e, i) for e in range(2, 6) for i, g in enumerate(gks[e]) if (e, i) > qend and sum(CLS[k[0]][1] for k in g) <= 4][0]
        gks[e][i].append(("pfa",))
    for e in range(2, 6):
        gk = gks[e]
        extra = []
        lastdma = max(i for i, g in enumerate(gk) for k in g if k[0] in ("dmaK", "dmaV"))
        if e == 2:
            extra.append((0, 29, [[salu("s_and_b32", sT[13], sCnt, 4)], [salu("s_lshl_b32", sT[13], sT[13], 4)],
                                  [salu("s_xor_b32", S(87), sT[13], 64)],
                                  [salu("s_mul_i32", S(91), S(87), 48)], [salu("s_mul_i32", S(82), S(87), S(96))],
                                  [salu("s_add_u32", sT[13], sCnt, S(97))],
                                  [salu("s_min_u32", sT[13], sT[13], 1)], [salu("s_mul_i32", S(85), sT[13], 2 * HEADK)]]))
            extra.append((lastdma + 1, 83, [[salu("s_mov_b32", S(18), S(85))]]))
        if e == 4:
            extra.append((lastdma + 1, 83, [[salu("s_mov_b32", S(22), S(85))]]))
        if qend and e == qend[0]:
            extra.append((qend[1] + 1, 82, [[salu("s_add_u32", sQSo, sQSo, S(91))], [salu("s_add_u32", sQSm, sQSm, S(91))]]))
        segs[e] = do_emit(R, gk, e, f"b{wp}_{e}", extra=extra)
    if P["verbose"]:
        print(f"wp{wp} loop salu overflow slots {sc.over}", file=sys.stderr)
    done30 = {abskey(k, 29) for g in tm[29 % 2] for k in g if k[1] == 1}
    for final in (False, True):
        T = Region(wp, 30, 31, final=final)
        items = T.sm_items(30, skip=done30) + T.sm_items(31)
        for e in (30, 31):
            items += T.mem_items(e)
        gaps = T.schedule(items)
        if not final:
            qleft = T.qleft
        assert not T.left, [x.key for x in T.left]
        if P["verbose"]:
            print(f"wp{wp} tail{int(final)} overflow {T.over}", file=sys.stderr)
        for e in (30, 31):
            segs[(e, final)] = do_emit(T, cut(T, gaps, e), e, f"t{wp}{int(final)}_{e}", midbar=[("V", 1)] if e == 30 else None)

    start = [label(f"L_start_{wp}")] + stamp(0)
    start += [waitsite(dict(lgkm0=True, vm=[("K", 0), ("K", 1)])), barrier()]
    for kt in range(2):
        for s in range(6):
            start += item_insts(("krd", 0, kt, s), wp, 0)
    rest = [(kind, G, cb) for kind, G in (("dmaV", 0), ("dmaK", 2), ("dmaV", 1), ("dmaK", 3), ("dmaV", 2)) for cb in range(3)]
    todo = [item_insts(("qld", i // 6, i % 6), 0, 0) for i in range(P["qpre"], 24)] + [dma_piece(*r) for r in rest]
    for i in range(24):
        start += q_chunk(i // 6, i % 6)
        n = -(-len(todo) // (24 - i))
        for _ in range(n):
            start += todo.pop(0)
    start += phase_setup()
    head = [label(f"L_head_{wp}")] + stamp(1) + [waitsite()]
    loop_in = [salu("s_mov_b32", sCnt, 6)] + stamp(2)
    loop_lab = [raw(".p2align 6", kind="label"), label(f"L_loop_{wp}")]
    segs[5] = segs[5] + [salu("s_sub_u32", sCnt, sCnt, 1), branch("s_cbranch_scc0", f"L_loop_{wp}")]
    after_loop = stamp(3) + [scmp("s_cmp_eq_u32", sPh, 1), branch("s_cbranch_scc1", f"L_final_{wp}")]
    pre, ch = epilogue(wp, False)
    epi_a = stamp(4) + pre
    qc = [q_chunk(i // 6, i % 6) for i in range(24)]
    if P["ilv"]:
        skip = 0 if P["qst"] else 4
        for i, c in enumerate(ch):
            epi_a += [waitsite()] + c
            if qleft:
                epi_a += item_insts(qleft.pop(0), wp, 0)
            if i >= skip and qc:
                epi_a += qc.pop(0)
    else:
        for c in ch:
            epi_a += c
            if qleft:
                epi_a += item_insts(qleft.pop(0), wp, 0)
    assert not qleft
    epi_a += stamp(5)
    for c in qc:
        epi_a += c
    epi_a += [salu("s_add_u32", sPh, sPh, 1)]
    if P["stamp"]:
        epi_a.append(salu("s_add_u32", S(66), S(66), 64 if P["stamp"] == 1 else 24))
    epi_a += phase_setup() + stamp(0) + [branch("s_branch", f"L_head_{wp}")]
    pre, ch = epilogue(wp, True)
    epi_b = stamp(4) + pre + [i for c in ch for i in c] + stamp(5) + [raw("s_endpgm")]
    fin_lab = [label(f"L_final_{wp}")]

    static = (start + head + segs[-1] + segs[0] + segs[1] + loop_in + loop_lab + segs[2] + segs[3] + segs[4] + segs[5] + after_loop
              + segs[(30, False)] + segs[(31, False)] + epi_a + fin_lab + segs[(30, True)] + segs[(31, True)] + epi_b)

    def dyn(ph):
        b = 32 * ph
        d = [(i, b) for i in (start if ph == 0 else [])] + [(i, b) for i in head]
        for e in (-1, 0, 1):
            d += [(i, b + e) for i in segs[e]]
        d += [(i, b) for i in loop_in]
        for it in range(7):
            for e in range(2, 6):
                d += [(i, b + e + 4 * it) for i in segs[e]]
        d += [(i, b) for i in after_loop]
        for e in (30, 31):
            d += [(i, b + e) for i in segs[(e, ph == 1)]]
        d += [(i, b) for i in (epi_b if ph else epi_a)]
        return d

    rare = []
    def spin(lab):
        return [salu("s_mov_b32", sT[14], 0), label(f"{lab}_spin"), raw(f"ds_read_b32 {vCr}, {vCa}"), salu("s_add_u32", sT[14], sT[14], 1),
                raw("s_waitcnt lgkmcnt(0)"), raw(f"v_cmp_gt_u32 {sCm}, {sTgt}, {vCr}"), scmp("s_cmp_gt_u32", sT[14], "0x40000"),
                branch("s_cbranch_scc1", f"{lab}_spun"), raw(f"s_cmp_lg_u64 {sCm}, 0"), branch("s_cbranch_scc1", f"{lab}_spin"),
                label(f"{lab}_spun")]

    for lab, e, replay, chk, sync in sc.sites:
        if sync and not chk:
            rare += [label(f"{lab}_rare")] + spin(lab) + [branch("s_branch", f"{lab}_back")]
    if P["check"]:
        for typ in (0, 1):
            mine = [(n, s) for n, s in enumerate(sc.sites) if buf(s[1], wp) == typ and s[3]]
            for n, (lab, e, replay, chk, sync) in mine:
                rare.append(label(f"{lab}_rare"))
                if sync:
                    rare += spin(lab)
                    rare += [raw(f"v_cmp_lt_f32 vcc, {sTh}, {vChk}"), raw("s_nop 4"), branch("s_cbranch_vccz", f"{lab}_back")]
                rare.append(salu("s_mov_b32", sRet, n))
                rare.append(salu("s_mov_b32", sT[10], 0 if e == NG - 1 else 1))
                rare.append(salu("s_mul_i32", sT[11], sPh, HEADK))
                if 2 <= e <= 5:
                    rare.append(salu("s_sub_u32", sT[12], 6, sCnt))
                    rare.append(salu("s_mul_i32", sT[12], sT[12], 4 * GRP))
                    rare.append(salu("s_add_u32", sT[11], sT[11], sT[12]))
                rare.append(salu("s_add_u32", sT[11], sT[11], e * GRP))
                rare.append(branch("s_branch", f"L_rare_{wp}_{typ}"))
            com = rare_common(wp, typ)
            Sim().run([(i, 0) for i in com])
            rare += com
            for n, (lab, e, replay, chk, sync) in mine:
                rare.append(scmp("s_cmp_eq_u32", sRet, n))
                rare.append(branch("s_cbranch_scc1", f"{lab}_replay"))
            rare.append(raw("s_endpgm"))
            for n, (lab, e, replay, chk, sync) in mine:
                rp = [label(f"{lab}_replay")]
                for k in replay:
                    rp += item_insts(k, wp, e)
                rp.append(raw("s_nop 4"))
                Sim().run([(i, 0) for i in rp])
                rare += rp
                rare.append(branch("s_branch", f"{lab}_back"))
    return static, dyn, rare


def main():
    pro = prologue()
    text = []
    body = []
    for wp in (0, 1):
        for pas in range(2):
            static, dyn, rare = build_phase(wp)
            for _ in range(2):
                sim = Sim()
                sim.run([(i, 0) for i in pro] + dyn(0) + dyn(1))
            for i in static:
                if i.kind == "wait" and i.note and (i.lgk is not None or i.vm is not None):
                    ACTIVE.add(i.note)
        if P["verbose"]:
            nn = sum(i.nop for i in static)
            print(f"wp{wp}: static insts {len(static)} nops {nn} max vq {sim.maxvq}", file=sys.stderr)
        body.append((static, rare))
    hdr = open("standalone__gqa_softmax__near_ridge.s.ref").read().splitlines()
    for ln in hdr:
        if ln.startswith("; @launch"):
            text.append(f"; @launch grid=(256,1,1) block=(256,1,1) lds={LDS_BYTES}")
        elif ln.startswith(";"):
            text.append(ln)
        else:
            break
    text += ["; Generated by gen/genk.py " + " ".join(sys.argv[2:]),
             '.amdgcn_target "amdgcn-amd-amdhsa--gfx950"', ".text", f".globl {NAME}", ".p2align 8",
             f".type {NAME},@function", f"{NAME}:"]
    text += render(pro)
    for static, rare in body:
        text += render(static)
    for static, rare in body:
        text += render(rare)
    text += ["L_end:", "    s_endpgm", '.section .rodata,"a"', ".p2align 6", f".amdhsa_kernel {NAME}",
             "  .amdhsa_next_free_vgpr 512", "  .amdhsa_next_free_sgpr 102", "  .amdhsa_accum_offset 256",
             "  .amdhsa_group_segment_fixed_size 0", "  .amdhsa_kernarg_size 48", "  .amdhsa_user_sgpr_count 2",
             "  .amdhsa_user_sgpr_kernarg_segment_ptr 1", "  .amdhsa_system_sgpr_workgroup_id_x 1", ".end_amdhsa_kernel", ""]
    open(sys.argv[1], "w").write("\n".join(text))


main()
```

```python
import sys, struct, math
sys.path.insert(0, "gen")
from asmlib import *

P = dict(
    LAT=4,
    LDSLAT=8,
    THR=20,
    check=1,
    stamp=0,
    pmap=0,
    stwave=404,
    verbose=0,
    nobar=0,
    ssync=1,
    BR=11,
    ARR=12,
    qst=1,
    kst=3,
    dsp=13,
    qlsp=8,
    qpre=10,
    ilv=1,
    kvmod="nt",
    qmod="",
    omod="sc0+sc1",
    omoda="",
)
for a in sys.argv[2:]:
    k, v = a.split("=")
    P[k] = type(P[k])(v) if k in P else v

NAME = "standalone__gqa_softmax__near_ridge_kernel"
ROWB = 384
GRP = 12288
HEADQ = 432 * ROWB
HEADK = 1024 * ROWB
KBASE, VBASE, RBASE = 0, 49152, 98304
RW = 16384
STGO = 6656
LDS_BYTES = RBASE + 4 * RW
NG = 32
MIDBAR = 40

sQ, sK, sV, sO = S(12, 4), S(16, 4), S(20, 4), S(24, 4)
sW, sKoff, sVoff, sCnt, sPh, sWb, sC, sTh, sRet = (S(i) for i in range(28, 37))
sRowOwn, sRowSh, sNRowOwn, sNRowSh = S(37), S(38), S(39), S(40)
sT = [S(i) for i in range(44, 60)]
sQp, sOp = S(4, 2), S(10, 2)
sWs = S(60, 4)
sStamp = S(64, 2)
sKR = S(76, 4)
sPF = S(80, 4)

vLane = V(1)
vKA = [V(2), V(3)]
vVA = [V(4 + i) for i in range(4)]
vDK, vDV = V(8), V(9)
vQO, vOO = V(10), V(11)
vL = [V(12 + t) for t in range(4)]
vLG = [[V(16 + 4 * b + t) for t in range(4)] for b in range(2)]
vT = [V(24 + i) for i in range(24)]
vCI = [V(48 + 4 * t, 4) for t in range(4)]
vS = [[V(64 + 8 * t + 4 * kt, 4) for kt in range(2)] for t in range(4)]
vP = [[V(96 + 16 * b + 4 * t, 4) for t in range(4)] for b in range(2)]
vVF = [V(128 + 4 * i, 4) for i in range(8)]
vQ = [[V(160 + 24 * t + 4 * s, 4) for s in range(6)] for t in range(4)]
aO = [[A(48 * t + 4 * dt, 4) for dt in range(12)] for t in range(4)]
aKF = [[A(192 + 24 * kt + 4 * s, 4) for s in range(6)] for kt in range(2)]
vChk = V(28)
vQoff = [V(24 + t) for t in range(4)]
vSt0, vSt1 = V(0), V(29)
vCa, vCr = V(46), V(30)
sTgt, sCm = S(93), S(94, 2)
CNT_ADDR = RBASE + 15360
ACTIVE = set()
vPFo = V(23)
sQSo, sQSm, sRg = S(84), S(89), S(90)


def vf(G, dt):
    return vVF[(dt + (4 if G == NG - 1 else 0)) % 8]


def f32bits(x):
    return struct.unpack("<I", struct.pack("<f", x))[0]


def mods(k):
    return "".join(" " + x for x in P[k].split("+") if x)


def tiles(G, wp):
    return [0, 1, 2, 3] if (G % 2) == wp else [0, 1, 2]


def buf(G, wp):
    return 0 if (G % 2) == wp else 1


def item_insts(key, wp, e):
    k = key[0]
    if k == "exp":
        _, G, t, kt, r = key
        x = vS[t][kt].sub(r)
        return [trans("v_exp_f32", x, x)]
    if k == "add":
        _, G, t, i = key
        lg = vLG[buf(G, wp)][t]
        if i == 0:
            return [valu("v_add_f32", lg, vS[t][0].sub(0), vS[t][0].sub(1))]
        j = i + 1
        return [valu("v_add_f32", lg, lg, vS[t][j // 4].sub(j % 4))]
    if k == "cvt":
        _, G, t, kt, h = key
        return [valu("v_cvt_pk_bf16_f32", vP[buf(G, wp)][t].sub(2 * kt + h), vS[t][kt].sub(2 * h), vS[t][kt].sub(2 * h + 1))]
    if k == "chkA":
        lg = vLG[buf(key[1], wp)]
        return [valu("v_max3_f32", vChk, lg[0], lg[1], lg[2])]
    if k == "chkB":
        lg = vLG[buf(key[1], wp)]
        return [valu("v_max_f32", vChk, vChk, lg[3])]
    if k == "chkC":
        return [Inst(f"v_cmp_lt_f32 vcc, {sTh}, {vChk}", "valu", rd=vChk.regs() + sTh.regs(), wr=["vcc"])]
    if k == "ladd":
        _, G, t = key
        lg = vLG[buf(G, wp)][t]
        first = (G == 0) if t < 3 else (G == wp)
        if first:
            return [valu("v_mov_b32", vL[t], lg)]
        return [valu("v_add_f32", vL[t], vL[t], lg)]
    if k == "vrd":
        _, G, dt, hf = key
        return [dsr("ds_read_b64_tr_b16", vf(G, dt).sub(2 * hf, 2), vVA[dt % 4], (G % 4) * GRP + hf * 6144 + (dt // 4) * 1024)]
    if k == "krd":
        _, G, kt, s = key
        return [dsr("ds_read_b128", aKF[kt][s], vKA[s % 2], (G % 4) * GRP + kt * 6144 + (s // 2) * 1024)]
    if k == "dmaV":
        _, G, cb = key
        return [bdma(vDV, sV, sVoff, cb * 128, tag=("V", G - e), mods=mods("kvmod"))]
    if k == "dmaK":
        _, G, cb = key
        return [bdma(vDK, sK, sKoff, cb * 128, tag=("K", G - e), mods=mods("kvmod"))]
    if k == "qadd":
        _, t = key
        if t < 3:
            return [valu("v_add_u32", vQoff[t], sT[t], vQO)]
        return [valu("v_add_u32", vQoff[t], sNRowSh, vQO)]
    if k == "qld":
        _, t, s = key
        return [bload(vQ[t][s], vQoff[t], sQ, 0, 64 * s, mods=mods("qmod"))]
    if k == "dmaQ":
        return [bdma(vPFo, sPF, sQSo, key[2] * 128, tag=("Q", -e), mods=mods("kvmod"))]
    if k == "arr":
        return [dsw("ds_inc_u32", vCa, vCa)]
    if k == "crd":
        return [dsr("ds_read_b32", vCr, vCa)]
    if k == "ccmp":
        return [Inst(f"v_cmp_gt_u32 {sCm}, {sTgt}, {vCr}", "valu", rd=vCr.regs() + sTgt.regs(), wr=sCm.regs())]
    if k == "pfa":
        return [valu("v_xor_b32", vPFo, S(87), vPFo)]
    if k == "qra":
        return [valu("v_add_u32", vQoff[key[1]], sRg, vKA[key[1]])]
    if k == "qrd":
        _, t, s = key
        return [dsr("ds_read_b128", vQ[t][s], vQoff[s % 2], t * 6144 + (s // 2) * 1024)]
    if k == "mx":
        _, t, i = key
        m, s0, s1 = vT[8 + 2 * t], vS[t][0], vS[t][1]
        m2 = vT[9 + 2 * t]
        if i == 0:
            return [valu("v_max3_f32", m, s0.sub(0), s0.sub(1), s0.sub(2))]
        if i == 1:
            return [valu("v_max3_f32", m, m, s0.sub(3), s1.sub(0))]
        if i == 2:
            return [valu("v_max3_f32", m, m, s1.sub(1), s1.sub(2))]
        if i == 3:
            return [valu("v_max_f32", m, m, s1.sub(3))]
        if i in (4, 7):
            return [valu("v_mov_b32", m2, m)]
        if i == 5:
            return [perm("v_permlane32_swap_b32", m, m2)]
        if i == 8:
            return [perm("v_permlane16_swap_b32", m, m2)]
        if i in (6, 9):
            return [valu("v_max_f32", m, m, m2)]
    if k == "ci":
        _, t, r = key
        return [valu("v_sub_f32", vCI[t].sub(r), 0, vT[8 + 2 * t])]
    if k == "sub":
        _, t, kt, r = key
        x = vS[t][kt].sub(r)
        return [valu("v_sub_f32", x, x, vT[8 + 2 * t])]
    raise KeyError(key)


def m0_for(key):
    k, G, cb = key
    if k == "dmaQ":
        return salu("s_add_u32", "m0", sQSm, cb * (1024 - 128))
    base = (KBASE if k == "dmaK" else VBASE) + (G % 4) * GRP + cb * (1024 - 128)
    return salu("s_add_u32", "m0", sWb, base)


CLS = dict(exp=("exp", 8), add=("valu", 4), cvt=("valu", 4), chkA=("valu", 4), chkB=("valu", 4), chkC=("valu", 4),
           ladd=("valu", 4), vrd=("lds", 4), krd=("lds", 4), dmaV=("dma", 8), dmaK=("dma", 8), qadd=("valu", 4),
           qld=("dma", 8), dmaQ=("dma", 8), arr=("lds", 4), crd=("lds", 4), ccmp=("valu", 4), pfa=("valu", 4), qra=("valu", 4), qrd=("lds", 4), mx=("valu", 4), ci=("valu", 4), sub=("valu", 4))


class Item:
    def __init__(self, key, hard, soft, dead, deps=()):
        self.key, self.hard, self.soft, self.dead = key, hard, max(hard, soft), dead
        self.deps = list(deps)
        self.cls, self.cost = CLS[key[0]]
        self.placed = None


class Region:
    def __init__(self, wp, e0, e1, regular=False, final=False):
        self.wp, self.e0, self.e1, self.regular, self.final = wp, e0, e1, regular, final
        self.mf = []
        self.qs, self.qe, self.pvs, self.pvu, self.pvd = {}, {}, {}, {}, {}
        self.kfl = {}
        self.ql = {}
        self.st, self.en = {}, {}
        last = NG - 1
        for e in range(e0, e1 + 1):
            self.st[e] = len(self.mf)
            G = e + 1
            if regular or G <= last:
                if e == -1:
                    order = [(t, kt) for t in range(4) for kt in range(2)]
                else:
                    order = [(t, kt) for kt in range(2) for t in tiles(G, wp)]
                for t, kt in order:
                    self.qs[(G, t, kt)] = len(self.mf)
                    for s in range(6):
                        self.kfl[(G, kt, s)] = len(self.mf)
                        self.ql[(t, s)] = len(self.mf)
                        self.mf.append((e, ("qk", G, t, kt, s)))
                    self.qe[(G, t, kt)] = len(self.mf) - 1
            else:
                self.mf.append((e, None))
            if e >= 0:
                self.pvs[e] = len(self.mf)
                for dt in range(12):
                    self.pvu[(e, dt)] = len(self.mf)
                    for t in tiles(e, wp):
                        self.mf.append((e, ("pv", e, t, dt)))
                    self.pvd[(e, dt)] = len(self.mf) - 1
            self.en[e] = len(self.mf) - 1
        self.n = len(self.mf)

    def has_sync(self, e):
        return bool(P["ssync"]) and (self.regular or 1 <= e <= NG - 2)

    def has_arr(self, e):
        return bool(P["ssync"]) and (self.regular or 0 <= e <= NG - 3)

    def chk_gap(self, e):
        if self.has_sync(e) and (self.regular or e >= 2):
            return self.st[e] + P["BR"]
        return self.pvs[e] - 1

    def sm_items(self, G, only=None, skip=None):
        wp = self.wp
        BIG = 10 ** 6
        items = {}
        pvs = self.chk_gap(G) + 1 if G in self.pvs else BIG

        def add(it):
            items[it.key] = it

        for t in tiles(G, wp):
            G2 = G + 1 if t < 3 else G + 2
            qd = {}
            for kt in range(2):
                ov = self.qs.get((G2, t, kt), BIG)
                qd[kt] = min(ov - 1, pvs - 6)
                qe = self.qe.get((G, t, kt), -1)
                for r in range(4):
                    deps = [("sub", t, kt, r)] if G == 0 and not self.regular else []
                    add(Item(("exp", G, t, kt, r), qe, qe + P["LAT"], qd[kt] - 3, deps))
                for h in range(2):
                    add(Item(("cvt", G, t, kt, h), qe, 0, qd[kt], [("exp", G, t, kt, 2 * h), ("exp", G, t, kt, 2 * h + 1)]))
            for i in range(7):
                j = i + 1
                deps = [("exp", G, t, j // 4, j % 4)]
                deps.append(("exp", G, t, 0, 0) if i == 0 else ("add", G, t, i - 1))
                add(Item(("add", G, t, i), -1, 0, qd[j // 4], deps))
            add(Item(("ladd", G, t), pvs, 0, self.en.get(G, BIG), [("add", G, t, 6)]))
        if P["check"] and (G > 0 or self.regular):
            add(Item(("chkA", G), -1, 0, pvs - 5, [("add", G, t, 6) for t in range(3)]))
            lastk = ("chkA", G)
            if len(tiles(G, wp)) == 4:
                add(Item(("chkB", G), -1, 0, pvs - 4, [lastk, ("add", G, 3, 6)]))
                lastk = ("chkB", G)
            add(Item(("chkC", G), -1, 0, pvs - 3, [lastk]))
        out = []
        for k, it in items.items():
            if only is not None and k not in only:
                continue
            if skip is not None and k in skip:
                continue
            out.append(it)
        return out

    def mem_items(self, e):
        items = []
        st, en = self.st[e], self.en[e]
        L = P["LDSLAT"]
        last = NG - 1
        st0 = st
        if self.has_sync(e):
            items.append(Item(("crd", e), st, st + 1, st + 2))
            items.append(Item(("ccmp", e), st + 3, st + P["BR"] - 3, st + P["BR"] - 2, [("crd", e)]))
            st = st + P["BR"]
        if self.has_arr(e):
            L = P["ARR"] + 1
        nrd = len(items)
        if e >= 0:
            for dt in range(12):
                if e == last and not self.regular:
                    early = max(self.st[e - 1] + MIDBAR + 1, self.pvd[(e - 1, dt + 4)]) if dt < 8 else self.pvd[(e, dt - 8)]
                else:
                    early = st if dt < 8 else self.pvd[(e, dt - 8)]
                for hf in range(2):
                    items.append(Item(("vrd", e, dt, hf), early, 0, max(early, min(self.pvu[(e, dt)] - 1 - P["LDSLAT"], en - L))))
        G = e + 2
        if self.regular or G <= last:
            for kt in range(2):
                for s in range(6):
                    early = max(self.kfl[(G - 1, kt, s)], st)
                    items.append(Item(("krd", G, kt, s), early, 0, max(early, en - L - P["kst"] * (11 - 6 * kt - s))))
        if self.has_arr(e):
            items.append(Item(("arr", e), st, en - P["ARR"] - 2, en - P["ARR"], [it.key for it in items[nrd:]]))
        dm = []
        if e >= 0 and not self.final and (self.regular or e < last):
            dm += [("dmaV", e + 3, cb) for cb in range(3)]
            if e == 0 and not self.regular:
                dm += [("dmaK", 4, cb) for cb in range(3)]
            dm += [("dmaK", e + 5, cb) for cb in range(3)]
        prev = None
        for j, k in enumerate(dm):
            sp = P["dsp"] * 6 // len(dm)
            it = Item(k, st + 1, st + 1 + sp * j, min(st + 4 + sp * j, en), [prev] if prev else [])
            items.append(it)
            prev = k
        if e == last and not self.regular and not self.final:
            pv = self.pvs[e]
            direct = [2, 3] if P["qst"] else [0, 1, 2, 3]
            if P["qst"]:
                for j in range(2):
                    items.append(Item(("qra", j), pv, 0, pv))
                for t in range(2):
                    for s in range(6):
                        items.append(Item(("qrd", t, s), pv, 0, en - 4, [("qra", s % 2)]))
            self.qleft = []
            n = 0
            for t in direct:
                items.append(Item(("qadd", t), pv, 0, pv + 1))
                for s in range(6):
                    at = pv + 2 + n * P["qlsp"]
                    if at <= en:
                        items.append(Item(("qld", t, s), pv, at, min(at + 2, en), [("qadd", t)]))
                    else:
                        self.qleft.append(("qld", t, s))
                    n += 1
        if e == -1:
            for t in range(4):
                qe = self.qe[(0, t, 1)]
                dead = self.qs.get((1, t, 0), self.qs.get((2, t, 0), en + 1)) - 1
                dead = min(dead, self.en[0])
                for i in range(10):
                    items.append(Item(("mx", t, i), qe, qe + P["LAT"], dead - 8, [("mx", t, i - 1)] if i else []))
                for r in range(4):
                    items.append(Item(("ci", t, r), qe, 0, dead - 1, [("mx", t, 9)]))
                if t in tiles(0, self.wp):
                    for kt in range(2):
                        for r in range(4):
                            items.append(Item(("sub", t, kt, r), qe, 0, dead - 6, [("mx", t, 9)]))
        return items

    def schedule(self, items):
        byk = {it.key: it for it in items}
        for i, it in enumerate(items):
            it.seq = i
            it.deps = [byk[d] for d in it.deps if d in byk]
        gaps = [[] for _ in range(self.n)]
        pending = list(items)
        self.over = 0
        lastdma = -10
        lastb128 = -10

        def ready(it, g, soft=True):
            if (it.soft if soft else it.hard) > g:
                return False
            for d in it.deps:
                if d.placed is None:
                    return False
                if d.placed == g and not (d.cls == "valu" and it.cls in ("valu", "exp")) and soft:
                    return False
            return True

        for g in range(self.n):
            cap = 8
            nl = 0

            def put(it):
                nonlocal cap, nl, lastdma, lastb128
                it.placed = g
                gaps[g].append(it)
                pending.remove(it)
                cap -= it.cost
                if it.cls == "lds":
                    nl += 1
                    if it.key[0] in ("krd", "qrd"):
                        lastb128 = g
                if it.key[0] in ("dmaK", "dmaV"):
                    lastdma = g

            def force(it):
                for d in it.deps:
                    if d.placed is None:
                        force(d)
                assert it.hard <= g, (it.key, it.hard, g)
                put(it)

            def fits(it, pair=False):
                if it.cost > cap:
                    return False
                if it.cls == "lds":
                    big = it.key[0] in ("krd", "qrd")
                    if nl >= 1 and (big or lastb128 == g or not pair):
                        return False
                    if big and lastb128 == g - 1:
                        return False
                if it.key[0] in ("dmaK", "dmaV") and lastdma >= g - 1:
                    return False
                return True

            for it in sorted([x for x in pending if x.dead <= g], key=lambda x: (x.dead, x.seq)):
                if it.placed is None:
                    force(it)
            while cap > 0:
                c = sorted([x for x in pending if ready(x, g) and fits(x)], key=lambda x: (x.dead, x.seq))
                if not c:
                    c = sorted([x for x in pending if ready(x, g) and fits(x, True)], key=lambda x: (x.dead, x.seq))
                    if not c:
                        break
                top = c[0]
                if cap == 8 and top.cost == 4:
                    lds = [x for x in c if x.cls == "lds"]
                    val = [x for x in c if x.cls == "valu"]
                    big = [x for x in c if x.cost == 8]
                    if top.cls == "lds":
                        haspartner = bool(val)
                    else:
                        haspartner = bool(lds) or len(val) > 1 or any(top in x.deps and x.cls == "valu" and all(d is top or d.placed is not None for d in x.deps) for x in pending)
                    if not haspartner and big and top.dead > g + 3:
                        put(big[0])
                        continue
                    put(top)
                    if top.cls == "valu" and lds and fits(lds[0]):
                        put(lds[0])
                    continue
                put(top)
            if cap < 0 and self.mf[g][1] is not None:
                self.over += -cap
        self.left = pending
        self.gaps = gaps
        return gaps


def mf_inst(key, wp, regular=False):
    if key[0] == "qk":
        _, G, t, kt, s = key
        d = vS[t][kt]
        c = d if s else (0 if (G == 0 and not regular) else vCI[t])
        return mfma(d, aKF[kt][s], vQ[t][s], c)
    _, G, t, dt = key
    first = (G == 0) if t < 3 else (G == wp)
    d = aO[t][dt]
    return mfma(d, vf(G, dt), vP[buf(G, wp)][t], 0 if first else d)


def relkey(key, e):
    if key[0] in ("qadd", "qld", "mx", "ci", "sub", "qra", "qrd"):
        return key
    return (key[0], key[1] - e) + key[2:]


def abskey(key, e):
    return (key[0], key[1] + e) + key[2:]


def steady_template(wp):
    R = Region(wp, 2, 21, regular=True)
    items = []
    for G in range(3, 23):
        items += R.sm_items(G)
    for e in range(2, 22):
        items += R.mem_items(e)
    gaps = R.schedule(items)
    tm = {}
    for e in range(8, 18):
        cur = [[relkey(it.key, e) for it in gaps[g]] for g in range(R.st[e], R.en[e] + 1)]
        if e % 2 in tm:
            assert tm[e % 2] == cur, f"template not periodic at step {e}"
        tm[e % 2] = cur
    if P["verbose"]:
        for par in (0, 1):
            use = sum(CLS[k[0]][1] for g in tm[par] for k in g)
            ov = sum(max(0, sum(CLS[k[0]][1] for k in g) - 8) for g in tm[par])
            print(f"wp{wp} step parity {par}: fill {use}/{8 * len(tm[par])} overflow {ov}", file=sys.stderr)
            if P["verbose"] > 1:
                for i, g in enumerate(tm[par]):
                    print(i, g, file=sys.stderr)
    return tm


class StepCode:
    def __init__(self, wp):
        self.wp = wp
        self.sites = []

    def emit(self, mf, gapkeys, e, tagname, chk, sync, end_need, arr_need=None, extra=(), midbar=None):
        wp = self.wp
        G = []
        if not P["check"]:
            chk = None
        for i, mk in enumerate(mf):
            g = dict(mf=mf_inst(mk, wp) if mk else None, wait=waitsite(), salu=[], mem=[], val=[], keys=gapkeys[i], fix=0)
            g["wait"].note = (tagname, i)
            if (tagname, i) in ACTIVE:
                g["fix"] += 1
            if i in (chk, sync):
                g["fix"] += 1
            for k in gapkeys[i]:
                cls = CLS[k[0]][0]
                (g["mem"] if cls in ("lds", "dma") else g["val"]).append((k, item_insts(k, wp, e)))
                if k[0] == "arr":
                    g["wait"].need = dict(vm=arr_need)
            G.append(g)

        def room(g):
            used = sum(CLS[k[0]][1] for k in g["keys"])
            return 1 + max(0, 8 - used) // 4 - g["fix"] - len(g["salu"])

        def place(lo, hi, ins, latest=False):
            hi = min(hi, len(G) - 1)
            r = list(range(lo, hi + 1))
            if latest:
                r.reverse()
            c = [j for j in r if room(G[j]) >= len(ins)] or [r[0]]
            G[c[0]]["salu"] += ins
            return c[0]

        DM = ("dmaK", "dmaV", "dmaQ")
        late = []
        if sync is not None:
            cg = max(i for i, g in enumerate(G[:sync]) if any(k[0] in ("ccmp", "chkC") for k in g["keys"]))
            assert cg + 1 <= sync - 1
            if chk == sync:
                place(cg + 1, sync - 1, [Inst(f"s_or_b64 vcc, vcc, {sCm}", "salu", rd=sCm.regs() + ["vcc"], wr=["vcc"])], latest=True)
            late.append((sync + 1, len(G) - 1, [salu("s_add_u32", sTgt, sTgt, 4)]))
        prevd = -1
        for i, g in enumerate(G):
            newmem = []
            for k, ins in g["mem"]:
                if k[0] in DM:
                    if prevd + 1 <= i - 1:
                        place(prevd + 1, i - 1, [m0_for(k)], latest=True)
                    else:
                        newmem.append((None, [m0_for(k)]))
                    prevd = i
                    newmem.append((k, ins))
                    if k[2] == 2 and k[0] != "dmaQ":
                        so = sKoff if k[0] == "dmaK" else sVoff
                        upd = salu("s_add_u32", so, so, GRP)
                        nxt = [j for j in range(i + 1, len(G)) if any(kk and kk[0] == k[0] for kk, _ in G[j]["mem"])]
                        lim = nxt[0] if nxt else len(G) - 1
                        late.append((i + 1, lim, [upd]))
                else:
                    newmem.append((k, ins))
            g["mem"] = newmem
        for lo, hi, ins in late:
            place(lo, hi, ins)
        for lo, hi, groups in extra:
            for ins in groups:
                lo = place(lo, hi, ins)
        self.over = getattr(self, "over", 0) + sum(max(0, -room(g)) for g in G if g["mf"] is not None and 2 <= e <= 5)
        out = []
        for i, g in enumerate(G):
            if g["mf"] is not None:
                out.append(g["mf"])
            out.append(g["wait"])
            if g["mf"] is not None and i in (chk, sync):
                out += self.site(e, tagname, G[:i], i == chk, i == sync)
            out += g["salu"]
            for _, ins in g["mem"]:
                out += ins
            for _, ins in g["val"]:
                out += ins
            if g["mf"] is None:
                if i == chk:
                    out.append(raw("s_nop 4"))
                    out += self.site(e, tagname, G[:i + 1], True, False)
                out.append(waitsite(dict(vm=[("Q", -e + 4 * j) for j in range(7)])))
            if midbar is not None and i == MIDBAR:
                out.append(waitsite(dict(vm=midbar)))
                out.append(barrier())
        if end_need is not None:
            out.append(waitsite(dict(lgkm0=True, vm=end_need)))
            out.append(barrier() if not (P["nobar"] and 2 <= e <= 5) else raw("s_nop 0"))
        return out

    def site(self, e, tagname, done_gaps, chk, sync):
        replay = [k for g in done_gaps for k in g["keys"] if k[0] in ("exp", "add", "cvt") and k[1] == e + 1]
        lab = f"L_{tagname}{'c' if chk else ''}{'s' if sync else ''}"
        self.sites.append((lab, e, replay, chk, sync))
        if sync and not chk:
            return [raw(f"s_cmp_lg_u64 {sCm}, 0", kind="salu", rd=sCm.regs()), branch("s_cbranch_scc1", f"{lab}_rare"), label(f"{lab}_back")]
        return [branch("s_cbranch_vccnz", f"{lab}_rare"), label(f"{lab}_back")]


def stamp(idx):
    if not P["stamp"]:
        return []
    if P["stamp"] == 3:
        return [raw("s_memrealtime s[68:69]"), raw("s_waitcnt lgkmcnt(0)"), salu("s_sub_u32", S(64), S(68), S(72)),
                valu("v_mov_b32", vSt0, S(64)), valu("v_mov_b32", vSt1, S(66)), bstore(vSt0, vSt1, sWs, 0, 4 * idx), raw("s_nop 1")]
    if P["stamp"] == 2:
        o = [raw("s_memrealtime s[68:69]"), raw("s_waitcnt lgkmcnt(0)"), salu("s_sub_u32", S(64), S(68), S(72)),
             valu("v_mov_b32", vSt0, S(64)), valu("v_mov_b32", vSt1, S(66)),
             raw("s_mov_b64 exec, 1"),
             Inst(f"buffer_atomic_umax {vSt0}, {vSt1}, {sWs}, 0 offen offset:{4 * idx}", "vst", rd=vSt0.regs() + vSt1.regs())]
        if idx == 5:
            o += [raw("s_nop 1"), valu("v_mov_b32", vSt0, S(68)), valu("v_mov_b32", vSt1, 0),
                  Inst(f"buffer_atomic_umax {vSt0}, {vSt1}, {sWs}, 0 offen offset:48", "vst", rd=vSt0.regs() + vSt1.regs()),
                  raw("s_nop 1"), salu("s_not_b32", S(64), S(72)), valu("v_mov_b32", vSt0, S(64)),
                  Inst(f"buffer_atomic_umax {vSt0}, {vSt1}, {sWs}, 0 offen offset:52", "vst", rd=vSt0.regs() + vSt1.regs())]
        o += [raw("s_mov_b64 exec, -1"), raw("s_nop 4")]
        return o
    return [raw(f"s_memtime {sStamp}"), raw("s_memrealtime s[68:69]"), raw("s_waitcnt lgkmcnt(0)"),
            valu("v_mov_b32", vSt0, S(64)), valu("v_mov_b32", vSt1, S(66)),
            bstore(vSt0, vSt1, sWs, 0, 4 * idx), raw("s_nop 1"),
            valu("v_mov_b32", vSt0, S(68)), bstore(vSt0, vSt1, sWs, 0, 4 * idx + 32), raw("s_nop 1")]


def q_chunk(t, s):
    out = [waitsite()]
    q = vQ[t][s]
    tb = 152
    for r in range(4):
        out.append(valu("v_lshlrev_b32", V(tb + 2 * r), 16, q.sub(r)))
        out.append(valu("v_and_b32", V(tb + 2 * r + 1), "0xffff0000", q.sub(r)))
    for r in range(4):
        pr = V(tb + 2 * r, 2)
        out.append(Inst(f"v_pk_mul_f32 {pr}, {pr}, {S(42, 2)}", "valu", rd=pr.regs() + ["s42", "s43"], wr=pr.regs()))
    for r in range(4):
        out.append(valu("v_cvt_pk_bf16_f32", q.sub(r), V(tb + 2 * r), V(tb + 2 * r + 1)))
    return out


def dma_piece(kind, G, cb, e=0):
    k = (kind, G, cb)
    r = [m0_for(k)] + item_insts(k, 0, e)
    if cb == 2:
        so = sKoff if kind == "dmaK" else sVoff
        r.append(salu("s_add_u32", so, so, GRP))
    return r


def lane_reduce(x, tmp, op):
    return [valu("v_mov_b32", tmp, x), perm("v_permlane32_swap_b32", x, tmp), valu(op, x, x, tmp),
            valu("v_mov_b32", tmp, x), perm("v_permlane16_swap_b32", x, tmp), valu(op, x, x, tmp)]


def epilogue(wp, final):
    out = [waitsite()]
    for t in (3, 0, 1, 2):
        out += lane_reduce(vL[t], vT[8 + t], "v_add_f32")
        if t == 3:
            send = range(6 * (1 - wp), 6 * (1 - wp) + 6)
            xa, xb = vT[12], vT[13]
            out.append(salu("s_mov_b32", sT[4], sRg))
            out.append(salu("s_xor_b32", sT[5], sRg, RW))
            out.append(valu("v_lshl_add_u32", xa, vLane, 4, sT[4]))
            out.append(valu("v_lshl_add_u32", xb, vLane, 4, sT[5]))
            ml = V(vT[14].b, 2)
            out.append(valu("v_mov_b32", vT[14], vCI[3].sub(0)))
            out.append(valu("v_mov_b32", vT[15], vL[3]))
            out.append(valu("v_lshl_add_u32", vT[16], vLane, 3, sT[4]))
            out.append(valu("v_lshl_add_u32", vT[17], vLane, 3, sT[5]))
            for j, dt in enumerate(send):
                out.append(dsw("ds_write_b128", xa, aO[3][dt], 1024 * j))
            out.append(dsw("ds_write_b64", vT[16], ml, 6144))
    sw, sr, go = vT[4], vT[6], vT[7]
    out.append(salu("s_add_u32", sT[4], sRg, STGO))
    out.append(valu("v_and_b32", vT[8], 15, vLane))
    out.append(valu("v_lshlrev_b32", vT[8], 4, vT[8]))
    out.append(valu("v_add3_u32", sw, vOO, vT[8], sT[4]))
    out.append(valu("v_lshrrev_b32", vT[8], 3, vLane))
    out.append(valu("v_and_b32", vT[9], 7, vLane))
    out.append(valu("v_lshlrev_b32", vT[9], 4, vT[9]))
    out.append(valu("v_mul_u32_u24", vT[10], 400, vT[8]))
    out.append(valu("v_add3_u32", sr, vT[10], vT[9], sT[4]))
    out.append(valu("v_mul_u32_u24", vT[10], ROWB, vT[8]))
    out.append(valu("v_add3_u32", go, vT[10], vT[9], sRowOwn))
    out.append(waitsite(dict(lgkm0=True, vm=[] if final else [("K", 32), ("K", 33)])))
    out.append(barrier())
    X = [V(128 + 4 * j, 4) for j in range(6)]
    oml = V(vT[18].b, 2)
    out.append(dsr("ds_read_b64", oml, vT[17], 6144))
    for j in range(6):
        out.append(dsr("ds_read_b128", X[j], xb, 1024 * j))
    if not final:
        for cb in range(3):
            out += dma_piece("dmaV", 34, cb)
        for kt in range(2):
            for s in range(6):
                out += item_insts(("krd", 0, kt, s), wp, 0)
    pre = out

    def pack(src, k):
        d = V(96 + 4 * (k % 2), 4)
        o = [valu("v_cvt_pk_bf16_f32", d.sub(i), src[2 * i], src[2 * i + 1]) for i in range(4)]
        sw_ = [perm("v_permlane16_swap_b32", d.sub(0), d.sub(2)), perm("v_permlane16_swap_b32", d.sub(1), d.sub(3))]
        return o, sw_, d

    chunks = []
    k = 0
    tail = []
    RB = [V(104 + 4 * j, 4) for j in range(6)]

    def readback():
        return [dsr("ds_read_b128", RB[j], sr, (j // 3) * 3200 + (j % 3) * 128) for j in range(6)]

    def store(j):
        o = [waitsite(), bstore(RB[j], go, sO, 0, (j // 3) * 3072 + (j % 3) * 128, mods=mods("omod" if final else "omoda"))]
        if j == 5:
            o.append(valu("v_add_u32", go, 6144, go))
        return o

    for t in range(3):
        inv = V(vT[20].b, 2)
        for p in range(6):
            c = []
            if p == 0:
                c.append(trans("v_rcp_f32", vT[20], vL[t]))
            base = 64 + 8 * (k % 4)
            src = [V(base + i) for i in range(8)]
            for i in range(8):
                c.append(valu("v_accvgpr_read_b32", src[i], aO[t][2 * p + i // 4].sub(i % 4)))
            if p == 0:
                c.append(valu("v_mov_b32", vT[21], vT[20]))
            c += tail
            if p == 0 and t > 0:
                c += readback()
            for i in range(4):
                pr = V(base + 2 * i, 2)
                c.append(Inst(f"v_pk_mul_f32 {pr}, {pr}, {inv}", "valu", rd=pr.regs() + inv.regs(), wr=pr.regs()))
            o, sw_, d = pack(src, k)
            c += o
            tail = sw_ + [dsw("ds_write_b128", sw, d, 64 * p)]
            if t > 0:
                c += store(p)
            chunks.append(c)
            k += 1
    c = [waitsite()]
    nm_own, nm_oth, l_oth = vCI[3].sub(0), vT[18], vT[19]
    M = vT[8]
    fo, fx = vT[9], vT[10]
    c.append(valu("v_min_f32", M, nm_own, nm_oth))
    c.append(valu("v_sub_f32", fo, M, nm_own))
    c.append(valu("v_sub_f32", fx, M, nm_oth))
    c += tail + readback()
    tail = []
    c.append(trans("v_exp_f32", fo, fo))
    c.append(trans("v_exp_f32", fx, fx))
    c.append(valu("v_add_u32", vT[5], sRowSh, vOO))
    c.append(valu("v_mul_f32", vT[11], vL[3], fo))
    c.append(valu("v_fma_f32", vT[11], l_oth, fx, vT[11]))
    c.append(trans("v_rcp_f32", vT[11], vT[11]))
    c.append(valu("v_mul_f32", fo, fo, vT[11]))
    c.append(valu("v_mul_f32", fx, fx, vT[11]))
    for p3 in range(3):
        p = 3 * wp + p3
        base = 64 + 8 * (k % 4)
        src = [V(base + i) for i in range(8)]
        for i in range(8):
            c.append(valu("v_accvgpr_read_b32", src[i], aO[3][2 * p + i // 4].sub(i % 4)))
        c += tail
        for i in range(8):
            c.append(valu("v_mul_f32", src[i], src[i], fo))
        c += store(2 * p3)
        for i in range(8):
            c.append(valu("v_fma_f32", src[i], X[2 * p3 + i // 4].sub(i % 4), fx, src[i]))
        o, sw_, d = pack(src, k)
        c += o
        c += store(2 * p3 + 1)
        tail = sw_ + [bstore(d, vT[5], sO, 0, 64 * p, mods=mods("omod" if final else "omoda"))]
        chunks.append(c)
        c = []
        k += 1
    chunks.append(tail)
    return pre, chunks


def phase_setup():
    o = []
    o.append(salu("s_add_u32", sT[4], sT[8], sPh))
    o.append(salu("s_mul_i32", sT[5], sT[4], HEADQ))
    o.append(salu("s_add_u32", S(24), S(10), sT[5]))
    o.append(salu("s_addc_u32", S(25), S(11), 0))
    o.append(salu("s_mov_b32", sRowOwn, sNRowOwn))
    o.append(salu("s_mov_b32", sRowSh, sNRowSh))
    o += next_q_setup(1)
    o.append(salu("s_mov_b32", S(80), S(12)))
    o.append(salu("s_mov_b32", S(81), S(13)))
    o.append(salu("s_mov_b32", S(82), 0))
    o.append(salu("s_mov_b32", S(85), 2 * HEADK))
    o.append(salu("s_mov_b32", S(87), 0))
    o.append(salu("s_mov_b32", S(91), 0))
    o.append(salu("s_mov_b32", sQSo, sNRowOwn))
    o.append(salu("s_mov_b32", sQSm, sRg))
    o.append(salu("s_lshr_b32", S(96), S(14), 6))
    o.append(salu("s_sub_u32", S(97), 1, sPh))
    return o


def next_q_setup(d):
    o = []
    o.append(salu("s_add_u32", sT[4], sPh, d))
    o.append(salu("s_xor_b32", sT[5], sT[4], sT[9]))
    o.append(salu("s_and_b32", sT[5], sT[5], 1))
    o.append(salu("s_mul_i32", sT[5], sT[5], 224 * ROWB))
    o.append(salu("s_mov_b32", sT[7], sT[5]))
    o.append(salu("s_mul_i32", sT[6], sW, 48 * ROWB))
    o.append(salu("s_add_u32", sNRowOwn, sT[5], sT[6]))
    o.append(salu("s_lshr_b32", sT[6], sW, 1))
    o.append(salu("s_mul_i32", sT[6], sT[6], 16 * ROWB))
    o.append(salu("s_add_u32", sT[6], sT[6], 192 * ROWB))
    o.append(salu("s_add_u32", sNRowSh, sT[5], sT[6]))
    o.append(salu("s_mov_b32", sT[0], sNRowOwn))
    o.append(salu("s_add_u32", sT[1], sNRowOwn, 6144))
    o.append(salu("s_add_u32", sT[2], sNRowOwn, 12288))
    o.append(scmp("s_cmp_lt_u32", sT[4], 2))
    o.append(salu("s_cselect_b32", S(14), HEADQ, 0))
    o.append(salu("s_min_u32", sT[4], sT[4], 1))
    o.append(salu("s_add_u32", sT[4], sT[4], sT[8]))
    o.append(salu("s_mul_i32", sT[5], sT[4], HEADQ))
    o.append(salu("s_add_u32", S(12), S(4), sT[5]))
    o.append(salu("s_addc_u32", S(13), S(5), 0))
    return o


def prologue():
    o = []
    o.append(scmp("s_cmp_ge_u32", S(2), 256))
    o.append(branch("s_cbranch_scc1", "L_end"))
    o.append(raw("s_load_dwordx4 s[4:7], s[0:1], 0"))
    o.append(raw("s_load_dwordx4 s[8:11], s[0:1], 16"))
    if P["stamp"]:
        o.append(raw(f"s_load_dwordx2 s[60:61], s[0:1], {40 if P['stamp'] == 1 else 32}"))
        o.append(raw("s_memtime s[70:71]"))
        o.append(raw("s_memrealtime s[72:73]"))
    o.append(valu("v_lshrrev_b32", vT[0], 6, V(0)))
    o.append(valu("v_and_b32", vLane, 63, V(0)))
    o.append(rfl(sW, vT[0]))
    o.append(salu("s_lshr_b32", sT[4], S(2), 4))
    o.append(salu("s_and_b32", sT[5], S(2), 7))
    if P["pmap"] == 0:
        o.append(salu("s_lshl_b32", sT[4], sT[4], 3))
    else:
        o.append(salu("s_lshl_b32", sT[5], sT[5], 4))
    o.append(salu("s_add_u32", sT[4], sT[4], sT[5]))
    o.append(salu("s_lshl_b32", sT[8], sT[4], 1))
    o.append(salu("s_lshr_b32", sT[9], S(2), 3))
    o.append(salu("s_and_b32", sT[9], sT[9], 1))
    o.append(salu("s_mul_i32", sT[7], sT[4], 2 * HEADK))
    o.append(salu("s_mul_i32", sWb, sW, 3072))
    o.append(salu("s_mov_b32", sPh, 0))
    o.append(salu("s_mov_b32", sKoff, 0))
    o.append(salu("s_mov_b32", sVoff, 0))
    c = f32bits(math.log2(math.e) / math.sqrt(192.0))
    o.append(salu("s_mov_b32", S(42), hex(c)))
    o.append(salu("s_mov_b32", S(43), hex(c)))
    o.append(salu("s_mov_b32", sTh, hex(f32bits(2.0 ** P["THR"]))))
    l = vLane
    t0, t1, t2, t3 = vT[0], vT[1], vT[2], vT[3]
    o.append(valu("v_lshrrev_b32", t0, 3, l))
    o.append(salu("s_lshl_b32", sT[5], sW, 3))
    o.append(valu("v_add_u32", t0, sT[5], t0))
    o.append(valu("v_mul_u32_u24", t1, ROWB, t0))
    o.append(valu("v_and_b32", t2, 7, l))
    o.append(valu("v_bfe_u32", t3, t0, 1, 3))
    o.append(valu("v_xor_b32", t3, t3, t2))
    o.append(valu("v_lshl_add_u32", vDK, t3, 4, t1))
    o.append(valu("v_bfe_u32", t3, t0, 1, 2))
    o.append(valu("v_lshlrev_b32", t3, 1, t3))
    o.append(valu("v_xor_b32", t3, t3, t2))
    o.append(valu("v_lshl_add_u32", vDV, t3, 4, t1))
    o.append(raw("s_waitcnt lgkmcnt(0)"))
    o.append(salu("s_add_u32", S(16), S(6), sT[7]))
    o.append(salu("s_addc_u32", S(17), S(7), 0))
    o.append(salu("s_mov_b32", S(18), 2 * HEADK))
    o.append(salu("s_mov_b32", S(19), "0x20000"))
    o.append(salu("s_add_u32", S(20), S(8), sT[7]))
    o.append(salu("s_addc_u32", S(21), S(9), 0))
    o.append(salu("s_mov_b32", S(22), 2 * HEADK))
    o.append(salu("s_mov_b32", S(23), "0x20000"))
    o.append(salu("s_mov_b32", S(15), "0x20000"))
    o.append(salu("s_mov_b32", S(26), HEADQ))
    o.append(salu("s_mov_b32", S(27), "0x20000"))
    if P["stamp"]:
        o.append(salu("s_mov_b32", S(62), "0x100000" if P["stamp"] == 1 else 256))
        o.append(salu("s_mov_b32", S(63), "0x20000"))
        o.append(salu("s_lshl_b32", S(66), S(2), 2))
        o.append(salu("s_add_u32", S(66), S(66), sW))
        o.append(salu("s_lshl_b32", S(66), S(66), 8))
        if P["stamp"] == 3:
            o.append(scmp("s_cmp_eq_u32", S(66), P["stwave"] * 256))
            o.append(salu("s_cselect_b32", S(62), 256, 0))
        if P["stamp"] >= 2:
            o.append(salu("s_mov_b32", S(66), 0))

    for i in range(4):
        o.append(salu("s_mov_b32", S(76 + i), S(16 + i)))
    o.append(salu("s_mov_b32", S(83), "0x20000"))
    o.append(salu("s_lshl_b32", sRg, sW, 14))
    o.append(salu("s_add_u32", sRg, sRg, RBASE))

    def dma_group(kind, G):
        return [i for cb in range(3) for i in dma_piece(kind, G, cb)]

    o += dma_group("dmaK", 0)
    o += dma_group("dmaK", 1)
    o.append(valu("v_and_b32", t0, 15, l))
    o.append(valu("v_lshrrev_b32", t1, 4, l))
    o.append(valu("v_mul_u32_u24", t2, ROWB, t0))
    o.append(valu("v_lshl_add_u32", vQO, t1, 4, t2))
    o += next_q_setup(0)
    for t in range(4):
        o += item_insts(("qadd", t), 0, 0)
    for i in range(P["qpre"]):
        o += item_insts(("qld", i // 6, i % 6), 0, 0)
    t0, t1, t2, t3 = vT[4], vT[5], vT[6], vT[7]
    o.append(valu("v_and_b32", t0, 15, l))
    o.append(valu("v_lshrrev_b32", t1, 4, l))
    o.append(valu("v_mul_u32_u24", t2, ROWB, t0))
    o.append(valu("v_and_b32", t3, 1, t1))
    o.append(valu("v_lshl_add_u32", t2, t3, 5, t2))
    o.append(valu("v_lshrrev_b32", t3, 1, t1))
    o.append(valu("v_lshl_add_u32", vOO, t3, 4, t2))
    o.append(valu("v_lshrrev_b32", t2, 3, l))
    o.append(valu("v_mul_u32_u24", t2, ROWB, t2))
    o.append(valu("v_and_b32", t3, 7, l))
    o.append(valu("v_xor_b32", t3, t3, t1))
    o.append(valu("v_lshl_add_u32", vPFo, t3, 4, t2))
    o.append(valu("v_lshrrev_b32", t2, 3, t0))
    o.append(valu("v_mul_u32_u24", t2, 3072, t2))
    o.append(valu("v_and_b32", t3, 7, t0))
    o.append(valu("v_lshl_add_u32", t2, t3, 7, t2))
    o.append(valu("v_lshrrev_b32", t3, 1, t0))
    o.append(valu("v_xor_b32", t3, t3, t1))
    o.append(valu("v_lshl_add_u32", vKA[0], t3, 4, t2))
    if KBASE:
        o.append(valu("v_add_u32", vKA[0], KBASE, vKA[0]))
    o.append(valu("v_xor_b32", vKA[1], 64, vKA[0]))
    o.append(valu("v_lshrrev_b32", t2, 2, t0))
    o.append(valu("v_and_b32", t3, 1, t1))
    o.append(valu("v_lshl_add_u32", t2, t3, 2, t2))
    o.append(valu("v_lshrrev_b32", t3, 1, t1))
    o.append(valu("v_mul_u32_u24", t3, 3072, t3))
    o.append(valu("v_lshl_add_u32", t3, t2, 7, t3))
    o.append(valu("v_and_b32", t0, 3, l))
    o.append(valu("v_lshl_add_u32", t3, t0, 3, t3))
    o.append(valu("v_add_u32", t3, VBASE, t3))
    o.append(valu("v_lshrrev_b32", t2, 1, t2))
    o.append(valu("v_lshl_add_u32", vVA[0], t2, 5, t3))
    for j in range(1, 4):
        o.append(valu("v_xor_b32", vVA[j], 32 * j, vVA[0]))
    if P["stamp"] == 1:
        o += [valu("v_mov_b32", vSt0, S(70)), valu("v_mov_b32", vSt1, S(66)), bstore(vSt0, vSt1, sWs, 0, 4 * 6), raw("s_nop 1"),
              valu("v_mov_b32", vSt0, S(72)), bstore(vSt0, vSt1, sWs, 0, 4 * 6 + 32), raw("s_nop 1")]
    o += cnt_addr()
    o.append(valu("v_mov_b32", vCr, 0))
    o.append(dsw("ds_write_b32", vCa, vCr))
    o.append(salu("s_mov_b32", sTgt, 4))
    o.append(salu("s_and_b32", sT[4], sW, 1))
    o.append(scmp("s_cmp_eq_u32", sT[4], 1))
    o.append(branch("s_cbranch_scc1", "L_start_1"))
    return o


def cnt_addr():
    return [salu("s_mov_b32", sT[12], CNT_ADDR), valu("v_lshl_add_u32", vCa, vLane, 2, sT[12])]


def rare_common(wp, typ):
    Gp = wp if typ == 0 else 1 - wp
    o = [label(f"L_rare_{wp}_{typ}"), raw("s_nop 15"), raw("s_nop 15")]
    kt_ = [V(vT[0].b + 4 * s, 4) for s in range(6)]
    ka = V(0)

    def recompute(G, soff, cfun):
        r = []
        for kt in range(2):
            r.append(valu("v_add_u32", ka, 6144 * kt, vQO))
            for s in range(6):
                r.append(bload(kt_[s], ka, sKR, soff, 64 * s))
            r.append(raw("s_waitcnt vmcnt(0)"))
            r.append(waitsite(dict(vm0=True)))
            for t in tiles(G, wp):
                for s in range(6):
                    r.append(mfma(vS[t][kt], kt_[s], vQ[t][s], vS[t][kt] if s else cfun(t)))
            r.append(raw("s_nop 15"))
        return r

    o += recompute(Gp, sT[11], lambda t: 0)
    m, m2, f = vT[0], vT[1], vT[2]
    for t in tiles(Gp, wp):
        s0, s1 = vS[t]
        o.append(valu("v_max3_f32", m, s0.sub(0), s0.sub(1), s0.sub(2)))
        o.append(valu("v_max3_f32", m, m, s0.sub(3), s1.sub(0)))
        o.append(valu("v_max3_f32", m, m, s1.sub(1), s1.sub(2)))
        o.append(valu("v_max_f32", m, m, s1.sub(3)))
        o += lane_reduce(m, m2, "v_max_f32")
        o.append(valu("v_sub_f32", m2, 0, vCI[t].sub(0)))
        o.append(valu("v_max_f32", m, m, m2))
        o.append(valu("v_sub_f32", f, m2, m))
        o.append(trans("v_exp_f32", f, f))
        for r in range(4):
            o.append(valu("v_sub_f32", vCI[t].sub(r), 0, m))
        o.append(valu("v_mul_f32", vL[t], vL[t], f))
        for dt in range(12):
            for r in range(4):
                o.append(valu("v_accvgpr_read_b32", vT[4 + r], aO[t][dt].sub(r)))
            for r in range(4):
                o.append(valu("v_mul_f32", vT[4 + r], vT[4 + r], f))
            for r in range(4):
                o.append(valu("v_accvgpr_write_b32", aO[t][dt].sub(r), vT[4 + r]))
        for kt in range(2):
            for r in range(4):
                x = vS[t][kt].sub(r)
                o.append(valu("v_sub_f32", x, x, m))
                o += item_insts(("exp", Gp, t, kt, r), wp, 0)
        for i in range(7):
            o += item_insts(("add", Gp, t, i), wp, 0)
        for kt in range(2):
            for h in range(2):
                o += item_insts(("cvt", Gp, t, kt, h), wp, 0)
    o.append(scmp("s_cmp_eq_u32", sT[10], 0))
    o.append(branch("s_cbranch_scc1", f"L_rare_{wp}_{typ}_ret"))
    o.append(salu("s_add_u32", sT[11], sT[11], GRP))
    o += recompute(Gp + 1, sT[11], lambda t: vCI[t])
    o.append(label(f"L_rare_{wp}_{typ}_ret"))
    o += cnt_addr()
    return o


def build_phase(wp):
    tm = steady_template(wp)
    sc = StepCode(wp)
    segs = {}
    H = Region(wp, -1, 1)
    done2 = {abskey(k, 1) for g in tm[1 % 2] for k in g if k[0] in ("exp", "add", "cvt", "chkA", "chkB", "chkC") and k[1] == 1}
    items = H.sm_items(0) + H.sm_items(1)
    g2 = H.sm_items(2, only=done2)
    for it in g2:
        it.dead = min(it.dead, H.n - 1)
    items += g2
    for e in (-1, 0, 1):
        items += H.mem_items(e)
    gaps = H.schedule(items)
    assert not H.left, [x.key for x in H.left]
    if P["verbose"]:
        print(f"wp{wp} head overflow {H.over}", file=sys.stderr)

    NEED = [("V", 1), ("K", 3)]

    def do_emit(R, gk, e, tag, **kw):
        mf = [R.mf[i][1] for i in range(R.st[e], R.en[e] + 1)]
        chk = R.chk_gap(e) - R.st[e] if e > 0 else None
        sync = P["BR"] if R.has_sync(e) else None
        end = None if (R.has_arr(e) or e >= NG - 2) else NEED
        return sc.emit(mf, gk, e, tag, chk, sync, end, arr_need=NEED, **kw)

    def cut(R, gaps, e):
        return [[it.key for it in gaps[i]] for i in range(R.st[e], R.en[e] + 1)]

    for e in (-1, 0, 1):
        segs[e] = do_emit(H, cut(H, gaps, e), e, f"h{wp}_{e + 1}")
    R = Region(wp, 2, 5, regular=True)
    gks = {e: [[abskey(k, e) for k in g] for g in tm[e % 2]] for e in range(2, 6)}
    qend = None
    if P["qst"]:
        free = [(e, i) for e in range(2, 6) for i, g in enumerate(gks[e])
                if not g and 0 < i < 82 and (e, i) > (2, 30) and not any(k[0].startswith("dma") for k in gks[e][i - 1] + gks[e][i + 1])]
        pick = [free[0], free[len(free) // 3], free[2 * len(free) // 3]]
        for cb, (e, i) in enumerate(pick):
            gks[e][i].append(("dmaQ", 0, cb))
        qend = pick[-1]
        e, i = [(e, i) for e in range(2, 6) for i, g in enumerate(gks[e]) if (e, i) > qend and sum(CLS[k[0]][1] for k in g) <= 4][0]
        gks[e][i].append(("pfa",))
    for e in range(2, 6):
        gk = gks[e]
        extra = []
        lastdma = max(i for i, g in enumerate(gk) for k in g if k[0] in ("dmaK", "dmaV"))
        if e == 2:
            extra.append((0, 29, [[salu("s_and_b32", sT[13], sCnt, 4)], [salu("s_lshl_b32", sT[13], sT[13], 4)],
                                  [salu("s_xor_b32", S(87), sT[13], 64)],
                                  [salu("s_mul_i32", S(91), S(87), 48)], [salu("s_mul_i32", S(82), S(87), S(96))],
                                  [salu("s_add_u32", sT[13], sCnt, S(97))],
                                  [salu("s_min_u32", sT[13], sT[13], 1)], [salu("s_mul_i32", S(85), sT[13], 2 * HEADK)]]))
            extra.append((lastdma + 1, 83, [[salu("s_mov_b32", S(18), S(85))]]))
        if e == 4:
            extra.append((lastdma + 1, 83, [[salu("s_mov_b32", S(22), S(85))]]))
        if qend and e == qend[0]:
            extra.append((qend[1] + 1, 82, [[salu("s_add_u32", sQSo, sQSo, S(91))], [salu("s_add_u32", sQSm, sQSm, S(91))]]))
        segs[e] = do_emit(R, gk, e, f"b{wp}_{e}", extra=extra)
    if P["verbose"]:
        print(f"wp{wp} loop salu overflow slots {sc.over}", file=sys.stderr)
    done30 = {abskey(k, 29) for g in tm[29 % 2] for k in g if k[1] == 1}
    for final in (False, True):
        T = Region(wp, 30, 31, final=final)
        items = T.sm_items(30, skip=done30) + T.sm_items(31)
        for e in (30, 31):
            items += T.mem_items(e)
        gaps = T.schedule(items)
        if not final:
            qleft = T.qleft
        assert not T.left, [x.key for x in T.left]
        if P["verbose"]:
            print(f"wp{wp} tail{int(final)} overflow {T.over}", file=sys.stderr)
        for e in (30, 31):
            segs[(e, final)] = do_emit(T, cut(T, gaps, e), e, f"t{wp}{int(final)}_{e}", midbar=[("V", 1)] if e == 30 else None)

    start = [label(f"L_start_{wp}")] + stamp(0)
    start += [waitsite(dict(lgkm0=True, vm=[("K", 0), ("K", 1)])), barrier()]
    for kt in range(2):
        for s in range(6):
            start += item_insts(("krd", 0, kt, s), wp, 0)
    rest = [(kind, G, cb) for kind, G in (("dmaV", 0), ("dmaK", 2), ("dmaV", 1), ("dmaK", 3), ("dmaV", 2)) for cb in range(3)]
    todo = [item_insts(("qld", i // 6, i % 6), 0, 0) for i in range(P["qpre"], 24)] + [dma_piece(*r) for r in rest]
    for i in range(24):
        start += q_chunk(i // 6, i % 6)
        n = -(-len(todo) // (24 - i))
        for _ in range(n):
            start += todo.pop(0)
    start += phase_setup()
    head = [label(f"L_head_{wp}")] + stamp(1) + [waitsite()]
    loop_in = [salu("s_mov_b32", sCnt, 6)] + stamp(2)
    loop_lab = [raw(".p2align 6", kind="label"), label(f"L_loop_{wp}")]
    segs[5] = segs[5] + [salu("s_sub_u32", sCnt, sCnt, 1), branch("s_cbranch_scc0", f"L_loop_{wp}")]
    after_loop = stamp(3) + [scmp("s_cmp_eq_u32", sPh, 1), branch("s_cbranch_scc1", f"L_final_{wp}")]
    pre, ch = epilogue(wp, False)
    epi_a = stamp(4) + pre
    qc = [q_chunk(i // 6, i % 6) for i in range(24)]
    if P["ilv"]:
        skip = 0 if P["qst"] else 4
        for i, c in enumerate(ch):
            epi_a += [waitsite()] + c
            if qleft:
                epi_a += item_insts(qleft.pop(0), wp, 0)
            if i >= skip and qc:
                epi_a += qc.pop(0)
    else:
        for c in ch:
            epi_a += c
            if qleft:
                epi_a += item_insts(qleft.pop(0), wp, 0)
    assert not qleft
    epi_a += stamp(5)
    for c in qc:
        epi_a += c
    epi_a += [salu("s_add_u32", sPh, sPh, 1)]
    if P["stamp"]:
        epi_a.append(salu("s_add_u32", S(66), S(66), 64 if P["stamp"] == 1 else 24))
    epi_a += phase_setup() + stamp(0) + [branch("s_branch", f"L_head_{wp}")]
    pre, ch = epilogue(wp, True)
    epi_b = stamp(4) + pre + [i for c in ch for i in c] + stamp(5) + [raw("s_endpgm")]
    fin_lab = [label(f"L_final_{wp}")]

    static = (start + head + segs[-1] + segs[0] + segs[1] + loop_in + loop_lab + segs[2] + segs[3] + segs[4] + segs[5] + after_loop
              + segs[(30, False)] + segs[(31, False)] + epi_a + fin_lab + segs[(30, True)] + segs[(31, True)] + epi_b)

    def dyn(ph):
        b = 32 * ph
        d = [(i, b) for i in (start if ph == 0 else [])] + [(i, b) for i in head]
        for e in (-1, 0, 1):
            d += [(i, b + e) for i in segs[e]]
        d += [(i, b) for i in loop_in]
        for it in range(7):
            for e in range(2, 6):
                d += [(i, b + e + 4 * it) for i in segs[e]]
        d += [(i, b) for i in after_loop]
        for e in (30, 31):
            d += [(i, b + e) for i in segs[(e, ph == 1)]]
        d += [(i, b) for i in (epi_b if ph else epi_a)]
        return d

    rare = []
    def spin(lab):
        return [salu("s_mov_b32", sT[14], 0), label(f"{lab}_spin"), raw(f"ds_read_b32 {vCr}, {vCa}"), salu("s_add_u32", sT[14], sT[14], 1),
                raw("s_waitcnt lgkmcnt(0)"), raw(f"v_cmp_gt_u32 {sCm}, {sTgt}, {vCr}"), scmp("s_cmp_gt_u32", sT[14], "0x40000"),
                branch("s_cbranch_scc1", f"{lab}_spun"), raw(f"s_cmp_lg_u64 {sCm}, 0"), branch("s_cbranch_scc1", f"{lab}_spin"),
                label(f"{lab}_spun")]

    for lab, e, replay, chk, sync in sc.sites:
        if sync and not chk:
            rare += [label(f"{lab}_rare")] + spin(lab) + [branch("s_branch", f"{lab}_back")]
    if P["check"]:
        for typ in (0, 1):
            mine = [(n, s) for n, s in enumerate(sc.sites) if buf(s[1], wp) == typ and s[3]]
            for n, (lab, e, replay, chk, sync) in mine:
                rare.append(label(f"{lab}_rare"))
                if sync:
                    rare += spin(lab)
                    rare += [raw(f"v_cmp_lt_f32 vcc, {sTh}, {vChk}"), raw("s_nop 4"), branch("s_cbranch_vccz", f"{lab}_back")]
                rare.append(salu("s_mov_b32", sRet, n))
                rare.append(salu("s_mov_b32", sT[10], 0 if e == NG - 1 else 1))
                rare.append(salu("s_mul_i32", sT[11], sPh, HEADK))
                if 2 <= e <= 5:
                    rare.append(salu("s_sub_u32", sT[12], 6, sCnt))
                    rare.append(salu("s_mul_i32", sT[12], sT[12], 4 * GRP))
                    rare.append(salu("s_add_u32", sT[11], sT[11], sT[12]))
                rare.append(salu("s_add_u32", sT[11], sT[11], e * GRP))
                rare.append(branch("s_branch", f"L_rare_{wp}_{typ}"))
            com = rare_common(wp, typ)
            Sim().run([(i, 0) for i in com])
            rare += com
            for n, (lab, e, replay, chk, sync) in mine:
                rare.append(scmp("s_cmp_eq_u32", sRet, n))
                rare.append(branch("s_cbranch_scc1", f"{lab}_replay"))
            rare.append(raw("s_endpgm"))
            for n, (lab, e, replay, chk, sync) in mine:
                rp = [label(f"{lab}_replay")]
                for k in replay:
                    rp += item_insts(k, wp, e)
                rp.append(raw("s_nop 4"))
                Sim().run([(i, 0) for i in rp])
                rare += rp
                rare.append(branch("s_branch", f"{lab}_back"))
    return static, dyn, rare


def main():
    pro = prologue()
    text = []
    body = []
    for wp in (0, 1):
        for pas in range(2):
            static, dyn, rare = build_phase(wp)
            for _ in range(2):
                sim = Sim()
                sim.run([(i, 0) for i in pro] + dyn(0) + dyn(1))
            for i in static:
                if i.kind == "wait" and i.note and (i.lgk is not None or i.vm is not None):
                    ACTIVE.add(i.note)
        if P["verbose"]:
            nn = sum(i.nop for i in static)
            print(f"wp{wp}: static insts {len(static)} nops {nn} max vq {sim.maxvq}", file=sys.stderr)
        body.append((static, rare))
    hdr = open("standalone__gqa_softmax__near_ridge.s.ref").read().splitlines()
    for ln in hdr:
        if ln.startswith("; @launch"):
            text.append(f"; @launch grid=(256,1,1) block=(256,1,1) lds={LDS_BYTES}")
        elif ln.startswith(";"):
            text.append(ln)
        else:
            break
    text += ["; Generated by gen/genk.py " + " ".join(sys.argv[2:]),
             '.amdgcn_target "amdgcn-amd-amdhsa--gfx950"', ".text", f".globl {NAME}", ".p2align 8",
             f".type {NAME},@function", f"{NAME}:"]
    text += render(pro)
    for static, rare in body:
        text += render(static)
    for static, rare in body:
        text += render(rare)
    text += ["L_end:", "    s_endpgm", '.section .rodata,"a"', ".p2align 6", f".amdhsa_kernel {NAME}",
             "  .amdhsa_next_free_vgpr 512", "  .amdhsa_next_free_sgpr 102", "  .amdhsa_accum_offset 256",
             "  .amdhsa_group_segment_fixed_size 0", "  .amdhsa_kernarg_size 48", "  .amdhsa_user_sgpr_count 2",
             "  .amdhsa_user_sgpr_kernarg_segment_ptr 1", "  .amdhsa_system_sgpr_workgroup_id_x 1", ".end_amdhsa_kernel", ""]
    open(sys.argv[1], "w").write("\n".join(text))


main()
```

```python
import sys, struct, math
sys.path.insert(0, "gen")
from asmlib import *

P = dict(
    LAT=4,
    LDSLAT=8,
    THR=20,
    check=1,
    stamp=0,
    pmap=1,
    stwave=404,
    verbose=0,
    nobar=0,
    ssync=1,
    BR=11,
    ARR=12,
    qst=1,
    kst=3,
    dsp=13,
    qlsp=8,
    qpre=10,
    cpf=1,
    park=1,
    qpf=1,
    omodp="sc0+sc1",
    fdirect=0,
    adirect=0,
    early4=1,
    ilv=1,
    kvmod="nt",
    qmod="",
    omod="sc0+sc1",
    omoda="",
)
for a in sys.argv[2:]:
    k, v = a.split("=")
    P[k] = type(P[k])(v) if k in P else v

NAME = "standalone__gqa_softmax__near_ridge_kernel"
ROWB = 384
GRP = 12288
HEADQ = 432 * ROWB
HEADK = 1024 * ROWB
KBASE, VBASE, RBASE = 0, 49152, 98304
RW = 16384
STGO = 256
LDS_BYTES = RBASE + 4 * RW
NG = 32
MIDBAR = 40

sQ, sK, sV, sO = S(12, 4), S(16, 4), S(20, 4), S(24, 4)
sW, sKoff, sVoff, sCnt, sPh, sWb, sC, sTh, sRet = (S(i) for i in range(28, 37))
sRowOwn, sRowSh, sNRowOwn, sNRowSh = S(37), S(38), S(39), S(40)
sT = [S(i) for i in range(44, 60)]
sQp, sOp = S(4, 2), S(10, 2)
sWs = S(60, 4)
sStamp = S(64, 2)
sKR = S(76, 4)
sPF = S(80, 4)

vLane = V(1)
vKA = [V(2), V(3)]
vVA = [V(4 + i) for i in range(4)]
vDK, vDV = V(8), V(9)
vQO, vOO = V(10), V(11)
vL = [V(12 + t) for t in range(4)]
vLG = [[V(16 + 4 * b + t) for t in range(4)] for b in range(2)]
vT = [V(24 + i) for i in range(24)]
vCI = [V(48 + 4 * t, 4) for t in range(4)]
vS = [[V(64 + 8 * t + 4 * kt, 4) for kt in range(2)] for t in range(4)]
vP = [[V(96 + 16 * b + 4 * t, 4) for t in range(4)] for b in range(2)]
vVF = [V(128 + 4 * i, 4) for i in range(8)]
vQ = [[V(160 + 24 * t + 4 * s, 4) for s in range(6)] for t in range(4)]
aO = [[A(48 * t + 4 * dt, 4) for dt in range(12)] for t in range(4)]
aKF = [[A(192 + 24 * kt + 4 * s, 4) for s in range(6)] for kt in range(2)]
vChk = V(28)
vQoff = [V(24 + t) for t in range(4)]
vSt0, vSt1 = V(0), V(45)
vAux = V(47)
vCa, vCr = V(46), V(30)
sTgt, sCm = S(93), S(94, 2)
CNT_ADDR = RBASE + 16128
XREG = {}
LATE = set()
ACTIVE = set()
vPFo = V(23)
sQSo, sQSm, sRg = S(84), S(89), S(90)


def vf(G, dt):
    return vVF[(dt + (4 if G == NG - 1 else 0)) % 8]


def f32bits(x):
    return struct.unpack("<I", struct.pack("<f", x))[0]


def mods(k):
    return "".join(" " + x for x in P[k].split("+") if x)


def tiles(G, wp):
    return [0, 1, 2, 3] if (G % 2) == wp else [0, 1, 2]


def buf(G, wp):
    return 0 if (G % 2) == wp else 1


def item_insts(key, wp, e):
    k = key[0]
    if k == "exp":
        _, G, t, kt, r = key
        x = vS[t][kt].sub(r)
        return [trans("v_exp_f32", x, x)]
    if k == "add":
        _, G, t, i = key
        lg = vLG[buf(G, wp)][t]
        if i == 0:
            return [valu("v_add_f32", lg, vS[t][0].sub(0), vS[t][0].sub(1))]
        j = i + 1
        return [valu("v_add_f32", lg, lg, vS[t][j // 4].sub(j % 4))]
    if k == "cvt":
        _, G, t, kt, h = key
        return [valu("v_cvt_pk_bf16_f32", vP[buf(G, wp)][t].sub(2 * kt + h), vS[t][kt].sub(2 * h), vS[t][kt].sub(2 * h + 1))]
    if k == "chkA":
        lg = vLG[buf(key[1], wp)]
        return [valu("v_max3_f32", vChk, lg[0], lg[1], lg[2])]
    if k == "chkB":
        lg = vLG[buf(key[1], wp)]
        return [valu("v_max_f32", vChk, vChk, lg[3])]
    if k == "chkC":
        return [Inst(f"v_cmp_lt_f32 vcc, {sTh}, {vChk}", "valu", rd=vChk.regs() + sTh.regs(), wr=["vcc"])]
    if k == "ladd":
        _, G, t = key
        lg = vLG[buf(G, wp)][t]
        first = (G == 0) if t < 3 else (G == wp)
        if first:
            return [valu("v_mov_b32", vL[t], lg)]
        return [valu("v_add_f32", vL[t], vL[t], lg)]
    if k == "vrd":
        _, G, dt, hf = key
        return [dsr("ds_read_b64_tr_b16", vf(G, dt).sub(2 * hf, 2), vVA[dt % 4], (G % 4) * GRP + hf * 6144 + (dt // 4) * 1024)]
    if k == "krd":
        _, G, kt, s = key
        return [dsr("ds_read_b128", aKF[kt][s], vKA[s % 2], (G % 4) * GRP + kt * 6144 + (s // 2) * 1024)]
    if k == "dmaV":
        _, G, cb = key
        return [bdma(vDV, sV, sVoff, cb * 128, tag=("V", G - e), mods=mods("kvmod"))]
    if k == "dmaK":
        _, G, cb = key
        return [bdma(vDK, sK, sKoff, cb * 128, tag=("K", G - e), mods=mods("kvmod"))]
    if k == "qadd":
        _, t = key
        if t < 3:
            return [valu("v_add_u32", vQoff[t], sT[t], vQO)]
        return [valu("v_add_u32", vQoff[t], sNRowSh, vQO)]
    if k == "qld":
        _, t, s = key
        return [bload(vQ[t][s], vQoff[t], sQ, 0, 64 * s, mods=mods("qmod"))]
    if k == "dmaQ":
        return [bdma(vPFo, sPF, sQSo, key[2] * 128, tag=("Q", -e), mods=mods("kvmod"))]
    if k in ("xv", "xp", "xt", "xw"):
        return XREG[key]()
    if k == "arr":
        return [dsw("ds_inc_u32", vCa, vCa)]
    if k == "crd":
        return [dsr("ds_read_b32", vCr, vCa)]
    if k == "ccmp":
        return [Inst(f"v_cmp_gt_u32 {sCm}, {sTgt}, {vCr}", "valu", rd=vCr.regs() + sTgt.regs(), wr=sCm.regs())]
    if k == "pf":
        return [Inst(f"buffer_load_dword {vT[8]}, {vAux}, {sPF}, {S(92)} offen", "vmem", rd=vAux.regs() + sPF.regs() + ["s92"], wr=vT[8].regs())]
    if k == "drd":
        return [dsr("ds_read_b128", V(vT[8].b + 4 * key[1], 4), vAux, 128 * key[1])]
    if k == "dst":
        return [bstore(V(vT[8].b + 4 * key[1], 4), vPFo, sPF, sQSo, 128 * key[1], mods=mods("omodp"))]
    if k == "dra":
        return [valu("v_add_u32", vAux, S(91), vAux)]
    if k == "pfa":
        return [valu("v_xor_b32", vPFo, S(87), vPFo)]
    if k == "qra":
        return [valu("v_add_u32", vQoff[key[1]], sRg, vKA[key[1]])]
    if k == "qrd":
        _, t, s = key
        return [dsr("ds_read_b128", vQ[t][s], vQoff[s % 2], t * 6144 + (s // 2) * 1024)]
    if k == "mx":
        _, t, i = key
        m, s0, s1 = vT[8 + 2 * t], vS[t][0], vS[t][1]
        m2 = vT[9 + 2 * t]
        if i == 0:
            return [valu("v_max3_f32", m, s0.sub(0), s0.sub(1), s0.sub(2))]
        if i == 1:
            return [valu("v_max3_f32", m, m, s0.sub(3), s1.sub(0))]
        if i == 2:
            return [valu("v_max3_f32", m, m, s1.sub(1), s1.sub(2))]
        if i == 3:
            return [valu("v_max_f32", m, m, s1.sub(3))]
        if i in (4, 7):
            return [valu("v_mov_b32", m2, m)]
        if i == 5:
            return [perm("v_permlane32_swap_b32", m, m2)]
        if i == 8:
            return [perm("v_permlane16_swap_b32", m, m2)]
        if i in (6, 9):
            return [valu("v_max_f32", m, m, m2)]
    if k == "ci":
        _, t, r = key
        return [valu("v_sub_f32", vCI[t].sub(r), 0, vT[8 + 2 * t])]
    if k == "sub":
        _, t, kt, r = key
        x = vS[t][kt].sub(r)
        return [valu("v_sub_f32", x, x, vT[8 + 2 * t])]
    raise KeyError(key)


def m0_for(key):
    k, G, cb = key
    if k == "dmaQ":
        return salu("s_add_u32", "m0", sQSm, cb * (1024 - 128))
    base = (KBASE if k == "dmaK" else VBASE) + (G % 4) * GRP + cb * (1024 - 128)
    return salu("s_add_u32", "m0", sWb, base)


CLS = dict(exp=("exp", 8), add=("valu", 4), cvt=("valu", 4), chkA=("valu", 4), chkB=("valu", 4), chkC=("valu", 4),
           ladd=("valu", 4), vrd=("lds", 4), krd=("lds", 4), dmaV=("dma", 8), dmaK=("dma", 8), qadd=("valu", 4),
           qld=("dma", 8), pf=("dma", 8), drd=("lds", 4), dst=("dma", 8), dra=("valu", 4), xv=("valu", 4), xp=("valu", 4), xt=("exp", 8), xw=("dma", 8), dmaQ=("dma", 8), arr=("lds", 4), crd=("lds", 4), ccmp=("valu", 4), pfa=("valu", 4), qra=("valu", 4), qrd=("lds", 4), mx=("valu", 4), ci=("valu", 4), sub=("valu", 4))


class Item:
    def __init__(self, key, hard, soft, dead, deps=()):
        self.key, self.hard, self.soft, self.dead = key, hard, max(hard, soft), dead
        self.deps = list(deps)
        self.cls, self.cost = CLS[key[0]]
        self.placed = None


class Region:
    def __init__(self, wp, e0, e1, regular=False, final=False, startup=False):
        self.wp, self.e0, self.e1, self.regular, self.final, self.startup = wp, e0, e1, regular, final, startup
        self.mf = []
        self.qs, self.qe, self.pvs, self.pvu, self.pvd = {}, {}, {}, {}, {}
        self.kfl = {}
        self.ql = {}
        self.st, self.en = {}, {}
        last = NG - 1
        for e in range(e0, e1 + 1):
            self.st[e] = len(self.mf)
            G = e + 1
            if regular or G <= last:
                if e == -1:
                    order = [(t, kt) for t in range(4) for kt in range(2)]
                else:
                    order = [(t, kt) for kt in range(2) for t in tiles(G, wp)]
                for t, kt in order:
                    if startup and e == -1 and kt == 0:
                        self.mf.append((e, None))
                    self.qs[(G, t, kt)] = len(self.mf)
                    for s in range(6):
                        self.kfl[(G, kt, s)] = len(self.mf)
                        self.ql[(t, s)] = len(self.mf)
                        self.mf.append((e, ("qk", G, t, kt, s)))
                    self.qe[(G, t, kt)] = len(self.mf) - 1
            else:
                self.mf.append((e, None))
            if e >= 0:
                self.pvs[e] = len(self.mf)
                for dt in range(12):
                    self.pvu[(e, dt)] = len(self.mf)
                    for t in tiles(e, wp):
                        self.mf.append((e, ("pv", e, t, dt)))
                    self.pvd[(e, dt)] = len(self.mf) - 1
            self.en[e] = len(self.mf) - 1
        self.n = len(self.mf)

    def has_sync(self, e):
        return bool(P["ssync"]) and (self.regular or 1 <= e <= NG - 2)

    def has_arr(self, e):
        return bool(P["ssync"]) and (self.regular or 0 <= e <= NG - 3)

    def chk_gap(self, e):
        if self.has_sync(e) and (self.regular or e >= 2):
            return self.st[e] + P["BR"]
        return self.pvs[e] - 1

    def sm_items(self, G, only=None, skip=None):
        wp = self.wp
        BIG = 10 ** 6
        items = {}
        pvs = self.chk_gap(G) + 1 if G in self.pvs else BIG

        def add(it):
            items[it.key] = it

        for t in tiles(G, wp):
            G2 = G + 1 if t < 3 else G + 2
            qd = {}
            for kt in range(2):
                ov = self.qs.get((G2, t, kt), BIG)
                qd[kt] = min(ov - 1, pvs - 6)
                qe = self.qe.get((G, t, kt), -1)
                for r in range(4):
                    deps = [("sub", t, kt, r)] if G == 0 and not self.regular else []
                    add(Item(("exp", G, t, kt, r), qe, qe + P["LAT"], qd[kt] - 3, deps))
                for h in range(2):
                    add(Item(("cvt", G, t, kt, h), qe, 0, qd[kt], [("exp", G, t, kt, 2 * h), ("exp", G, t, kt, 2 * h + 1)]))
            for i in range(7):
                j = i + 1
                deps = [("exp", G, t, j // 4, j % 4)]
                deps.append(("exp", G, t, 0, 0) if i == 0 else ("add", G, t, i - 1))
                add(Item(("add", G, t, i), -1, 0, qd[j // 4], deps))
            add(Item(("ladd", G, t), pvs, 0, self.en.get(G, BIG), [("add", G, t, 6)]))
        if P["check"] and (G > 0 or self.regular):
            add(Item(("chkA", G), -1, 0, pvs - 5, [("add", G, t, 6) for t in range(3)]))
            lastk = ("chkA", G)
            if len(tiles(G, wp)) == 4:
                add(Item(("chkB", G), -1, 0, pvs - 4, [lastk, ("add", G, 3, 6)]))
                lastk = ("chkB", G)
            add(Item(("chkC", G), -1, 0, pvs - 3, [lastk]))
        out = []
        for k, it in items.items():
            if only is not None and k not in only:
                continue
            if skip is not None and k in skip:
                continue
            out.append(it)
        return out

    def mem_items(self, e):
        items = []
        st, en = self.st[e], self.en[e]
        L = P["LDSLAT"]
        last = NG - 1
        st0 = st
        if self.has_sync(e):
            items.append(Item(("crd", e), st, st + 1, st + 2))
            items.append(Item(("ccmp", e), st + 3, st + P["BR"] - 3, st + P["BR"] - 2, [("crd", e)]))
            st = st + P["BR"]
        if self.has_arr(e):
            L = P["ARR"] + 1
        nrd = len(items)
        if e >= 0:
            for dt in range(12):
                if e == last and not self.regular:
                    early = max(self.st[e - 1] + MIDBAR + 1, self.pvd[(e - 1, dt + 4)]) if dt < 8 else self.pvd[(e, dt - 8)]
                else:
                    early = st if dt < 8 else self.pvd[(e, dt - 8)]
                for hf in range(2):
                    items.append(Item(("vrd", e, dt, hf), early, 0, max(early, min(self.pvu[(e, dt)] - 1 - P["LDSLAT"], en - L))))
        G = e + 2
        if self.regular or G <= last:
            for kt in range(2):
                for s in range(6):
                    early = max(self.kfl[(G - 1, kt, s)], st)
                    items.append(Item(("krd", G, kt, s), early, 0, max(early, en - L - P["kst"] * (11 - 6 * kt - s))))
        if self.has_arr(e):
            items.append(Item(("arr", e), st, en - P["ARR"] - 2, en - P["ARR"], [it.key for it in items[nrd:]]))
        dm = []
        if e >= 0 and not self.final and (self.regular or e < last):
            moved = e == 0 and not self.regular and not self.startup and P["early4"]
            if not moved:
                dm += [("dmaV", e + 3, cb) for cb in range(3)]
            if e == 0 and not self.regular and not moved:
                dm += [("dmaK", 4, cb) for cb in range(3)]
            dm += [("dmaK", e + 5, cb) for cb in range(3)]
        prev = None
        for j, k in enumerate(dm):
            sp = P["dsp"] * 6 // max(len(dm), 6)
            it = Item(k, st + 1, st + 1 + sp * j, min(st + 4 + sp * j, en), [prev] if prev else [])
            items.append(it)
            prev = k
        if e == last and not self.regular and not self.final:
            pv = self.pvs[e]
            direct = [2, 3] if P["qst"] else [0, 1, 2, 3]
            if P["qst"]:
                for j in range(2):
                    items.append(Item(("qra", j), pv, 0, pv))
                for t in range(2):
                    for s in range(6):
                        items.append(Item(("qrd", t, s), pv, 0, en - 4, [("qra", s % 2)]))
            self.qleft = []
            n = 0
            for t in direct:
                items.append(Item(("qadd", t), pv, 0, pv + 1))
                for s in range(6):
                    at = pv + 2 + n * P["qlsp"]
                    if at <= en:
                        items.append(Item(("qld", t, s), pv, at, min(at + 2, en), [("qadd", t)]))
                    else:
                        self.qleft.append(("qld", t, s))
                    n += 1
        if e == -1:
            for t in range(4):
                qe = self.qe[(0, t, 1)]
                dead = self.qs.get((1, t, 0), self.qs.get((2, t, 0), en + 1)) - 1
                dead = min(dead, self.en[0])
                for i in range(10):
                    items.append(Item(("mx", t, i), qe, qe + P["LAT"], dead - 8, [("mx", t, i - 1)] if i else []))
                for r in range(4):
                    items.append(Item(("ci", t, r), qe, 0, dead - 1, [("mx", t, 9)]))
                if t in tiles(0, self.wp):
                    for kt in range(2):
                        for r in range(4):
                            items.append(Item(("sub", t, kt, r), qe, 0, dead - 6, [("mx", t, 9)]))
        return items

    def schedule(self, items):
        byk = {it.key: it for it in items}
        for i, it in enumerate(items):
            it.seq = i
            it.deps = [byk[d] for d in it.deps if d in byk]
        gaps = [[] for _ in range(self.n)]
        pending = list(items)
        self.over = 0
        lastdma = -10
        lastb128 = -10
        big_slot = [self.mf[g][1] is None and self.startup for g in range(self.n)]

        def ready(it, g, soft=True):
            if (it.soft if (soft and not big_slot[g]) else it.hard) > g:
                return False
            for d in it.deps:
                if d.placed is None:
                    return False
                if big_slot[g]:
                    continue
                if d.placed == g and not (d.cls == "valu" and it.cls in ("valu", "exp")) and soft:
                    return False
                if (it.key[0] == "xp" or (it.key[0] == "mx" and it.key[2] in (5, 8))) and d.placed > g - 2 and soft:
                    return False
            return True

        for g in range(self.n):
            cap = 10 ** 6 if big_slot[g] else 8
            nl = 0

            def put(it):
                nonlocal cap, nl, lastdma, lastb128
                it.placed = g
                if it.cls in ("lds", "dma") and any(d.placed == g and (d.cls in ("valu", "exp") or d.key in LATE) for d in it.deps):
                    LATE.add(it.key)
                gaps[g].append(it)
                pending.remove(it)
                cap -= it.cost
                if it.cls == "lds":
                    nl += 1
                    if it.key[0] in ("krd", "qrd"):
                        lastb128 = g
                if it.key[0] in ("dmaK", "dmaV"):
                    lastdma = g

            def force(it):
                for d in it.deps:
                    if d.placed is None:
                        force(d)
                assert it.hard <= g, (it.key, it.hard, g)
                put(it)

            def fits(it, pair=False):
                if it.cost > cap:
                    return False
                if it.cls == "lds":
                    big = it.key[0] in ("krd", "qrd")
                    if nl >= 1 and (big or lastb128 == g or not pair):
                        return False
                    if big and lastb128 == g - 1:
                        return False
                if it.key[0] in ("dmaK", "dmaV") and lastdma >= g - 1:
                    return False
                return True

            for it in sorted([x for x in pending if x.dead <= g], key=lambda x: (x.dead, x.seq)):
                if it.placed is None:
                    force(it)
            while cap > 0:
                c = sorted([x for x in pending if ready(x, g) and fits(x)], key=lambda x: (x.dead, x.seq))
                if not c:
                    c = sorted([x for x in pending if ready(x, g) and fits(x, True)], key=lambda x: (x.dead, x.seq))
                    if not c:
                        break
                top = c[0]
                if cap == 8 and top.cost == 4:
                    lds = [x for x in c if x.cls == "lds"]
                    val = [x for x in c if x.cls == "valu"]
                    big = [x for x in c if x.cost == 8]
                    if top.cls == "lds":
                        haspartner = bool(val)
                    else:
                        haspartner = bool(lds) or len(val) > 1 or any(top in x.deps and x.cls == "valu" and all(d is top or d.placed is not None for d in x.deps) for x in pending)
                    if not haspartner and big and top.dead > g + 3:
                        put(big[0])
                        continue
                    put(top)
                    if top.cls == "valu" and lds and fits(lds[0]):
                        put(lds[0])
                    continue
                put(top)
            if cap < 0 and self.mf[g][1] is not None:
                self.over += -cap
        self.left = pending
        self.gaps = gaps
        return gaps


def mf_inst(key, wp, regular=False):
    if key[0] == "qk":
        _, G, t, kt, s = key
        d = vS[t][kt]
        c = d if s else (0 if (G == 0 and not regular) else vCI[t])
        return mfma(d, aKF[kt][s], vQ[t][s], c)
    _, G, t, dt = key
    first = (G == 0) if t < 3 else (G == wp)
    d = aO[t][dt]
    return mfma(d, vf(G, dt), vP[buf(G, wp)][t], 0 if first else d)


def relkey(key, e):
    if key[0] in ("qadd", "qld", "mx", "ci", "sub", "qra", "qrd"):
        return key
    return (key[0], key[1] - e) + key[2:]


def abskey(key, e):
    return (key[0], key[1] + e) + key[2:]


def steady_template(wp):
    R = Region(wp, 2, 21, regular=True)
    items = []
    for G in range(3, 23):
        items += R.sm_items(G)
    for e in range(2, 22):
        items += R.mem_items(e)
    gaps = R.schedule(items)
    tm = {}
    for e in range(8, 18):
        cur = [[relkey(it.key, e) for it in gaps[g]] for g in range(R.st[e], R.en[e] + 1)]
        if e % 2 in tm:
            assert tm[e % 2] == cur, f"template not periodic at step {e}"
        tm[e % 2] = cur
    if P["verbose"]:
        for par in (0, 1):
            use = sum(CLS[k[0]][1] for g in tm[par] for k in g)
            ov = sum(max(0, sum(CLS[k[0]][1] for k in g) - 8) for g in tm[par])
            print(f"wp{wp} step parity {par}: fill {use}/{8 * len(tm[par])} overflow {ov}", file=sys.stderr)
            if P["verbose"] > 1:
                for i, g in enumerate(tm[par]):
                    print(i, g, file=sys.stderr)
    return tm


class StepCode:
    def __init__(self, wp):
        self.wp = wp
        self.sites = []
        self.site_ph = {}
        self.ph = 0

    def emit(self, mf, gapkeys, e, tagname, chk, sync, end_need, arr_need=None, extra=(), midbar=None, payload=None):
        wp = self.wp
        G = []
        if not P["check"]:
            chk = None
        for i, mk in enumerate(mf):
            g = dict(mf=mf_inst(mk, wp) if mk else None, wait=waitsite(), salu=[], mem=[], val=[], keys=gapkeys[i], fix=0)
            g["wait"].note = (tagname, i)
            if (tagname, i) in ACTIVE:
                g["fix"] += 1
            if i in (chk, sync):
                g["fix"] += 1
            for k in gapkeys[i]:
                cls = CLS[k[0]][0]
                (g["mem"] if cls in ("lds", "dma") and k not in LATE else g["val"]).append((k, item_insts(k, wp, e)))
                if k[0] == "arr":
                    g["wait"].need = dict(vm=arr_need)
            G.append(g)

        def room(g):
            used = sum(CLS[k[0]][1] for k in g["keys"])
            return 1 + max(0, 8 - used) // 4 - g["fix"] - len(g["salu"])

        def place(lo, hi, ins, latest=False):
            hi = min(hi, len(G) - 1)
            r = list(range(lo, hi + 1))
            if latest:
                r.reverse()
            c = [j for j in r if room(G[j]) >= len(ins)] or [r[0]]
            G[c[0]]["salu"] += ins
            return c[0]

        DM = ("dmaK", "dmaV", "dmaQ")
        late = []
        if sync is not None:
            cg = max(i for i, g in enumerate(G[:sync]) if any(k[0] in ("ccmp", "chkC") for k in g["keys"]))
            assert cg + 1 <= sync - 1
            if chk == sync:
                place(cg + 1, sync - 1, [Inst(f"s_or_b64 vcc, vcc, {sCm}", "salu", rd=sCm.regs() + ["vcc"], wr=["vcc"])], latest=True)
            late.append((sync + 1, len(G) - 1, [salu("s_add_u32", sTgt, sTgt, 4)]))
        prevd = -1
        for i, g in enumerate(G):
            newmem = []
            for k, ins in g["mem"]:
                if k[0] in DM:
                    if prevd + 1 <= i - 1:
                        place(prevd + 1, i - 1, [m0_for(k)], latest=True)
                    else:
                        newmem.append((None, [m0_for(k)]))
                    prevd = i
                    newmem.append((k, ins))
                    if k[2] == 2 and k[0] != "dmaQ":
                        so = sKoff if k[0] == "dmaK" else sVoff
                        upd = salu("s_add_u32", so, so, GRP)
                        nxt = [j for j in range(i + 1, len(G)) if any(kk and kk[0] == k[0] for kk, _ in G[j]["mem"])]
                        lim = nxt[0] if nxt else len(G) - 1
                        late.append((i + 1, lim, [upd]))
                else:
                    newmem.append((k, ins))
            g["mem"] = newmem
        for lo, hi, ins in late:
            place(lo, hi, ins)
        for lo, hi, groups in extra:
            for ins in groups:
                lo = place(lo, hi, ins)
        self.over = getattr(self, "over", 0) + sum(max(0, -room(g)) for g in G if g["mf"] is not None and 2 <= e <= 5)
        out = []
        for i, g in enumerate(G):
            if g["mf"] is not None:
                out.append(g["mf"])
            out.append(g["wait"])
            if g["mf"] is not None and i in (chk, sync):
                out += self.site(e, tagname, G[:i], i == chk, i == sync)
            out += g["salu"]
            for _, ins in g["mem"]:
                out += ins
            for _, ins in g["val"]:
                out += ins
            if g["mf"] is None:
                if i == chk:
                    out.append(raw("s_nop 4"))
                    out += self.site(e, tagname, G[:i + 1], True, False)
                if payload:
                    out += payload.pop(0)
                    out.append(waitsite())
                else:
                    out.append(waitsite(dict(vm=[("Q", -e + 4 * j) for j in range(7)])))
            if midbar is not None and i == MIDBAR:
                out.append(waitsite(dict(vm=midbar)))
                out.append(barrier())
        if end_need is not None:
            out.append(waitsite(dict(lgkm0=True, vm=end_need)))
            out.append(barrier() if not (P["nobar"] and 2 <= e <= 5) else raw("s_nop 0"))
        return out

    def site(self, e, tagname, done_gaps, chk, sync):
        replay = [k for g in done_gaps for k in g["keys"] if k[0] in ("exp", "add", "cvt") and k[1] == e + 1]
        lab = f"L_{tagname}{'c' if chk else ''}{'s' if sync else ''}"
        self.sites.append((lab, e, replay, chk, sync))
        self.site_ph[lab] = self.ph
        if sync and not chk:
            return [raw(f"s_cmp_lg_u64 {sCm}, 0", kind="salu", rd=sCm.regs()), branch("s_cbranch_scc1", f"{lab}_rare"), label(f"{lab}_back")]
        return [branch("s_cbranch_vccnz", f"{lab}_rare"), label(f"{lab}_back")]


def stamp(idx):
    if not P["stamp"]:
        return []
    if P["stamp"] == 3:
        return [raw("s_memrealtime s[68:69]"), raw("s_waitcnt lgkmcnt(0)"), salu("s_sub_u32", S(64), S(68), S(72)),
                valu("v_mov_b32", vSt0, S(64)), valu("v_mov_b32", vSt1, S(66)), bstore(vSt0, vSt1, sWs, 0, 4 * idx), raw("s_nop 1")]
    if P["stamp"] == 2:
        o = [raw("s_memrealtime s[68:69]"), raw("s_waitcnt lgkmcnt(0)"), salu("s_sub_u32", S(64), S(68), S(72)),
             valu("v_mov_b32", vSt0, S(64)), valu("v_mov_b32", vSt1, S(66)),
             raw("s_mov_b64 exec, 1"),
             Inst(f"buffer_atomic_umax {vSt0}, {vSt1}, {sWs}, 0 offen offset:{4 * idx}", "vst", rd=vSt0.regs() + vSt1.regs())]
        if idx == 5:
            o += [raw("s_nop 1"), valu("v_mov_b32", vSt0, S(68)), valu("v_mov_b32", vSt1, 0),
                  Inst(f"buffer_atomic_umax {vSt0}, {vSt1}, {sWs}, 0 offen offset:48", "vst", rd=vSt0.regs() + vSt1.regs()),
                  raw("s_nop 1"), salu("s_not_b32", S(64), S(72)), valu("v_mov_b32", vSt0, S(64)),
                  Inst(f"buffer_atomic_umax {vSt0}, {vSt1}, {sWs}, 0 offen offset:52", "vst", rd=vSt0.regs() + vSt1.regs())]
        o += [raw("s_mov_b64 exec, -1"), raw("s_nop 4")]
        return o
    return [raw(f"s_memtime {sStamp}"), raw("s_memrealtime s[68:69]"), raw("s_waitcnt lgkmcnt(0)"),
            valu("v_mov_b32", vSt0, S(64)), valu("v_mov_b32", vSt1, S(66)),
            bstore(vSt0, vSt1, sWs, 0, 4 * idx), raw("s_nop 1"),
            valu("v_mov_b32", vSt0, S(68)), bstore(vSt0, vSt1, sWs, 0, 4 * idx + 32), raw("s_nop 1")]


def q_chunk(t, s):
    out = [waitsite()]
    q = vQ[t][s]
    tb = 152
    for r in range(4):
        out.append(valu("v_lshlrev_b32", V(tb + 2 * r), 16, q.sub(r)))
        out.append(valu("v_and_b32", V(tb + 2 * r + 1), "0xffff0000", q.sub(r)))
    for r in range(4):
        pr = V(tb + 2 * r, 2)
        out.append(Inst(f"v_pk_mul_f32 {pr}, {pr}, {S(42, 2)}", "valu", rd=pr.regs() + ["s42", "s43"], wr=pr.regs()))
    for r in range(4):
        out.append(valu("v_cvt_pk_bf16_f32", q.sub(r), V(tb + 2 * r), V(tb + 2 * r + 1)))
    return out


def dma_piece(kind, G, cb, e=0):
    k = (kind, G, cb)
    r = [m0_for(k)] + item_insts(k, 0, e)
    if cb == 2:
        so = sKoff if kind == "dmaK" else sVoff
        r.append(salu("s_add_u32", so, so, GRP))
    return r


def lane_reduce(x, tmp, op):
    return [valu("v_mov_b32", tmp, x), perm("v_permlane32_swap_b32", x, tmp), valu(op, x, x, tmp),
            valu("v_mov_b32", tmp, x), perm("v_permlane16_swap_b32", x, tmp), valu(op, x, x, tmp)]


E_INV = [vT[16], vT[18], vT[20]]
E_XA, E_XB, E_MA, E_MB = vT[12], vT[13], vT[17], vT[19]
E_SW, E_SR, E_GO = vT[4], vT[6], vT[7]


def epi_items(T, wp):
    e = NG - 1
    pv, en = T.pvs[e], T.en[e]
    items = []
    tag = f"{wp}{int(T.final)}"

    def add(kind, name, fac, deps=(), early=pv, dead=en):
        k = (kind, tag, name)
        XREG[k] = fac
        items.append(Item(k, early, 0, dead, list(deps)))
        return k

    for t in (3, 0, 1, 2):
        x, tmp = vL[t], vT[8 + t]
        p = [("ladd", e, t)]
        d0 = en - 12 if t == 3 else en
        for i, (kind, fac) in enumerate([
                ("xv", lambda x=x, tmp=tmp: [valu("v_mov_b32", tmp, x)]),
                ("xp", lambda x=x, tmp=tmp: [perm("v_permlane32_swap_b32", x, tmp)]),
                ("xv", lambda x=x, tmp=tmp: [valu("v_add_f32", x, x, tmp)]),
                ("xv", lambda x=x, tmp=tmp: [valu("v_mov_b32", tmp, x)]),
                ("xp", lambda x=x, tmp=tmp: [perm("v_permlane16_swap_b32", x, tmp)]),
                ("xv", lambda x=x, tmp=tmp: [valu("v_add_f32", x, x, tmp)])]):
            p = [add(kind, f"red{t}_{i}", fac, p, dead=d0)]
        if t < 3:
            add("xt", f"rcp{t}", lambda t=t: [trans("v_rcp_f32", E_INV[t], vL[t])], p)
        else:
            m1 = add("xv", "ml1", lambda: [valu("v_mov_b32", vT[15], vL[3])], p, dead=d0)
    m0 = add("xv", "ml0", lambda: [valu("v_mov_b32", vT[14], vCI[3].sub(0))])
    xa = add("xv", "xa", lambda: [valu("v_lshl_add_u32", E_XA, vLane, 4, sT[4])], dead=pv + 4)
    add("xv", "xb", lambda: [valu("v_lshl_add_u32", E_XB, vLane, 4, sT[5])])
    ma = add("xv", "ma", lambda: [valu("v_lshl_add_u32", E_MA, vLane, 3, sT[4])])
    add("xv", "mb", lambda: [valu("v_lshl_add_u32", E_MB, vLane, 3, sT[5])])
    qrd = [("qrd", t, s) for t in range(2) for s in range(6)]
    for j, dt in enumerate(range(6 * (1 - wp), 6 * (1 - wp) + 6)):
        early = min(T.pvd[(e, dt)] + 3, en) if 3 in tiles(e, wp) else pv + 3
        add("xw", f"xw{j}", lambda j=j, dt=dt: [dsw("ds_write_b128", E_XA, aO[3][dt], 1024 * j)], [xa] + qrd, early=early)
    add("xw", "xwm", lambda: [dsw("ds_write_b64", E_MA, V(vT[14].b, 2), 6144)], [m0, m1, ma] + qrd)
    ta, tb = vT[21], vT[5]
    p = []
    if P["fdirect" if T.final else "adirect"]:
        adr = [lambda: [valu("v_add_u32", E_SW, sRowOwn, vOO)], lambda: [valu("v_add_u32", E_SR, 6144, E_SW)],
               lambda: [valu("v_add_u32", E_GO, 6144, E_SR)], lambda: [valu("v_add_u32", vT[5], sRowSh, vOO)]]
    else:
        adr = [
            lambda: [valu("v_and_b32", ta, 15, vLane)], lambda: [valu("v_lshlrev_b32", ta, 4, ta)],
            lambda: [valu("v_add3_u32", E_SW, vOO, ta, sT[6])],
            lambda: [valu("v_lshrrev_b32", ta, 3, vLane)], lambda: [valu("v_and_b32", tb, 7, vLane)],
            lambda: [valu("v_lshlrev_b32", tb, 4, tb)],
            lambda: [valu("v_mul_u32_u24", E_SR, 400, ta)], lambda: [valu("v_add3_u32", E_SR, E_SR, tb, sT[6])],
            lambda: [valu("v_mul_u32_u24", E_GO, ROWB, ta)], lambda: [valu("v_add3_u32", E_GO, E_GO, tb, sRowOwn)],
            lambda: [valu("v_add_u32", vT[5], sRowSh, vOO)]]
    for i, fac in enumerate(adr):
        p = [add("xv", f"adr{i}", fac, p)]
    return items


def epilogue(wp, final):
    sw, sr, go, xb = E_SW, E_SR, E_GO, E_XB
    direct = P["fdirect" if final else "adirect"]
    om = mods("omod" if final else "omoda")
    park = P["park"] and not final
    assert not park or (P["early4"] and not direct)
    out = []
    out.append(waitsite(dict(lgkm0=True, vm=[] if final else [("K", 32), ("K", 33)])))
    out.append(barrier())
    X = [V(128 + 4 * j, 4) for j in range(6)]
    oml = V(vT[14].b, 2)
    out.append(dsr("ds_read_b64", oml, E_MB, 6144))
    for j in range(6):
        out.append(dsr("ds_read_b128", X[j], xb, 1024 * j))
    if not final:
        for kt in range(2):
            for s in range(6):
                out += item_insts(("krd", 0, kt, s), wp, 0)
        for G in (34, 35) if P["early4"] else (34,):
            for cb in range(3):
                out += dma_piece("dmaV", G, cb)
    pre = out

    def pack(src, k):
        d = V(96 + 4 * (k % (8 if direct else 2)), 4)
        o = [valu("v_cvt_pk_bf16_f32", d.sub(i), src[2 * i], src[2 * i + 1]) for i in range(4)]
        sw_ = [perm("v_permlane16_swap_b32", d.sub(0), d.sub(2)), perm("v_permlane16_swap_b32", d.sub(1), d.sub(3))]
        return o, sw_, d

    chunks = []
    k = 0
    tail = []
    RB = [V(104 + 4 * j, 4) for j in range(6)]

    def readback():
        if direct:
            return []
        return [dsr("ds_read_b128", RB[j], sr, 6400 + (j // 3) * 3200 + (j % 3) * 128) for j in range(6)]

    def store(j):
        if direct:
            return []
        o = [waitsite(), bstore(RB[j], go, sO, 0, (j // 3) * 3072 + (j % 3) * 128, mods=mods("omod" if final else "omoda"))]
        if j == 5:
            o.append(valu("v_add_u32", go, 6144, go))
        return o

    for t in range(3):
        inv = V(E_INV[t].b, 2)
        for p in range(6):
            c = []
            base = 64 + 8 * (k % 4)
            src = [V(base + i) for i in range(8)]
            for i in range(8):
                c.append(valu("v_accvgpr_read_b32", src[i], aO[t][2 * p + i // 4].sub(i % 4)))
            c += tail
            if t > 1 and p == 0:
                c += store(5)
            if p == 0 and t > 0 and not (park and t > 1):
                c += readback()
            if t > 0 and p > 0 and not (park and t > 1):
                c += store(p - 1)
            c.append("MEM")
            for i in range(4):
                pr = V(base + 2 * i, 2)
                c.append(Inst(f"v_pk_mul_f32 {pr}, {pr}, {inv} op_sel_hi:[1,0]", "valu", rd=pr.regs() + inv.regs()[:1], wr=pr.regs()))
            o, sw_, d = pack(src, k)
            c += o
            if direct:
                tail = sw_ + [bstore(d, (sw, sr, go)[t], sO, 0, 64 * p, mods=om)]
            else:
                tail = sw_ + [dsw("ds_write_b128", sw, d, 64 * p + (0 if (park and t == 1) else 6400))]
            if k == 1 and not final and P["early4"]:
                c += [waitsite(dict(lgkm0=True)), barrier()] + [i for cb in range(3) for i in dma_piece("dmaK", 36, cb)]
            chunks.append(c)
            k += 1
    if direct and final:
        chunks.insert(3, pre)
        pre = [waitsite()]
    c = [waitsite()]
    nm_own, nm_oth, l_oth = vCI[3].sub(0), vT[14], vT[15]
    M = vT[9]
    fo, fx = vT[8], vT[10]
    c.append(valu("v_min_f32", M, nm_own, nm_oth))
    c.append(valu("v_sub_f32", fo, M, nm_own))
    c.append(valu("v_sub_f32", fx, M, nm_oth))
    c += tail + ([] if park else store(5) + readback())
    tail = []
    c.append(trans("v_exp_f32", fo, fo))
    c.append(trans("v_exp_f32", fx, fx))
    c.append(valu("v_mul_f32", vT[11], vL[3], fo))
    c.append(valu("v_fma_f32", vT[11], l_oth, fx, vT[11]))
    c.append(trans("v_rcp_f32", vT[11], vT[11]))
    c.append(valu("v_mul_f32", fo, fo, vT[11]))
    c.append(valu("v_mul_f32", fx, fx, vT[11]))
    for p3 in range(3):
        p = 3 * wp + p3
        base = 64 + 8 * (k % 4)
        src = [V(base + i) for i in range(8)]
        for i in range(8):
            c.append(valu("v_accvgpr_read_b32", src[i], aO[3][2 * p + i // 4].sub(i % 4)))
        c += tail
        if not park:
            c += store(2 * p3) + store(2 * p3 + 1)
        fo2, fx2 = V(fo.b, 2), V(fx.b, 2)
        for i in range(4):
            pr = V(base + 2 * i, 2)
            c.append(Inst(f"v_pk_mul_f32 {pr}, {pr}, {fo2} op_sel_hi:[1,0]", "valu", rd=pr.regs() + fo.regs(), wr=pr.regs()))
        for i in range(4):
            pr = V(base + 2 * i, 2)
            xr = X[2 * p3 + i // 2].sub(2 * (i % 2), 2)
            c.append(Inst(f"v_pk_fma_f32 {pr}, {xr}, {fx2}, {pr} op_sel_hi:[1,0,1]", "valu", rd=pr.regs() + fx.regs() + xr.regs(), wr=pr.regs()))
        o, sw_, d = pack(src, k)
        c += o
        tail = sw_ + [bstore(d, vT[5], sO, 0, 64 * p, mods=mods("omod" if final else "omoda"))]
        chunks.append(c)
        c = []
        k += 1
    chunks.append(tail)
    return pre, chunks


def o_srd(ph):
    o = [salu("s_add_u32", sT[4], sT[8], ph),
         salu("s_mul_i32", sT[5], sT[4], HEADQ),
         salu("s_add_u32", S(24), S(10), sT[5]),
         salu("s_addc_u32", S(25), S(11), 0),
         salu("s_mov_b32", sRowOwn, sNRowOwn),
         salu("s_mov_b32", sRowSh, sNRowSh)]
    return o


def phase_setup():
    o = o_srd(0) + next_q_setup(1)
    o.append(salu("s_mov_b32", S(80), S(12)))
    o.append(salu("s_mov_b32", S(81), S(13)))
    o.append(salu("s_mov_b32", S(82), 0))
    o.append(salu("s_mov_b32", sQSo, sNRowOwn))
    o.append(salu("s_mov_b32", sQSm, sRg))
    o.append(salu("s_add_u32", S(96), sNRowOwn, 12288 + 9216))
    o.append(salu("s_and_b32", sT[4], sW, 1))
    o.append(salu("s_mul_i32", sT[4], sT[4], 3072))
    o.append(salu("s_add_u32", S(97), sNRowSh, sT[4]))
    o.append(salu("s_min_u32", S(97), S(97), HEADQ - 3072))
    return o


def phase1_setup():
    o = [salu("s_mov_b32", S(80), S(24)), salu("s_mov_b32", S(81), S(25)), salu("s_mov_b32", S(82), 0),
         salu("s_add_u32", sQSo, sRowOwn, 6144),
         salu("s_add_u32", sT[4], sRg, 256),
         valu("v_lshrrev_b32", vAux, 3, vLane), valu("v_lshlrev_b32", vAux, 4, vAux),
         valu("v_add3_u32", vAux, vAux, vPFo, sT[4])]
    return o + o_srd(1)


def next_q_setup(ph):
    o = []
    o.append(salu("s_xor_b32", sT[5], sT[9], ph))
    o.append(salu("s_mul_i32", sT[5], sT[5], 224 * ROWB))
    o.append(salu("s_mul_i32", sT[6], sW, 48 * ROWB))
    o.append(salu("s_add_u32", sNRowOwn, sT[5], sT[6]))
    o.append(salu("s_lshr_b32", sT[6], sW, 1))
    o.append(salu("s_mul_i32", sT[6], sT[6], 16 * ROWB))
    o.append(salu("s_add_u32", sT[6], sT[6], 192 * ROWB))
    o.append(salu("s_add_u32", sNRowSh, sT[5], sT[6]))
    o.append(salu("s_mov_b32", sT[0], sNRowOwn))
    o.append(salu("s_add_u32", sT[1], sNRowOwn, 6144))
    o.append(salu("s_add_u32", sT[2], sNRowOwn, 12288))
    o.append(salu("s_add_u32", sT[4], sT[8], ph))
    o.append(salu("s_mul_i32", sT[5], sT[4], HEADQ))
    o.append(salu("s_add_u32", S(12), S(4), sT[5]))
    o.append(salu("s_addc_u32", S(13), S(5), 0))
    return o


def prologue():
    o = []
    o.append(scmp("s_cmp_ge_u32", S(2), 256))
    o.append(branch("s_cbranch_scc1", "L_end"))
    o.append(raw("s_load_dwordx4 s[4:7], s[0:1], 0"))
    o.append(raw("s_load_dwordx4 s[8:11], s[0:1], 16"))
    if P["stamp"]:
        o.append(raw(f"s_load_dwordx2 s[60:61], s[0:1], {40 if P['stamp'] == 1 else 32}"))
        o.append(raw("s_memtime s[70:71]"))
        o.append(raw("s_memrealtime s[72:73]"))
    o.append(valu("v_lshrrev_b32", vT[0], 6, V(0)))
    o.append(valu("v_and_b32", vLane, 63, V(0)))
    o.append(rfl(sW, vT[0]))
    o.append(salu("s_lshr_b32", sT[4], S(2), 4))
    o.append(salu("s_and_b32", sT[5], S(2), 7))
    if P["pmap"] == 0:
        o.append(salu("s_lshl_b32", sT[4], sT[4], 3))
    else:
        o.append(salu("s_lshl_b32", sT[5], sT[5], 4))
    o.append(salu("s_add_u32", sT[4], sT[4], sT[5]))
    o.append(salu("s_lshl_b32", sT[8], sT[4], 1))
    o.append(salu("s_lshr_b32", sT[9], S(2), 3))
    o.append(salu("s_and_b32", sT[9], sT[9], 1))
    o.append(salu("s_mul_i32", sT[7], sT[4], 2 * HEADK))
    o.append(salu("s_mul_i32", sWb, sW, 3072))
    o.append(salu("s_mov_b32", sKoff, 0))
    o.append(salu("s_mov_b32", sVoff, 0))
    c = f32bits(math.log2(math.e) / math.sqrt(192.0))
    o.append(salu("s_mov_b32", S(42), hex(c)))
    o.append(salu("s_mov_b32", S(43), hex(c)))
    o.append(salu("s_mov_b32", sTh, hex(f32bits(2.0 ** P["THR"]))))
    l = vLane
    t0, t1, t2, t3 = vT[0], vT[1], vT[2], vT[3]
    o.append(valu("v_lshrrev_b32", t0, 3, l))
    o.append(salu("s_lshl_b32", sT[5], sW, 3))
    o.append(valu("v_add_u32", t0, sT[5], t0))
    o.append(valu("v_mul_u32_u24", t1, ROWB, t0))
    o.append(valu("v_and_b32", t2, 7, l))
    o.append(valu("v_bfe_u32", t3, t0, 1, 3))
    o.append(valu("v_xor_b32", t3, t3, t2))
    o.append(valu("v_lshl_add_u32", vDK, t3, 4, t1))
    o.append(valu("v_bfe_u32", t3, t0, 1, 2))
    o.append(valu("v_lshlrev_b32", t3, 1, t3))
    o.append(valu("v_xor_b32", t3, t3, t2))
    o.append(valu("v_lshl_add_u32", vDV, t3, 4, t1))
    o.append(raw("s_waitcnt lgkmcnt(0)"))
    if P["stamp"] == 1:
        o.append(raw("s_memrealtime s[74:75]"))
    o.append(salu("s_add_u32", S(16), S(6), sT[7]))
    o.append(salu("s_addc_u32", S(17), S(7), 0))
    o.append(salu("s_mov_b32", S(18), 2 * HEADK))
    o.append(salu("s_mov_b32", S(19), "0x20000"))
    o.append(salu("s_add_u32", S(20), S(8), sT[7]))
    o.append(salu("s_addc_u32", S(21), S(9), 0))
    o.append(salu("s_mov_b32", S(22), 2 * HEADK))
    o.append(salu("s_mov_b32", S(23), "0x20000"))
    o.append(salu("s_mov_b32", S(14), HEADQ))
    o.append(salu("s_mov_b32", S(15), "0x20000"))
    for r in (85, 87, 91, 92):
        o.append(salu("s_mov_b32", S(r), 0))
    o.append(salu("s_mov_b32", S(26), HEADQ))
    o.append(salu("s_mov_b32", S(27), "0x20000"))
    if P["stamp"]:
        o.append(salu("s_mov_b32", S(62), "0x100000" if P["stamp"] == 1 else 256))
        o.append(salu("s_mov_b32", S(63), "0x20000"))
        o.append(salu("s_lshl_b32", S(66), S(2), 2))
        o.append(salu("s_add_u32", S(66), S(66), sW))
        o.append(salu("s_lshl_b32", S(66), S(66), 8))
        if P["stamp"] == 3:
            o.append(scmp("s_cmp_eq_u32", S(66), P["stwave"] * 256))
            o.append(salu("s_cselect_b32", S(62), 256, 0))
        if P["stamp"] >= 2:
            o.append(salu("s_mov_b32", S(66), 0))

    for i in range(4):
        o.append(salu("s_mov_b32", S(76 + i), S(16 + i)))
    o.append(salu("s_mov_b32", S(83), "0x20000"))
    o.append(salu("s_lshl_b32", sRg, sW, 14))
    o.append(salu("s_add_u32", sRg, sRg, RBASE))

    def dma_group(kind, G):
        return [i for cb in range(3) for i in dma_piece(kind, G, cb)]

    o += dma_group("dmaK", 0)
    o += dma_group("dmaK", 1)
    o.append(valu("v_and_b32", t0, 15, l))
    o.append(valu("v_lshrrev_b32", t1, 4, l))
    o.append(valu("v_mul_u32_u24", t2, ROWB, t0))
    o.append(valu("v_lshl_add_u32", vQO, t1, 4, t2))
    o += next_q_setup(0)
    for t in range(4):
        o += item_insts(("qadd", t), 0, 0)
    for i in range(P["qpre"]):
        o += item_insts(("qld", i // 6, i % 6), 0, 0)
    t0, t1, t2, t3 = vT[4], vT[5], vT[6], vT[7]
    o.append(valu("v_and_b32", t0, 15, l))
    o.append(valu("v_lshrrev_b32", t1, 4, l))
    o.append(valu("v_mul_u32_u24", t2, ROWB, t0))
    o.append(valu("v_and_b32", t3, 1, t1))
    o.append(valu("v_lshl_add_u32", t2, t3, 5, t2))
    o.append(valu("v_lshrrev_b32", t3, 1, t1))
    o.append(valu("v_lshl_add_u32", vOO, t3, 4, t2))
    o.append(valu("v_lshrrev_b32", t2, 3, l))
    o.append(valu("v_mul_u32_u24", t2, ROWB, t2))
    o.append(valu("v_and_b32", t3, 7, l))
    o.append(valu("v_xor_b32", t3, t3, t1))
    o.append(valu("v_lshl_add_u32", vPFo, t3, 4, t2))
    o.append(valu("v_lshrrev_b32", t2, 3, t0))
    o.append(valu("v_mul_u32_u24", t2, 3072, t2))
    o.append(valu("v_and_b32", t3, 7, t0))
    o.append(valu("v_lshl_add_u32", t2, t3, 7, t2))
    o.append(valu("v_lshrrev_b32", t3, 1, t0))
    o.append(valu("v_xor_b32", t3, t3, t1))
    o.append(valu("v_lshl_add_u32", vKA[0], t3, 4, t2))
    if KBASE:
        o.append(valu("v_add_u32", vKA[0], KBASE, vKA[0]))
    o.append(valu("v_xor_b32", vKA[1], 64, vKA[0]))
    o.append(valu("v_lshrrev_b32", t2, 2, t0))
    o.append(valu("v_and_b32", t3, 1, t1))
    o.append(valu("v_lshl_add_u32", t2, t3, 2, t2))
    o.append(valu("v_lshrrev_b32", t3, 1, t1))
    o.append(valu("v_mul_u32_u24", t3, 3072, t3))
    o.append(valu("v_lshl_add_u32", t3, t2, 7, t3))
    o.append(valu("v_and_b32", t0, 3, l))
    o.append(valu("v_lshl_add_u32", t3, t0, 3, t3))
    o.append(valu("v_add_u32", t3, VBASE, t3))
    o.append(valu("v_lshrrev_b32", t2, 1, t2))
    o.append(valu("v_lshl_add_u32", vVA[0], t2, 5, t3))
    for j in range(1, 4):
        o.append(valu("v_xor_b32", vVA[j], 32 * j, vVA[0]))
    if P["stamp"] == 1:
        o += [valu("v_mov_b32", vSt0, S(70)), valu("v_mov_b32", vSt1, S(66)), bstore(vSt0, vSt1, sWs, 0, 4 * 6), raw("s_nop 1"),
              valu("v_mov_b32", vSt0, S(72)), bstore(vSt0, vSt1, sWs, 0, 4 * 6 + 32), raw("s_nop 1")]
    if P["cpf"]:
        o.append(raw("s_getpc_b64 s[98:99]", kind="salu", wr=["s98", "s99"]))
        o.append(label("L_pc"))
        o.append(salu("s_lshr_b32", sT[4], S(2), 3))
        o.append(salu("s_lshl_b32", sT[4], sT[4], 2))
        o.append(salu("s_add_u32", sT[4], sT[4], sW))
        o.append(salu("s_lshl_b32", sT[4], sT[4], 10))
        o.append(valu("v_and_b32", t0, 7, l))
        o.append(valu("v_lshl_add_u32", t0, t0, 7, sT[4]))
        o.append(valu("v_min_u32", t0, "L_hot_end-L_pc-4", t0))
        o.append(Inst(f"global_load_dword {t1}, {t0}, s[98:99]", "vmem", rd=t0.regs() + ["s98", "s99"], wr=t1.regs()))
        t0 = t2
    o.append(valu("v_lshlrev_b32", vAux, 7, l))
    o.append(Inst(f"v_cmp_gt_u32 vcc, 24, {l}", "valu", rd=l.regs(), wr=["vcc"]))
    o.append(valu("v_mov_b32", t0, "0x40000000"))
    o.append(Inst(f"v_cndmask_b32 {vAux}, {t0}, {vAux}, vcc", "valu", rd=t0.regs() + vAux.regs() + ["vcc"], wr=vAux.regs()))
    o += cnt_addr()
    o.append(valu("v_mov_b32", vCr, 0))
    o.append(dsw("ds_write_b32", vCa, vCr))
    o.append(salu("s_mov_b32", sTgt, 4))
    o.append(salu("s_and_b32", sT[4], sW, 1))
    o.append(scmp("s_cmp_eq_u32", sT[4], 1))
    o.append(branch("s_cbranch_scc1", "L_start_1"))
    return o


def cnt_addr():
    return [salu("s_mov_b32", sT[12], CNT_ADDR), valu("v_lshl_add_u32", vCa, vLane, 2, sT[12])]


def rare_common(wp, typ):
    Gp = wp if typ == 0 else 1 - wp
    o = [label(f"L_rare_{wp}_{typ}"), raw("s_nop 15"), raw("s_nop 15")]
    kt_ = [V(vT[0].b, 4), V(vT[4].b, 4)] + [A(240 + 4 * s, 4) for s in range(4)]
    ka = V(0)

    def recompute(G, soff, cfun):
        r = []
        for kt in range(2):
            r.append(valu("v_add_u32", ka, 6144 * kt, vQO))
            for s in range(6):
                r.append(bload(kt_[s], ka, sKR, soff, 64 * s))
            r.append(raw("s_waitcnt vmcnt(0)"))
            r.append(waitsite(dict(vm0=True)))
            for t in tiles(G, wp):
                for s in range(6):
                    r.append(mfma(vS[t][kt], kt_[s], vQ[t][s], vS[t][kt] if s else cfun(t)))
            r.append(raw("s_nop 15"))
        return r

    o += recompute(Gp, sT[11], lambda t: 0)
    m, m2, f = vT[0], vT[1], vT[2]
    for t in tiles(Gp, wp):
        s0, s1 = vS[t]
        o.append(valu("v_max3_f32", m, s0.sub(0), s0.sub(1), s0.sub(2)))
        o.append(valu("v_max3_f32", m, m, s0.sub(3), s1.sub(0)))
        o.append(valu("v_max3_f32", m, m, s1.sub(1), s1.sub(2)))
        o.append(valu("v_max_f32", m, m, s1.sub(3)))
        o += lane_reduce(m, m2, "v_max_f32")
        o.append(valu("v_sub_f32", m2, 0, vCI[t].sub(0)))
        o.append(valu("v_max_f32", m, m, m2))
        o.append(valu("v_sub_f32", f, m2, m))
        o.append(trans("v_exp_f32", f, f))
        for r in range(4):
            o.append(valu("v_sub_f32", vCI[t].sub(r), 0, m))
        o.append(valu("v_mul_f32", vL[t], vL[t], f))
        for dt in range(12):
            for r in range(4):
                o.append(valu("v_accvgpr_read_b32", vT[4 + r], aO[t][dt].sub(r)))
            for r in range(4):
                o.append(valu("v_mul_f32", vT[4 + r], vT[4 + r], f))
            for r in range(4):
                o.append(valu("v_accvgpr_write_b32", aO[t][dt].sub(r), vT[4 + r]))
        for kt in range(2):
            for r in range(4):
                x = vS[t][kt].sub(r)
                o.append(valu("v_sub_f32", x, x, m))
                o += item_insts(("exp", Gp, t, kt, r), wp, 0)
        for i in range(7):
            o += item_insts(("add", Gp, t, i), wp, 0)
        for kt in range(2):
            for h in range(2):
                o += item_insts(("cvt", Gp, t, kt, h), wp, 0)
    o.append(scmp("s_cmp_eq_u32", sT[10], 0))
    o.append(branch("s_cbranch_scc1", f"L_rare_{wp}_{typ}_ret"))
    o.append(salu("s_add_u32", sT[11], sT[11], GRP))
    o += recompute(Gp + 1, sT[11], lambda t: vCI[t])
    o.append(label(f"L_rare_{wp}_{typ}_ret"))
    return o


def build_phase(wp):
    tm = steady_template(wp)
    sc = StepCode(wp)
    segs = {}
    done2 = {abskey(k, 1) for g in tm[1 % 2] for k in g if k[0] in ("exp", "add", "cvt", "chkA", "chkB", "chkC") and k[1] == 1}

    def sched_head(startup):
        H = Region(wp, -1, 1, startup=startup)
        items = H.sm_items(0) + H.sm_items(1)
        g2 = H.sm_items(2, only=done2)
        for it in g2:
            it.dead = min(it.dead, H.n - 1)
        items += g2
        for e in (-1, 0, 1):
            items += H.mem_items(e)
        gaps = H.schedule(items)
        assert not H.left, [x.key for x in H.left]
        if P["verbose"]:
            print(f"wp{wp} head{int(startup)} overflow {H.over}", file=sys.stderr)
        return H, gaps

    H, gaps = sched_head(False)
    NEED = [("V", 1), ("K", 3)]

    def do_emit(R, gk, e, tag, **kw):
        mf = [R.mf[i][1] for i in range(R.st[e], R.en[e] + 1)]
        chk = R.chk_gap(e) - R.st[e] if e > 0 else None
        sync = P["BR"] if R.has_sync(e) else None
        end = None if (R.has_arr(e) or e >= NG - 2) else NEED
        return sc.emit(mf, gk, e, tag, chk, sync, end, arr_need=NEED, **kw)

    def cut(R, gaps, e):
        return [[it.key for it in gaps[i]] for i in range(R.st[e], R.en[e] + 1)]

    sc.ph = 1
    for e in (-1, 0, 1):
        segs[e] = do_emit(H, cut(H, gaps, e), e, f"h{wp}_{e + 1}")
    R = Region(wp, 2, 5, regular=True)
    def build_loop(ph):
        sc.ph = ph
        gks = {e: [[abskey(k, e) for k in g] for g in tm[e % 2]] for e in range(2, 6)}
        extra = {e: [] for e in range(2, 6)}

        def used(g):
            return sum(CLS[k[0]][1] for k in g)

        def vm(g):
            return any(CLS[k[0]][0] == "dma" for k in g)

        def spots(after, cost, lds=False):
            r = []
            for e in range(2, 6):
                for i, g in enumerate(gks[e]):
                    if (e, i) <= after or not 0 < i < 82 or used(g) + cost > 8:
                        continue
                    if cost == 8 and (vm(gks[e][i - 1]) or vm(gks[e][i + 1])):
                        continue
                    if lds and any(CLS[k[0]][0] == "lds" for k in g):
                        continue
                    r.append((e, i))
            return r

        def put(pos, key):
            gks[pos[0]][pos[1]].append(key)
            return pos

        def spread(keys, after):
            pos = after
            for n, k in enumerate(keys):
                c = spots(pos, 8)
                pos = put(c[max(0, len(c) // (len(keys) - n + 1) - 1) if n else 0], k)
            return pos

        if ph == 0:
            setup = []
            if P["qst"]:
                setup += [[salu("s_and_b32", sT[13], sCnt, 4)], [salu("s_lshl_b32", sT[13], sT[13], 4)],
                          [salu("s_xor_b32", S(87), sT[13], 64)],
                          [salu("s_mul_i32", S(91), S(87), 48)], [salu("s_mul_i32", S(82), S(87), HEADQ // 64)]]
                keys = [("dmaQ", 0, cb) for cb in range(3)]
                if P["qpf"]:
                    keys.insert(0, ("pf",))
                    setup += [[salu("s_mul_i32", sT[13], sCnt, 3072)], [salu("s_sub_u32", sT[13], S(96), sT[13])],
                              [scmp("s_cmp_ge_u32", sCnt, 2), salu("s_cselect_b32", S(92), sT[13], S(97))]]
                qend = spread(keys, (2, 40))
                put(spots(qend, 4)[0], ("pfa",))
                extra[qend[0]].append((qend[1] + 1, 82, [[salu("s_add_u32", sQSo, sQSo, S(91))], [salu("s_add_u32", sQSm, sQSm, S(91))]]))
                extra[2].insert(0, (0, 39, setup))
        else:
            setup = [[salu("s_min_u32", sT[13], sCnt, 1)], [salu("s_mul_i32", S(85), sT[13], 2 * HEADK)]]
            if P["park"]:
                setup += [[salu("s_add_u32", sT[13], sCnt, 1)], [salu("s_and_b32", sT[13], sT[13], 4)],
                          [salu("s_mul_i32", S(82), sT[13], HEADQ // 4)], [salu("s_mul_i32", S(91), sT[13], 800)],
                          [salu("s_mul_i32", S(87), sT[13], 768)]]
                pos = (2, 0)
                for j in range(3):
                    pos = put(spots(pos, 4, lds=True)[0], ("drd", j))
                put(spots((max(pos[0], 2), max(pos[1], 40)) if pos[0] == 2 else pos, 4)[0], ("dra",))
                first = (pos[0], pos[1] + 8) if pos[1] < 70 else (pos[0] + 1, 0)
                dend = spread([("dst", j) for j in range(3)], max(first, (2, 40)))
                extra[dend[0]].append((dend[1] + 1, 82, [[salu("s_add_u32", sQSo, sQSo, S(87))]]))
            extra[2].insert(0, (0, 39, setup))
            for e, r in ((2, 18), (4, 22)):
                lastdma = max(i for i, g in enumerate(gks[e]) for k in g if k[0] in ("dmaK", "dmaV"))
                extra[e].append((lastdma + 1, 83, [[salu("s_mov_b32", S(r), S(85))]]))
        out = {e: do_emit(R, gks[e], e, f"b{wp}{ph}_{e}", extra=extra[e]) for e in range(2, 6)}
        out[5] = out[5] + [salu("s_sub_u32", sCnt, sCnt, 1), branch("s_cbranch_scc0", f"L_loop_{wp}{ph}")]
        return out

    loops = [build_loop(0), build_loop(1)]
    if P["verbose"]:
        print(f"wp{wp} loop salu overflow slots {sc.over}", file=sys.stderr)
    done30 = {abskey(k, 29) for g in tm[29 % 2] for k in g if k[1] == 1}
    for final in (False, True):
        sc.ph = int(final)
        T = Region(wp, 30, 31, final=final)
        items = T.sm_items(30, skip=done30) + T.sm_items(31)
        for e in (30, 31):
            items += T.mem_items(e)
        items += epi_items(T, wp)
        gaps = T.schedule(items)
        if not final:
            qleft = T.qleft
        assert not T.left, [x.key for x in T.left]
        if P["verbose"]:
            print(f"wp{wp} tail{int(final)} overflow {T.over}", file=sys.stderr)
        for e in (30, 31):
            ex = [(20, 83, [[salu("s_mov_b32", sT[4], sRg)], [salu("s_xor_b32", sT[5], sRg, RW)], [salu("s_add_u32", sT[6], sRg, STGO)]])] if e == 30 else []
            segs[(e, final)] = do_emit(T, cut(T, gaps, e), e, f"t{wp}{int(final)}_{e}", midbar=[("V", 1)] if e == 30 else None, extra=ex)

    start = [label(f"L_start_{wp}")] + stamp(0)
    start += [waitsite(dict(lgkm0=True, vm=[("K", 0), ("K", 1)])), barrier()]
    if P["stamp"] == 1:
        start += [raw("s_memrealtime s[100:101]"), raw("s_waitcnt lgkmcnt(0)"),
                  valu("v_mov_b32", vSt0, S(74)), valu("v_mov_b32", vSt1, S(66)), bstore(vSt0, vSt1, sWs, 0, 4 * 7), raw("s_nop 1"),
                  valu("v_mov_b32", vSt0, S(100)), bstore(vSt0, vSt1, sWs, 0, 4 * 15), raw("s_nop 1")]
    for kt in range(2):
        for s in range(6):
            start += item_insts(("krd", 0, kt, s), wp, 0)
    rest = [(kind, G, cb) for kind, G in (("dmaV", 0), ("dmaK", 2), ("dmaV", 1), ("dmaK", 3), ("dmaV", 2)) for cb in range(3)]
    todo = [item_insts(("qld", i // 6, i % 6), 0, 0) for i in range(P["qpre"], 24)] + [dma_piece(*r, e=-1) for r in rest]
    pay = [[] for _ in range(4)]
    for i in range(24):
        pay[i // 6] += q_chunk(i // 6, i % 6)
        n = -(-len(todo) // (24 - i))
        for _ in range(n):
            pay[i // 6] += todo.pop(0)
    pay[3] += phase_setup() + stamp(1)
    HS, gapsS = sched_head(True)
    sc.ph = 0
    segS = {e: do_emit(HS, cut(HS, gapsS, e), e, f"s{wp}_{e + 1}", payload=pay if e == -1 else None) for e in (-1, 0, 1)}
    head = stamp(1) + [waitsite()]
    loop_in = [[salu("s_mov_b32", sCnt, 6)] + stamp(2) + [raw(".p2align 6", kind="label"), label(f"L_loop_{wp}{ph}")] for ph in range(2)]
    after_loop = [stamp(3), stamp(3)]
    pre, ch = epilogue(wp, False)
    epi_a = stamp(4) + pre
    qc = [q_chunk(i // 6, i % 6) for i in range(24)]
    if P["ilv"]:
        skip = 0 if P["qst"] else 4
        for i, c in enumerate(ch):
            mem = item_insts(qleft.pop(0), wp, 0) if (qleft and "MEM" in c) else []
            epi_a.append(waitsite())
            for x in c:
                epi_a += mem if x == "MEM" else [x]
            if i >= skip and qc:
                epi_a += qc.pop(0)
    assert not qleft
    epi_a += stamp(5)
    for c in qc:
        epi_a += c
    if P["stamp"]:
        epi_a.append(salu("s_add_u32", S(66), S(66), 64 if P["stamp"] == 1 else 24))
    epi_a += phase1_setup() + stamp(0)
    pre, ch = epilogue(wp, True)
    epi_b = stamp(4) + pre + [i for c in ch for i in c if i != "MEM"] + stamp(5) + [raw("s_endpgm")]

    def parts(ph, trips):
        b = 32 * ph
        d = [(i, b) for i in (start if ph == 0 else head)]
        for e in (-1, 0, 1):
            d += [(i, b + e) for i in (segs if ph else segS)[e]]
        d += [(i, b) for i in loop_in[ph]]
        for it in range(trips):
            for e in range(2, 6):
                d += [(i, b + e + 4 * it) for i in loops[ph][e]]
        d += [(i, b) for i in after_loop[ph]]
        for e in (30, 31):
            d += [(i, b + e) for i in segs[(e, ph == 1)]]
        d += [(i, b) for i in (epi_b if ph else epi_a)]
        return d

    static = [i for i, _ in parts(0, 1) + parts(1, 1)]

    def dyn(ph):
        return parts(ph, 7)

    rare = []
    def spin(lab):
        return [salu("s_mov_b32", sT[14], 0), label(f"{lab}_spin"), raw(f"ds_read_b32 {vCr}, {vCa}"), salu("s_add_u32", sT[14], sT[14], 1),
                raw("s_waitcnt lgkmcnt(0)"), raw(f"v_cmp_gt_u32 {sCm}, {sTgt}, {vCr}"), scmp("s_cmp_gt_u32", sT[14], "0x40000"),
                branch("s_cbranch_scc1", f"{lab}_spun"), raw(f"s_cmp_lg_u64 {sCm}, 0"), branch("s_cbranch_scc1", f"{lab}_spin"),
                label(f"{lab}_spun")]

    for lab, e, replay, chk, sync in sc.sites:
        if sync and not chk:
            rare += [label(f"{lab}_rare")] + spin(lab) + [branch("s_branch", f"{lab}_back")]
    if P["check"]:
        for typ in (0, 1):
            mine = [(n, s) for n, s in enumerate(sc.sites) if buf(s[1], wp) == typ and s[3]]
            for n, (lab, e, replay, chk, sync) in mine:
                rare.append(label(f"{lab}_rare"))
                if sync:
                    rare += spin(lab)
                    rare += [raw(f"v_cmp_lt_f32 vcc, {sTh}, {vChk}"), raw("s_nop 4"), branch("s_cbranch_vccz", f"{lab}_back")]
                rare.append(salu("s_mov_b32", sRet, n))
                rare.append(salu("s_mov_b32", sT[10], 0 if e == NG - 1 else 1))
                rare.append(salu("s_mov_b32", sT[11], sc.site_ph[lab] * HEADK))
                if 2 <= e <= 5:
                    rare.append(salu("s_sub_u32", sT[12], 6, sCnt))
                    rare.append(salu("s_mul_i32", sT[12], sT[12], 4 * GRP))
                    rare.append(salu("s_add_u32", sT[11], sT[11], sT[12]))
                rare.append(salu("s_add_u32", sT[11], sT[11], e * GRP))
                rare.append(branch("s_branch", f"L_rare_{wp}_{typ}"))
            com = rare_common(wp, typ)
            Sim().run([(i, 0) for i in com])
            rare += com
            for n, (lab, e, replay, chk, sync) in mine:
                rare.append(scmp("s_cmp_eq_u32", sRet, n))
                rare.append(branch("s_cbranch_scc1", f"{lab}_replay"))
            rare.append(raw("s_endpgm"))
            for n, (lab, e, replay, chk, sync) in mine:
                rp = [label(f"{lab}_replay")]
                for k in replay:
                    rp += item_insts(k, wp, e)
                rp.append(raw("s_nop 4"))
                Sim().run([(i, 0) for i in rp])
                rare += rp
                rare.append(branch("s_branch", f"{lab}_back"))
    return static, dyn, rare


def main():
    pro = prologue()
    text = []
    body = []
    for wp in (0, 1):
        for pas in range(2):
            static, dyn, rare = build_phase(wp)
            for _ in range(2):
                sim = Sim()
                sim.run([(i, 0) for i in pro] + dyn(0) + dyn(1))
            for i in static:
                if i.kind == "wait" and i.note and (i.lgk is not None or i.vm is not None):
                    ACTIVE.add(i.note)
        if P["verbose"]:
            nn = sum(i.nop for i in static)
            print(f"wp{wp}: static insts {len(static)} nops {nn} max vq {sim.maxvq}", file=sys.stderr)
        body.append((static, rare))
    hdr = open("standalone__gqa_softmax__near_ridge.s.ref").read().splitlines()
    for ln in hdr:
        if ln.startswith("; @launch"):
            text.append(f"; @launch grid=(256,1,1) block=(256,1,1) lds={LDS_BYTES}")
        elif ln.startswith(";"):
            text.append(ln)
        else:
            break
    text += ["; Generated by gen/genk.py " + " ".join(sys.argv[2:]),
             '.amdgcn_target "amdgcn-amd-amdhsa--gfx950"', ".text", f".globl {NAME}", ".p2align 8",
             f".type {NAME},@function", f"{NAME}:"]
    text += render(pro)
    for static, rare in body:
        text += render(static)
    text.append("L_hot_end:")
    for static, rare in body:
        text += render(rare)
    text += ["L_end:", "    s_endpgm", '.section .rodata,"a"', ".p2align 6", f".amdhsa_kernel {NAME}",
             "  .amdhsa_next_free_vgpr 512", "  .amdhsa_next_free_sgpr 102", "  .amdhsa_accum_offset 256",
             "  .amdhsa_group_segment_fixed_size 0", "  .amdhsa_kernarg_size 48", "  .amdhsa_user_sgpr_count 2",
             "  .amdhsa_user_sgpr_kernarg_segment_ptr 1", "  .amdhsa_system_sgpr_workgroup_id_x 1", ".end_amdhsa_kernel", ""]
    open(sys.argv[1], "w").write("\n".join(text))


main()
```

```python
import sys, struct, math
sys.path.insert(0, "gen")
from asmlib import *

P = dict(
    LAT=4,
    LDSLAT=8,
    THR=20,
    check=1,
    stamp=0,
    pmap=1,
    stwave=404,
    verbose=0,
    nobar=0,
    ssync=1,
    BR=11,
    ARR=12,
    qst=1,
    kst=3,
    dsp=13,
    qlsp=8,
    qpre=10,
    fakepair=0,
    cpf=1,
    park=1,
    qpf=1,
    omodp="sc0+sc1",
    fdirect=0,
    adirect=0,
    early4=1,
    ilv=1,
    kvmod="nt",
    qmod="",
    omod="sc0+sc1",
    omoda="",
)
for a in sys.argv[2:]:
    k, v = a.split("=")
    P[k] = type(P[k])(v) if k in P else v

NAME = "standalone__gqa_softmax__near_ridge_kernel"
ROWB = 384
GRP = 12288
HEADQ = 432 * ROWB
HEADK = 1024 * ROWB
KBASE, VBASE, RBASE = 0, 49152, 98304
RW = 16384
STGO = 256
LDS_BYTES = RBASE + 4 * RW
NG = 32
MIDBAR = 40

sQ, sK, sV, sO = S(12, 4), S(16, 4), S(20, 4), S(24, 4)
sW, sKoff, sVoff, sCnt, sPh, sWb, sC, sTh, sRet = (S(i) for i in range(28, 37))
sRowOwn, sRowSh, sNRowOwn, sNRowSh = S(37), S(38), S(39), S(40)
sT = [S(i) for i in range(44, 60)]
sQp, sOp = S(4, 2), S(10, 2)
sWs = S(60, 4)
sStamp = S(64, 2)
sKR = S(76, 4)
sPF = S(80, 4)

vLane = V(1)
vKA = [V(2), V(3)]
vVA = [V(4 + i) for i in range(4)]
vDK, vDV = V(8), V(9)
vQO, vOO = V(10), V(11)
vL = [V(12 + t) for t in range(4)]
vLG = [[V(16 + 4 * b + t) for t in range(4)] for b in range(2)]
vT = [V(24 + i) for i in range(24)]
vCI = [V(48 + 4 * t, 4) for t in range(4)]
vS = [[V(64 + 8 * t + 4 * kt, 4) for kt in range(2)] for t in range(4)]
vP = [[V(96 + 16 * b + 4 * t, 4) for t in range(4)] for b in range(2)]
vVF = [V(128 + 4 * i, 4) for i in range(8)]
vQ = [[V(160 + 24 * t + 4 * s, 4) for s in range(6)] for t in range(4)]
aO = [[A(48 * t + 4 * dt, 4) for dt in range(12)] for t in range(4)]
aKF = [[A(192 + 24 * kt + 4 * s, 4) for s in range(6)] for kt in range(2)]
vChk = V(28)
vQoff = [V(24 + t) for t in range(4)]
vSt0, vSt1 = V(0), V(45)
vAux = V(47)
vCa, vCr = V(46), V(30)
sTgt, sCm = S(93), S(94, 2)
CNT_ADDR = RBASE + 16128
XREG = {}
LATE = set()
ACTIVE = set()
vPFo = V(23)
sQSo, sQSm, sRg = S(84), S(89), S(90)


def vf(G, dt):
    return vVF[(dt + (4 if G == NG - 1 else 0)) % 8]


def f32bits(x):
    return struct.unpack("<I", struct.pack("<f", x))[0]


def mods(k):
    return "".join(" " + x for x in P[k].split("+") if x)


def tiles(G, wp):
    return [0, 1, 2, 3] if (G % 2) == wp else [0, 1, 2]


def buf(G, wp):
    return 0 if (G % 2) == wp else 1


def item_insts(key, wp, e):
    k = key[0]
    if k == "exp":
        _, G, t, kt, r = key
        x = vS[t][kt].sub(r)
        return [trans("v_exp_f32", x, x)]
    if k == "add":
        _, G, t, i = key
        lg = vLG[buf(G, wp)][t]
        if i == 0:
            return [valu("v_add_f32", lg, vS[t][0].sub(0), vS[t][0].sub(1))]
        j = i + 1
        return [valu("v_add_f32", lg, lg, vS[t][j // 4].sub(j % 4))]
    if k == "cvt":
        _, G, t, kt, h = key
        return [valu("v_cvt_pk_bf16_f32", vP[buf(G, wp)][t].sub(2 * kt + h), vS[t][kt].sub(2 * h), vS[t][kt].sub(2 * h + 1))]
    if k == "chkA":
        lg = vLG[buf(key[1], wp)]
        return [valu("v_max3_f32", vChk, lg[0], lg[1], lg[2])]
    if k == "chkB":
        lg = vLG[buf(key[1], wp)]
        return [valu("v_max_f32", vChk, vChk, lg[3])]
    if k == "chkC":
        return [Inst(f"v_cmp_lt_f32 vcc, {sTh}, {vChk}", "valu", rd=vChk.regs() + sTh.regs(), wr=["vcc"])]
    if k == "ladd":
        _, G, t = key
        lg = vLG[buf(G, wp)][t]
        first = (G == 0) if t < 3 else (G == wp)
        if first:
            return [valu("v_mov_b32", vL[t], lg)]
        return [valu("v_add_f32", vL[t], vL[t], lg)]
    if k == "vrd":
        _, G, dt, hf = key
        return [dsr("ds_read_b64_tr_b16", vf(G, dt).sub(2 * hf, 2), vVA[dt % 4], (G % 4) * GRP + hf * 6144 + (dt // 4) * 1024)]
    if k == "krd":
        _, G, kt, s = key
        return [dsr("ds_read_b128", aKF[kt][s], vKA[s % 2], (G % 4) * GRP + kt * 6144 + (s // 2) * 1024)]
    if k == "dmaV":
        _, G, cb = key
        return [bdma(vDV, sV, sVoff, cb * 128, tag=("V", G - e), mods=mods("kvmod"))]
    if k == "dmaK":
        _, G, cb = key
        return [bdma(vDK, sK, sKoff, cb * 128, tag=("K", G - e), mods=mods("kvmod"))]
    if k == "qadd":
        _, t = key
        if t < 3:
            return [valu("v_add_u32", vQoff[t], sT[t], vQO)]
        return [valu("v_add_u32", vQoff[t], sNRowSh, vQO)]
    if k == "qld":
        _, t, s = key
        return [bload(vQ[t][s], vQoff[t], sQ, 0, 64 * s, mods=mods("qmod"))]
    if k == "dmaQ":
        return [bdma(vPFo, sPF, sQSo, key[2] * 128, tag=("Q", -e), mods=mods("kvmod"))]
    if k in ("xv", "xp", "xt", "xw"):
        return XREG[key]()
    if k == "arr":
        return [dsw("ds_inc_u32", vCa, vCa)]
    if k == "crd":
        return [dsr("ds_read_b32", vCr, vCa)]
    if k == "ccmp":
        return [Inst(f"v_cmp_gt_u32 {sCm}, {sTgt}, {vCr}", "valu", rd=vCr.regs() + sTgt.regs(), wr=sCm.regs())]
    if k == "pf":
        return [Inst(f"buffer_load_dword {vT[8]}, {vAux}, {sPF}, {S(92)} offen", "vmem", rd=vAux.regs() + sPF.regs() + ["s92"], wr=vT[8].regs())]
    if k == "drd":
        return [dsr("ds_read_b128", V(vT[8].b + 4 * key[1], 4), vAux, 128 * key[1])]
    if k == "dst":
        return [bstore(V(vT[8].b + 4 * key[1], 4), vPFo, sPF, sQSo, 128 * key[1], mods=mods("omodp"))]
    if k == "dra":
        return [valu("v_add_u32", vAux, S(91), vAux)]
    if k == "pfa":
        return [valu("v_xor_b32", vPFo, S(87), vPFo)]
    if k == "qra":
        return [valu("v_add_u32", vQoff[key[1]], sRg, vKA[key[1]])]
    if k == "qrd":
        _, t, s = key
        return [dsr("ds_read_b128", vQ[t][s], vQoff[s % 2], t * 6144 + (s // 2) * 1024)]
    if k == "mx":
        _, t, i = key
        m, s0, s1 = vT[8 + 2 * t], vS[t][0], vS[t][1]
        m2 = vT[9 + 2 * t]
        if i == 0:
            return [valu("v_max3_f32", m, s0.sub(0), s0.sub(1), s0.sub(2))]
        if i == 1:
            return [valu("v_max3_f32", m, m, s0.sub(3), s1.sub(0))]
        if i == 2:
            return [valu("v_max3_f32", m, m, s1.sub(1), s1.sub(2))]
        if i == 3:
            return [valu("v_max_f32", m, m, s1.sub(3))]
        if i in (4, 7):
            return [valu("v_mov_b32", m2, m)]
        if i == 5:
            return [perm("v_permlane32_swap_b32", m, m2)]
        if i == 8:
            return [perm("v_permlane16_swap_b32", m, m2)]
        if i in (6, 9):
            return [valu("v_max_f32", m, m, m2)]
    if k == "ci":
        _, t, r = key
        return [valu("v_sub_f32", vCI[t].sub(r), 0, vT[8 + 2 * t])]
    if k == "sub":
        _, t, kt, r = key
        x = vS[t][kt].sub(r)
        return [valu("v_sub_f32", x, x, vT[8 + 2 * t])]
    raise KeyError(key)


def m0_for(key):
    k, G, cb = key
    if k == "dmaQ":
        return salu("s_add_u32", "m0", sQSm, cb * (1024 - 128))
    base = (KBASE if k == "dmaK" else VBASE) + (G % 4) * GRP + cb * (1024 - 128)
    return salu("s_add_u32", "m0", sWb, base)


CLS = dict(exp=("exp", 8), add=("valu", 4), cvt=("valu", 4), chkA=("valu", 4), chkB=("valu", 4), chkC=("valu", 4),
           ladd=("valu", 4), vrd=("lds", 4), krd=("lds", 4), dmaV=("dma", 8), dmaK=("dma", 8), qadd=("valu", 4),
           qld=("dma", 8), pf=("dma", 8), drd=("lds", 4), dst=("dma", 8), dra=("valu", 4), xv=("valu", 4), xp=("valu", 4), xt=("exp", 8), xw=("dma", 8), dmaQ=("dma", 8), arr=("lds", 4), crd=("lds", 4), ccmp=("valu", 4), pfa=("valu", 4), qra=("valu", 4), qrd=("lds", 4), mx=("valu", 4), ci=("valu", 4), sub=("valu", 4))


class Item:
    def __init__(self, key, hard, soft, dead, deps=()):
        self.key, self.hard, self.soft, self.dead = key, hard, max(hard, soft), dead
        self.deps = list(deps)
        self.cls, self.cost = CLS[key[0]]
        self.placed = None


class Region:
    def __init__(self, wp, e0, e1, regular=False, final=False, startup=False):
        self.wp, self.e0, self.e1, self.regular, self.final, self.startup = wp, e0, e1, regular, final, startup
        self.mf = []
        self.qs, self.qe, self.pvs, self.pvu, self.pvd = {}, {}, {}, {}, {}
        self.kfl = {}
        self.ql = {}
        self.st, self.en = {}, {}
        last = NG - 1
        for e in range(e0, e1 + 1):
            self.st[e] = len(self.mf)
            G = e + 1
            if regular or G <= last:
                if e == -1:
                    order = [(t, kt) for t in range(4) for kt in range(2)]
                else:
                    order = [(t, kt) for kt in range(2) for t in tiles(G, wp)]
                for t, kt in order:
                    if startup and e == -1 and kt == 0:
                        self.mf.append((e, None))
                    self.qs[(G, t, kt)] = len(self.mf)
                    for s in range(6):
                        self.kfl[(G, kt, s)] = len(self.mf)
                        self.ql[(t, s)] = len(self.mf)
                        self.mf.append((e, ("qk", G, t, kt, s)))
                    self.qe[(G, t, kt)] = len(self.mf) - 1
            else:
                self.mf.append((e, None))
            if e >= 0:
                self.pvs[e] = len(self.mf)
                if P["fakepair"]:
                    for d2 in range(6):
                        self.pvu[(e, 2 * d2)] = len(self.mf)
                        self.pvu[(e, 2 * d2 + 1)] = len(self.mf) + 1
                        for t in tiles(e, wp):
                            self.mf.append((e, ("pv", e, t, 2 * d2)))
                            self.mf.append((e, ("pv", e, t, 2 * d2 + 1)))
                        self.pvd[(e, 2 * d2)] = len(self.mf) - 2
                        self.pvd[(e, 2 * d2 + 1)] = len(self.mf) - 1
                for dt in range(12 if not P["fakepair"] else 0):
                    self.pvu[(e, dt)] = len(self.mf)
                    for t in tiles(e, wp):
                        self.mf.append((e, ("pv", e, t, dt)))
                    self.pvd[(e, dt)] = len(self.mf) - 1
            self.en[e] = len(self.mf) - 1
        self.n = len(self.mf)

    def has_sync(self, e):
        return bool(P["ssync"]) and (self.regular or 1 <= e <= NG - 2)

    def has_arr(self, e):
        return bool(P["ssync"]) and (self.regular or 0 <= e <= NG - 3)

    def chk_gap(self, e):
        if self.has_sync(e) and (self.regular or e >= 2):
            return self.st[e] + P["BR"]
        return self.pvs[e] - 1

    def sm_items(self, G, only=None, skip=None):
        wp = self.wp
        BIG = 10 ** 6
        items = {}
        pvs = self.chk_gap(G) + 1 if G in self.pvs else BIG

        def add(it):
            items[it.key] = it

        for t in tiles(G, wp):
            G2 = G + 1 if t < 3 else G + 2
            qd = {}
            for kt in range(2):
                ov = self.qs.get((G2, t, kt), BIG)
                qd[kt] = min(ov - 1, pvs - 6)
                qe = self.qe.get((G, t, kt), -1)
                for r in range(4):
                    deps = [("sub", t, kt, r)] if G == 0 and not self.regular else []
                    add(Item(("exp", G, t, kt, r), qe, qe + P["LAT"], qd[kt] - 3, deps))
                for h in range(2):
                    add(Item(("cvt", G, t, kt, h), qe, 0, qd[kt], [("exp", G, t, kt, 2 * h), ("exp", G, t, kt, 2 * h + 1)]))
            for i in range(7):
                j = i + 1
                deps = [("exp", G, t, j // 4, j % 4)]
                deps.append(("exp", G, t, 0, 0) if i == 0 else ("add", G, t, i - 1))
                add(Item(("add", G, t, i), -1, 0, qd[j // 4], deps))
            add(Item(("ladd", G, t), pvs, 0, self.en.get(G, BIG), [("add", G, t, 6)]))
        if P["check"] and (G > 0 or self.regular):
            add(Item(("chkA", G), -1, 0, pvs - 5, [("add", G, t, 6) for t in range(3)]))
            lastk = ("chkA", G)
            if len(tiles(G, wp)) == 4:
                add(Item(("chkB", G), -1, 0, pvs - 4, [lastk, ("add", G, 3, 6)]))
                lastk = ("chkB", G)
            add(Item(("chkC", G), -1, 0, pvs - 3, [lastk]))
        out = []
        for k, it in items.items():
            if only is not None and k not in only:
                continue
            if skip is not None and k in skip:
                continue
            out.append(it)
        return out

    def mem_items(self, e):
        items = []
        st, en = self.st[e], self.en[e]
        L = P["LDSLAT"]
        last = NG - 1
        st0 = st
        if self.has_sync(e):
            items.append(Item(("crd", e), st, st + 1, st + 2))
            items.append(Item(("ccmp", e), st + 3, st + P["BR"] - 3, st + P["BR"] - 2, [("crd", e)]))
            st = st + P["BR"]
        if self.has_arr(e):
            L = P["ARR"] + 1
        nrd = len(items)
        if e >= 0:
            for dt in range(12):
                if e == last and not self.regular:
                    early = max(self.st[e - 1] + MIDBAR + 1, self.pvd[(e - 1, dt + 4)]) if dt < 8 else self.pvd[(e, dt - 8)]
                else:
                    early = st if dt < 8 else self.pvd[(e, dt - 8)]
                for hf in range(2):
                    items.append(Item(("vrd", e, dt, hf), early, 0, max(early, min(self.pvu[(e, dt)] - 1 - P["LDSLAT"], en - L))))
        G = e + 2
        if self.regular or G <= last:
            for kt in range(2):
                for s in range(6):
                    early = max(self.kfl[(G - 1, kt, s)], st)
                    items.append(Item(("krd", G, kt, s), early, 0, max(early, en - L - P["kst"] * (11 - 6 * kt - s))))
        if self.has_arr(e):
            items.append(Item(("arr", e), st, en - P["ARR"] - 2, en - P["ARR"], [it.key for it in items[nrd:]]))
        dm = []
        if e >= 0 and not self.final and (self.regular or e < last):
            moved = e == 0 and not self.regular and not self.startup and P["early4"]
            if not moved:
                dm += [("dmaV", e + 3, cb) for cb in range(3)]
            if e == 0 and not self.regular and not moved:
                dm += [("dmaK", 4, cb) for cb in range(3)]
            dm += [("dmaK", e + 5, cb) for cb in range(3)]
        prev = None
        for j, k in enumerate(dm):
            sp = P["dsp"] * 6 // max(len(dm), 6)
            it = Item(k, st + 1, st + 1 + sp * j, min(st + 4 + sp * j, en), [prev] if prev else [])
            items.append(it)
            prev = k
        if e == last and not self.regular and not self.final:
            pv = self.pvs[e]
            direct = [2, 3] if P["qst"] else [0, 1, 2, 3]
            if P["qst"]:
                for j in range(2):
                    items.append(Item(("qra", j), pv, 0, pv))
                for t in range(2):
                    for s in range(6):
                        items.append(Item(("qrd", t, s), pv, 0, en - 4, [("qra", s % 2)]))
            self.qleft = []
            n = 0
            for t in direct:
                items.append(Item(("qadd", t), pv, 0, pv + 1))
                for s in range(6):
                    at = pv + 2 + n * P["qlsp"]
                    if at <= en:
                        items.append(Item(("qld", t, s), pv, at, min(at + 2, en), [("qadd", t)]))
                    else:
                        self.qleft.append(("qld", t, s))
                    n += 1
        if e == -1:
            for t in range(4):
                qe = self.qe[(0, t, 1)]
                dead = self.qs.get((1, t, 0), self.qs.get((2, t, 0), en + 1)) - 1
                dead = min(dead, self.en[0])
                for i in range(10):
                    items.append(Item(("mx", t, i), qe, qe + P["LAT"], dead - 8, [("mx", t, i - 1)] if i else []))
                for r in range(4):
                    items.append(Item(("ci", t, r), qe, 0, dead - 1, [("mx", t, 9)]))
                if t in tiles(0, self.wp):
                    for kt in range(2):
                        for r in range(4):
                            items.append(Item(("sub", t, kt, r), qe, 0, dead - 6, [("mx", t, 9)]))
        return items

    def schedule(self, items):
        byk = {it.key: it for it in items}
        for i, it in enumerate(items):
            it.seq = i
            it.deps = [byk[d] for d in it.deps if d in byk]
        gaps = [[] for _ in range(self.n)]
        pending = list(items)
        self.over = 0
        lastdma = -10
        lastb128 = -10
        big_slot = [self.mf[g][1] is None and self.startup for g in range(self.n)]

        def ready(it, g, soft=True):
            if (it.soft if (soft and not big_slot[g]) else it.hard) > g:
                return False
            for d in it.deps:
                if d.placed is None:
                    return False
                if big_slot[g]:
                    continue
                if d.placed == g and not (d.cls == "valu" and it.cls in ("valu", "exp")) and soft:
                    return False
                if (it.key[0] == "xp" or (it.key[0] == "mx" and it.key[2] in (5, 8))) and d.placed > g - 2 and soft:
                    return False
            return True

        for g in range(self.n):
            cap = 10 ** 6 if big_slot[g] else 8
            nl = 0

            def put(it):
                nonlocal cap, nl, lastdma, lastb128
                it.placed = g
                if it.cls in ("lds", "dma") and any(d.placed == g and (d.cls in ("valu", "exp") or d.key in LATE) for d in it.deps):
                    LATE.add(it.key)
                gaps[g].append(it)
                pending.remove(it)
                cap -= it.cost
                if it.cls == "lds":
                    nl += 1
                    if it.key[0] in ("krd", "qrd"):
                        lastb128 = g
                if it.key[0] in ("dmaK", "dmaV"):
                    lastdma = g

            def force(it):
                for d in it.deps:
                    if d.placed is None:
                        force(d)
                assert it.hard <= g, (it.key, it.hard, g)
                put(it)

            def fits(it, pair=False):
                if it.cost > cap:
                    return False
                if it.cls == "lds":
                    big = it.key[0] in ("krd", "qrd")
                    if nl >= 1 and (big or lastb128 == g or not pair):
                        return False
                    if big and lastb128 == g - 1:
                        return False
                if it.key[0] in ("dmaK", "dmaV") and lastdma >= g - 1:
                    return False
                return True

            for it in sorted([x for x in pending if x.dead <= g], key=lambda x: (x.dead, x.seq)):
                if it.placed is None:
                    force(it)
            while cap > 0:
                c = sorted([x for x in pending if ready(x, g) and fits(x)], key=lambda x: (x.dead, x.seq))
                if not c:
                    c = sorted([x for x in pending if ready(x, g) and fits(x, True)], key=lambda x: (x.dead, x.seq))
                    if not c:
                        break
                top = c[0]
                if cap == 8 and top.cost == 4:
                    lds = [x for x in c if x.cls == "lds"]
                    val = [x for x in c if x.cls == "valu"]
                    big = [x for x in c if x.cost == 8]
                    if top.cls == "lds":
                        haspartner = bool(val)
                    else:
                        haspartner = bool(lds) or len(val) > 1 or any(top in x.deps and x.cls == "valu" and all(d is top or d.placed is not None for d in x.deps) for x in pending)
                    if not haspartner and big and top.dead > g + 3:
                        put(big[0])
                        continue
                    put(top)
                    if top.cls == "valu" and lds and fits(lds[0]):
                        put(lds[0])
                    continue
                put(top)
            if cap < 0 and self.mf[g][1] is not None:
                self.over += -cap
        self.idle = sum(max(0, 8 - sum(it.cost for it in gaps[g])) for g in range(self.n) if self.mf[g][1] is not None)
        if P["verbose"] > 2 and not self.regular:
            for g in range(self.n):
                print(g, self.mf[g], [it.key for it in gaps[g]], file=sys.stderr)
        self.left = pending
        self.gaps = gaps
        return gaps


def mf_inst(key, wp, regular=False):
    if key[0] == "qk":
        _, G, t, kt, s = key
        d = vS[t][kt]
        c = d if s else (0 if (G == 0 and not regular) else vCI[t])
        return mfma(d, aKF[kt][s], vQ[t][s], c)
    _, G, t, dt = key
    first = (G == 0) if t < 3 else (G == wp)
    d = aO[t][dt]
    if P["fakepair"] == 1 and not first:
        d = aO[t][(dt & ~1) + (G & 1)]
        nt = len(tiles(G, wp))
        return mfma(d, vf(G, dt), vP[buf(G, wp)][(t + dt) % nt], d)
    return mfma(d, vf(G, dt), vP[buf(G, wp)][t], 0 if first else d)


def relkey(key, e):
    if key[0] in ("qadd", "qld", "mx", "ci", "sub", "qra", "qrd"):
        return key
    return (key[0], key[1] - e) + key[2:]


def abskey(key, e):
    return (key[0], key[1] + e) + key[2:]


def steady_template(wp):
    R = Region(wp, 2, 21, regular=True)
    items = []
    for G in range(3, 23):
        items += R.sm_items(G)
    for e in range(2, 22):
        items += R.mem_items(e)
    gaps = R.schedule(items)
    tm = {}
    for e in range(8, 18):
        cur = [[relkey(it.key, e) for it in gaps[g]] for g in range(R.st[e], R.en[e] + 1)]
        if e % 2 in tm:
            assert tm[e % 2] == cur, f"template not periodic at step {e}"
        tm[e % 2] = cur
    if P["verbose"]:
        for par in (0, 1):
            use = sum(CLS[k[0]][1] for g in tm[par] for k in g)
            ov = sum(max(0, sum(CLS[k[0]][1] for k in g) - 8) for g in tm[par])
            print(f"wp{wp} step parity {par}: fill {use}/{8 * len(tm[par])} overflow {ov}", file=sys.stderr)
            if P["verbose"] > 1:
                for i, g in enumerate(tm[par]):
                    print(i, g, file=sys.stderr)
    return tm


class StepCode:
    def __init__(self, wp):
        self.wp = wp
        self.sites = []
        self.site_ph = {}
        self.ph = 0

    def emit(self, mf, gapkeys, e, tagname, chk, sync, end_need, arr_need=None, extra=(), midbar=None, payload=None):
        wp = self.wp
        G = []
        if not P["check"]:
            chk = None
        for i, mk in enumerate(mf):
            g = dict(mf=mf_inst(mk, wp) if mk else None, wait=waitsite(), salu=[], mem=[], val=[], keys=gapkeys[i], fix=0)
            g["wait"].note = (tagname, i)
            if (tagname, i) in ACTIVE:
                g["fix"] += 1
            if i in (chk, sync):
                g["fix"] += 1
            for k in gapkeys[i]:
                cls = CLS[k[0]][0]
                (g["mem"] if cls in ("lds", "dma") and k not in LATE else g["val"]).append((k, item_insts(k, wp, e)))
                if k[0] == "arr":
                    g["wait"].need = dict(vm=arr_need)
            G.append(g)

        def room(g):
            used = sum(CLS[k[0]][1] for k in g["keys"])
            return 1 + max(0, 8 - used) // 4 - g["fix"] - len(g["salu"])

        def place(lo, hi, ins, latest=False):
            hi = min(hi, len(G) - 1)
            r = list(range(lo, hi + 1))
            if latest:
                r.reverse()
            c = [j for j in r if room(G[j]) >= len(ins)] or [r[0]]
            G[c[0]]["salu"] += ins
            return c[0]

        DM = ("dmaK", "dmaV", "dmaQ")
        late = []
        if sync is not None:
            cg = max(i for i, g in enumerate(G[:sync]) if any(k[0] in ("ccmp", "chkC") for k in g["keys"]))
            assert cg + 1 <= sync - 1
            if chk == sync:
                place(cg + 1, sync - 1, [Inst(f"s_or_b64 vcc, vcc, {sCm}", "salu", rd=sCm.regs() + ["vcc"], wr=["vcc"])], latest=True)
            late.append((sync + 1, len(G) - 1, [salu("s_add_u32", sTgt, sTgt, 4)]))
        prevd = -1
        for i, g in enumerate(G):
            newmem = []
            for k, ins in g["mem"]:
                if k[0] in DM:
                    if prevd + 1 <= i - 1:
                        place(prevd + 1, i - 1, [m0_for(k)], latest=True)
                    else:
                        newmem.append((None, [m0_for(k)]))
                    prevd = i
                    newmem.append((k, ins))
                    if k[2] == 2 and k[0] != "dmaQ":
                        so = sKoff if k[0] == "dmaK" else sVoff
                        upd = salu("s_add_u32", so, so, GRP)
                        nxt = [j for j in range(i + 1, len(G)) if any(kk and kk[0] == k[0] for kk, _ in G[j]["mem"])]
                        lim = nxt[0] if nxt else len(G) - 1
                        late.append((i + 1, lim, [upd]))
                else:
                    newmem.append((k, ins))
            g["mem"] = newmem
        for lo, hi, ins in late:
            place(lo, hi, ins)
        for lo, hi, groups in extra:
            for ins in groups:
                lo = place(lo, hi, ins)
        self.over = getattr(self, "over", 0) + sum(max(0, -room(g)) for g in G if g["mf"] is not None and 2 <= e <= 5)
        out = []
        for i, g in enumerate(G):
            if g["mf"] is not None:
                out.append(g["mf"])
            out.append(g["wait"])
            if g["mf"] is not None and i in (chk, sync):
                out += self.site(e, tagname, G[:i], i == chk, i == sync)
            out += g["salu"]
            for _, ins in g["mem"]:
                out += ins
            for _, ins in g["val"]:
                out += ins
            if g["mf"] is None:
                if i == chk:
                    out.append(raw("s_nop 4"))
                    out += self.site(e, tagname, G[:i + 1], True, False)
                if payload:
                    out += payload.pop(0)
                    out.append(waitsite())
                else:
                    out.append(waitsite(dict(vm=[("Q", -e + 4 * j) for j in range(7)])))
            if midbar is not None and i == MIDBAR:
                out.append(waitsite(dict(vm=midbar)))
                out.append(barrier())
        if end_need is not None:
            out.append(waitsite(dict(lgkm0=True, vm=end_need)))
            out.append(barrier() if not (P["nobar"] and 2 <= e <= 5) else raw("s_nop 0"))
        return out

    def site(self, e, tagname, done_gaps, chk, sync):
        replay = [k for g in done_gaps for k in g["keys"] if k[0] in ("exp", "add", "cvt") and k[1] == e + 1]
        lab = f"L_{tagname}{'c' if chk else ''}{'s' if sync else ''}"
        self.sites.append((lab, e, replay, chk, sync))
        self.site_ph[lab] = self.ph
        if sync and not chk:
            return [raw(f"s_cmp_lg_u64 {sCm}, 0", kind="salu", rd=sCm.regs()), branch("s_cbranch_scc1", f"{lab}_rare"), label(f"{lab}_back")]
        return [branch("s_cbranch_vccnz", f"{lab}_rare"), label(f"{lab}_back")]


def stamp(idx):
    if not P["stamp"]:
        return []
    if P["stamp"] == 3:
        return [raw("s_memrealtime s[68:69]"), raw("s_waitcnt lgkmcnt(0)"), salu("s_sub_u32", S(64), S(68), S(72)),
                valu("v_mov_b32", vSt0, S(64)), valu("v_mov_b32", vSt1, S(66)), bstore(vSt0, vSt1, sWs, 0, 4 * idx), raw("s_nop 1")]
    if P["stamp"] == 2:
        o = [raw("s_memrealtime s[68:69]"), raw("s_waitcnt lgkmcnt(0)"), salu("s_sub_u32", S(64), S(68), S(72)),
             valu("v_mov_b32", vSt0, S(64)), valu("v_mov_b32", vSt1, S(66)),
             raw("s_mov_b64 exec, 1"),
             Inst(f"buffer_atomic_umax {vSt0}, {vSt1}, {sWs}, 0 offen offset:{4 * idx}", "vst", rd=vSt0.regs() + vSt1.regs())]
        if idx == 5:
            o += [raw("s_nop 1"), valu("v_mov_b32", vSt0, S(68)), valu("v_mov_b32", vSt1, 0),
                  Inst(f"buffer_atomic_umax {vSt0}, {vSt1}, {sWs}, 0 offen offset:48", "vst", rd=vSt0.regs() + vSt1.regs()),
                  raw("s_nop 1"), salu("s_not_b32", S(64), S(72)), valu("v_mov_b32", vSt0, S(64)),
                  Inst(f"buffer_atomic_umax {vSt0}, {vSt1}, {sWs}, 0 offen offset:52", "vst", rd=vSt0.regs() + vSt1.regs())]
        o += [raw("s_mov_b64 exec, -1"), raw("s_nop 4")]
        return o
    return [raw(f"s_memtime {sStamp}"), raw("s_memrealtime s[68:69]"), raw("s_waitcnt lgkmcnt(0)"),
            valu("v_mov_b32", vSt0, S(64)), valu("v_mov_b32", vSt1, S(66)),
            bstore(vSt0, vSt1, sWs, 0, 4 * idx), raw("s_nop 1"),
            valu("v_mov_b32", vSt0, S(68)), bstore(vSt0, vSt1, sWs, 0, 4 * idx + 32), raw("s_nop 1")]


def q_chunk(t, s):
    out = [waitsite()]
    q = vQ[t][s]
    tb = 152
    for r in range(4):
        out.append(valu("v_lshlrev_b32", V(tb + 2 * r), 16, q.sub(r)))
        out.append(valu("v_and_b32", V(tb + 2 * r + 1), "0xffff0000", q.sub(r)))
    for r in range(4):
        pr = V(tb + 2 * r, 2)
        out.append(Inst(f"v_pk_mul_f32 {pr}, {pr}, {S(42, 2)}", "valu", rd=pr.regs() + ["s42", "s43"], wr=pr.regs()))
    for r in range(4):
        out.append(valu("v_cvt_pk_bf16_f32", q.sub(r), V(tb + 2 * r), V(tb + 2 * r + 1)))
    return out


def dma_piece(kind, G, cb, e=0):
    k = (kind, G, cb)
    r = [m0_for(k)] + item_insts(k, 0, e)
    if cb == 2:
        so = sKoff if kind == "dmaK" else sVoff
        r.append(salu("s_add_u32", so, so, GRP))
    return r


def lane_reduce(x, tmp, op):
    return [valu("v_mov_b32", tmp, x), perm("v_permlane32_swap_b32", x, tmp), valu(op, x, x, tmp),
            valu("v_mov_b32", tmp, x), perm("v_permlane16_swap_b32", x, tmp), valu(op, x, x, tmp)]


E_INV = [vT[16], vT[18], vT[20]]
E_XA, E_XB, E_MA, E_MB = vT[12], vT[13], vT[17], vT[19]
E_SW, E_SR, E_GO = vT[4], vT[6], vT[7]


def epi_items(T, wp):
    e = NG - 1
    pv, en = T.pvs[e], T.en[e]
    items = []
    tag = f"{wp}{int(T.final)}"

    def add(kind, name, fac, deps=(), early=pv, dead=en):
        k = (kind, tag, name)
        XREG[k] = fac
        items.append(Item(k, early, 0, dead, list(deps)))
        return k

    for t in (3, 0, 1, 2):
        x, tmp = vL[t], vT[8 + t]
        p = [("ladd", e, t)]
        d0 = en - 12 if t == 3 else en
        for i, (kind, fac) in enumerate([
                ("xv", lambda x=x, tmp=tmp: [valu("v_mov_b32", tmp, x)]),
                ("xp", lambda x=x, tmp=tmp: [perm("v_permlane32_swap_b32", x, tmp)]),
                ("xv", lambda x=x, tmp=tmp: [valu("v_add_f32", x, x, tmp)]),
                ("xv", lambda x=x, tmp=tmp: [valu("v_mov_b32", tmp, x)]),
                ("xp", lambda x=x, tmp=tmp: [perm("v_permlane16_swap_b32", x, tmp)]),
                ("xv", lambda x=x, tmp=tmp: [valu("v_add_f32", x, x, tmp)])]):
            p = [add(kind, f"red{t}_{i}", fac, p, dead=d0)]
        if t < 3:
            add("xt", f"rcp{t}", lambda t=t: [trans("v_rcp_f32", E_INV[t], vL[t])], p)
        else:
            m1 = add("xv", "ml1", lambda: [valu("v_mov_b32", vT[15], vL[3])], p, dead=d0)
    m0 = add("xv", "ml0", lambda: [valu("v_mov_b32", vT[14], vCI[3].sub(0))])
    xa = add("xv", "xa", lambda: [valu("v_lshl_add_u32", E_XA, vLane, 4, sT[4])], dead=pv + 4)
    add("xv", "xb", lambda: [valu("v_lshl_add_u32", E_XB, vLane, 4, sT[5])])
    ma = add("xv", "ma", lambda: [valu("v_lshl_add_u32", E_MA, vLane, 3, sT[4])])
    add("xv", "mb", lambda: [valu("v_lshl_add_u32", E_MB, vLane, 3, sT[5])])
    qrd = [("qrd", t, s) for t in range(2) for s in range(6)]
    for j, dt in enumerate(range(6 * (1 - wp), 6 * (1 - wp) + 6)):
        early = min(T.pvd[(e, dt)] + 3, en) if 3 in tiles(e, wp) else pv + 3
        add("xw", f"xw{j}", lambda j=j, dt=dt: [dsw("ds_write_b128", E_XA, aO[3][dt], 1024 * j)], [xa] + qrd, early=early)
    add("xw", "xwm", lambda: [dsw("ds_write_b64", E_MA, V(vT[14].b, 2), 6144)], [m0, m1, ma] + qrd)
    ta, tb = vT[21], vT[5]
    p = []
    if P["fdirect" if T.final else "adirect"]:
        adr = [lambda: [valu("v_add_u32", E_SW, sRowOwn, vOO)], lambda: [valu("v_add_u32", E_SR, 6144, E_SW)],
               lambda: [valu("v_add_u32", E_GO, 6144, E_SR)], lambda: [valu("v_add_u32", vT[5], sRowSh, vOO)]]
    else:
        adr = [
            lambda: [valu("v_and_b32", ta, 15, vLane)], lambda: [valu("v_lshlrev_b32", ta, 4, ta)],
            lambda: [valu("v_add3_u32", E_SW, vOO, ta, sT[6])],
            lambda: [valu("v_lshrrev_b32", ta, 3, vLane)], lambda: [valu("v_and_b32", tb, 7, vLane)],
            lambda: [valu("v_lshlrev_b32", tb, 4, tb)],
            lambda: [valu("v_mul_u32_u24", E_SR, 400, ta)], lambda: [valu("v_add3_u32", E_SR, E_SR, tb, sT[6])],
            lambda: [valu("v_mul_u32_u24", E_GO, ROWB, ta)], lambda: [valu("v_add3_u32", E_GO, E_GO, tb, sRowOwn)],
            lambda: [valu("v_add_u32", vT[5], sRowSh, vOO)]]
    for i, fac in enumerate(adr):
        p = [add("xv", f"adr{i}", fac, p)]
    return items


def epilogue(wp, final):
    sw, sr, go, xb = E_SW, E_SR, E_GO, E_XB
    direct = P["fdirect" if final else "adirect"]
    om = mods("omod" if final else "omoda")
    park = P["park"] and not final
    assert not park or (P["early4"] and not direct)
    out = []
    out.append(waitsite(dict(lgkm0=True, vm=[] if final else [("K", 32), ("K", 33)])))
    out.append(barrier())
    X = [V(128 + 4 * j, 4) for j in range(6)]
    oml = V(vT[14].b, 2)
    out.append(dsr("ds_read_b64", oml, E_MB, 6144))
    for j in range(6):
        out.append(dsr("ds_read_b128", X[j], xb, 1024 * j))
    if not final:
        for kt in range(2):
            for s in range(6):
                out += item_insts(("krd", 0, kt, s), wp, 0)
        for G in (34, 35) if P["early4"] else (34,):
            for cb in range(3):
                out += dma_piece("dmaV", G, cb)
    pre = out

    def pack(src, k):
        d = V(96 + 4 * (k % (8 if direct else 2)), 4)
        o = [valu("v_cvt_pk_bf16_f32", d.sub(i), src[2 * i], src[2 * i + 1]) for i in range(4)]
        sw_ = [perm("v_permlane16_swap_b32", d.sub(0), d.sub(2)), perm("v_permlane16_swap_b32", d.sub(1), d.sub(3))]
        return o, sw_, d

    chunks = []
    k = 0
    tail = []
    RB = [V(104 + 4 * j, 4) for j in range(6)]

    def readback():
        if direct:
            return []
        return [dsr("ds_read_b128", RB[j], sr, 6400 + (j // 3) * 3200 + (j % 3) * 128) for j in range(6)]

    def store(j):
        if direct:
            return []
        o = [waitsite(), bstore(RB[j], go, sO, 0, (j // 3) * 3072 + (j % 3) * 128, mods=mods("omod" if final else "omoda"))]
        if j == 5:
            o.append(valu("v_add_u32", go, 6144, go))
        return o

    for t in range(3):
        inv = V(E_INV[t].b, 2)
        for p in range(6):
            c = []
            base = 64 + 8 * (k % 4)
            src = [V(base + i) for i in range(8)]
            for i in range(8):
                c.append(valu("v_accvgpr_read_b32", src[i], aO[t][2 * p + i // 4].sub(i % 4)))
            c += tail
            if t > 1 and p == 0:
                c += store(5)
            if p == 0 and t > 0 and not (park and t > 1):
                c += readback()
            if t > 0 and p > 0 and not (park and t > 1):
                c += store(p - 1)
            c.append("MEM")
            for i in range(4):
                pr = V(base + 2 * i, 2)
                c.append(Inst(f"v_pk_mul_f32 {pr}, {pr}, {inv} op_sel_hi:[1,0]", "valu", rd=pr.regs() + inv.regs()[:1], wr=pr.regs()))
            o, sw_, d = pack(src, k)
            c += o
            if direct:
                tail = sw_ + [bstore(d, (sw, sr, go)[t], sO, 0, 64 * p, mods=om)]
            else:
                tail = sw_ + [dsw("ds_write_b128", sw, d, 64 * p + (0 if (park and t == 1) else 6400))]
            if k == 1 and not final and P["early4"]:
                c += [waitsite(dict(lgkm0=True)), barrier()] + [i for cb in range(3) for i in dma_piece("dmaK", 36, cb)]
            chunks.append(c)
            k += 1
    if direct and final:
        chunks.insert(3, pre)
        pre = [waitsite()]
    c = [waitsite()]
    nm_own, nm_oth, l_oth = vCI[3].sub(0), vT[14], vT[15]
    M = vT[9]
    fo, fx = vT[8], vT[10]
    c.append(valu("v_min_f32", M, nm_own, nm_oth))
    c.append(valu("v_sub_f32", fo, M, nm_own))
    c.append(valu("v_sub_f32", fx, M, nm_oth))
    c += tail + ([] if park else store(5) + readback())
    tail = []
    c.append(trans("v_exp_f32", fo, fo))
    c.append(trans("v_exp_f32", fx, fx))
    c.append(valu("v_mul_f32", vT[11], vL[3], fo))
    c.append(valu("v_fma_f32", vT[11], l_oth, fx, vT[11]))
    c.append(trans("v_rcp_f32", vT[11], vT[11]))
    c.append(valu("v_mul_f32", fo, fo, vT[11]))
    c.append(valu("v_mul_f32", fx, fx, vT[11]))
    for p3 in range(3):
        p = 3 * wp + p3
        base = 64 + 8 * (k % 4)
        src = [V(base + i) for i in range(8)]
        for i in range(8):
            c.append(valu("v_accvgpr_read_b32", src[i], aO[3][2 * p + i // 4].sub(i % 4)))
        c += tail
        if not park:
            c += store(2 * p3) + store(2 * p3 + 1)
        fo2, fx2 = V(fo.b, 2), V(fx.b, 2)
        for i in range(4):
            pr = V(base + 2 * i, 2)
            c.append(Inst(f"v_pk_mul_f32 {pr}, {pr}, {fo2} op_sel_hi:[1,0]", "valu", rd=pr.regs() + fo.regs(), wr=pr.regs()))
        for i in range(4):
            pr = V(base + 2 * i, 2)
            xr = X[2 * p3 + i // 2].sub(2 * (i % 2), 2)
            c.append(Inst(f"v_pk_fma_f32 {pr}, {xr}, {fx2}, {pr} op_sel_hi:[1,0,1]", "valu", rd=pr.regs() + fx.regs() + xr.regs(), wr=pr.regs()))
        o, sw_, d = pack(src, k)
        c += o
        tail = sw_ + [bstore(d, vT[5], sO, 0, 64 * p, mods=mods("omod" if final else "omoda"))]
        chunks.append(c)
        c = []
        k += 1
    chunks.append(tail)
    return pre, chunks


def o_srd(ph):
    o = [salu("s_add_u32", sT[4], sT[8], ph),
         salu("s_mul_i32", sT[5], sT[4], HEADQ),
         salu("s_add_u32", S(24), S(10), sT[5]),
         salu("s_addc_u32", S(25), S(11), 0),
         salu("s_mov_b32", sRowOwn, sNRowOwn),
         salu("s_mov_b32", sRowSh, sNRowSh)]
    return o


def phase_setup():
    o = o_srd(0) + next_q_setup(1)
    o.append(salu("s_mov_b32", S(80), S(12)))
    o.append(salu("s_mov_b32", S(81), S(13)))
    o.append(salu("s_mov_b32", S(82), 0))
    o.append(salu("s_mov_b32", sQSo, sNRowOwn))
    o.append(salu("s_mov_b32", sQSm, sRg))
    o.append(salu("s_add_u32", S(96), sNRowOwn, 12288 + 9216))
    o.append(salu("s_and_b32", sT[4], sW, 1))
    o.append(salu("s_mul_i32", sT[4], sT[4], 3072))
    o.append(salu("s_add_u32", S(97), sNRowSh, sT[4]))
    o.append(salu("s_min_u32", S(97), S(97), HEADQ - 3072))
    return o


def phase1_setup():
    o = [salu("s_mov_b32", S(80), S(24)), salu("s_mov_b32", S(81), S(25)), salu("s_mov_b32", S(82), 0),
         salu("s_add_u32", sQSo, sRowOwn, 6144),
         salu("s_add_u32", sT[4], sRg, 256),
         valu("v_lshrrev_b32", vAux, 3, vLane), valu("v_lshlrev_b32", vAux, 4, vAux),
         valu("v_add3_u32", vAux, vAux, vPFo, sT[4])]
    return o + o_srd(1)


def next_q_setup(ph):
    o = []
    o.append(salu("s_xor_b32", sT[5], sT[9], ph))
    o.append(salu("s_mul_i32", sT[5], sT[5], 224 * ROWB))
    o.append(salu("s_mul_i32", sT[6], sW, 48 * ROWB))
    o.append(salu("s_add_u32", sNRowOwn, sT[5], sT[6]))
    o.append(salu("s_lshr_b32", sT[6], sW, 1))
    o.append(salu("s_mul_i32", sT[6], sT[6], 16 * ROWB))
    o.append(salu("s_add_u32", sT[6], sT[6], 192 * ROWB))
    o.append(salu("s_add_u32", sNRowSh, sT[5], sT[6]))
    o.append(salu("s_mov_b32", sT[0], sNRowOwn))
    o.append(salu("s_add_u32", sT[1], sNRowOwn, 6144))
    o.append(salu("s_add_u32", sT[2], sNRowOwn, 12288))
    o.append(salu("s_add_u32", sT[4], sT[8], ph))
    o.append(salu("s_mul_i32", sT[5], sT[4], HEADQ))
    o.append(salu("s_add_u32", S(12), S(4), sT[5]))
    o.append(salu("s_addc_u32", S(13), S(5), 0))
    return o


def prologue():
    o = []
    o.append(scmp("s_cmp_ge_u32", S(2), 256))
    o.append(branch("s_cbranch_scc1", "L_end"))
    o.append(raw("s_load_dwordx4 s[4:7], s[0:1], 0"))
    o.append(raw("s_load_dwordx4 s[8:11], s[0:1], 16"))
    if P["stamp"]:
        o.append(raw(f"s_load_dwordx2 s[60:61], s[0:1], {40 if P['stamp'] == 1 else 32}"))
        o.append(raw("s_memtime s[70:71]"))
        o.append(raw("s_memrealtime s[72:73]"))
    if P["cpf"]:
        o.append(raw("s_getpc_b64 s[98:99]", kind="salu", wr=["s98", "s99"]))
        o.append(label("L_pc"))
        o.append(salu("s_lshr_b32", sT[4], S(2), 3))
        o.append(salu("s_lshl_b32", sT[4], sT[4], 12))
        o.append(valu("v_lshrrev_b32", vT[16], 3, V(0)))
        o.append(valu("v_lshl_add_u32", vT[16], vT[16], 7, sT[4]))
        o.append(valu("v_min_u32", vT[16], "L_hot_end-L_pc-4", vT[16]))
        o.append(Inst(f"global_load_dword {vT[17]}, {vT[16]}, s[98:99]", "vmem", rd=vT[16].regs() + ["s98", "s99"], wr=vT[17].regs()))
    o.append(valu("v_lshrrev_b32", vT[0], 6, V(0)))
    o.append(valu("v_and_b32", vLane, 63, V(0)))
    o.append(rfl(sW, vT[0]))
    o.append(salu("s_lshr_b32", sT[4], S(2), 4))
    o.append(salu("s_and_b32", sT[5], S(2), 7))
    if P["pmap"] == 0:
        o.append(salu("s_lshl_b32", sT[4], sT[4], 3))
    else:
        o.append(salu("s_lshl_b32", sT[5], sT[5], 4))
    o.append(salu("s_add_u32", sT[4], sT[4], sT[5]))
    o.append(salu("s_lshl_b32", sT[8], sT[4], 1))
    o.append(salu("s_lshr_b32", sT[9], S(2), 3))
    o.append(salu("s_and_b32", sT[9], sT[9], 1))
    o.append(salu("s_mul_i32", sT[7], sT[4], 2 * HEADK))
    o.append(salu("s_mul_i32", sWb, sW, 3072))
    o.append(salu("s_mov_b32", sKoff, 0))
    l = vLane
    t0, t1, t2, t3 = vT[4], vT[5], vT[6], vT[7]
    o.append(valu("v_lshrrev_b32", t0, 3, V(0)))
    o.append(valu("v_mul_u32_u24", t1, ROWB, t0))
    o.append(valu("v_and_b32", t2, 7, l))
    o.append(valu("v_bfe_u32", t3, t0, 1, 3))
    o.append(valu("v_xor_b32", t3, t3, t2))
    o.append(valu("v_lshl_add_u32", vDK, t3, 4, t1))
    o.append(valu("v_bfe_u32", t3, t0, 1, 2))
    o.append(valu("v_lshlrev_b32", t3, 1, t3))
    o.append(valu("v_xor_b32", t3, t3, t2))
    o.append(valu("v_lshl_add_u32", vDV, t3, 4, t1))
    o.append(valu("v_and_b32", t0, 15, l))
    o.append(valu("v_lshrrev_b32", t1, 4, l))
    o.append(valu("v_mul_u32_u24", t2, ROWB, t0))
    o.append(valu("v_lshl_add_u32", vQO, t1, 4, t2))
    nq = next_q_setup(0)
    o += nq[:-2]
    for t in range(4):
        o += item_insts(("qadd", t), 0, 0)
    o.append(salu("s_mov_b32", S(18), 2 * HEADK))
    o.append(salu("s_mov_b32", S(19), "0x20000"))
    o.append(salu("s_mov_b32", S(14), HEADQ))
    o.append(salu("s_mov_b32", S(15), "0x20000"))
    o.append(raw("s_waitcnt lgkmcnt(0)"))
    if P["stamp"] == 1:
        o.append(raw("s_memrealtime s[74:75]"))
    o.append(salu("s_add_u32", S(16), S(6), sT[7]))
    o.append(salu("s_addc_u32", S(17), S(7), 0))
    o += nq[-2:]

    def dma_group(kind, G):
        return [i for cb in range(3) for i in dma_piece(kind, G, cb)]

    o += dma_group("dmaK", 0)
    for i in range(P["qpre"]):
        o += item_insts(("qld", i // 6, i % 6), 0, 0)
        if i == 5:
            o += dma_group("dmaK", 1)
    o.append(salu("s_mov_b32", sVoff, 0))
    c = f32bits(math.log2(math.e) / math.sqrt(192.0))
    o.append(salu("s_mov_b32", S(42), hex(c)))
    o.append(salu("s_mov_b32", S(43), hex(c)))
    o.append(salu("s_mov_b32", sTh, hex(f32bits(2.0 ** P["THR"]))))
    o.append(salu("s_add_u32", S(20), S(8), sT[7]))
    o.append(salu("s_addc_u32", S(21), S(9), 0))
    o.append(salu("s_mov_b32", S(22), 2 * HEADK))
    o.append(salu("s_mov_b32", S(23), "0x20000"))
    for r in (85, 87, 91, 92):
        o.append(salu("s_mov_b32", S(r), 0))
    o.append(salu("s_mov_b32", S(26), HEADQ))
    o.append(salu("s_mov_b32", S(27), "0x20000"))
    if P["stamp"]:
        o.append(salu("s_mov_b32", S(62), "0x100000" if P["stamp"] == 1 else 256))
        o.append(salu("s_mov_b32", S(63), "0x20000"))
        o.append(salu("s_lshl_b32", S(66), S(2), 2))
        o.append(salu("s_add_u32", S(66), S(66), sW))
        o.append(salu("s_lshl_b32", S(66), S(66), 8))
        if P["stamp"] == 3:
            o.append(scmp("s_cmp_eq_u32", S(66), P["stwave"] * 256))
            o.append(salu("s_cselect_b32", S(62), 256, 0))
        if P["stamp"] >= 2:
            o.append(salu("s_mov_b32", S(66), 0))
    for i in range(4):
        o.append(salu("s_mov_b32", S(76 + i), S(16 + i)))
    o.append(salu("s_mov_b32", S(83), "0x20000"))
    o.append(salu("s_lshl_b32", sRg, sW, 14))
    o.append(salu("s_add_u32", sRg, sRg, RBASE))
    t0, t1, t2, t3 = vT[4], vT[5], vT[6], vT[7]
    o.append(valu("v_and_b32", t0, 15, l))
    o.append(valu("v_lshrrev_b32", t1, 4, l))
    o.append(valu("v_mul_u32_u24", t2, ROWB, t0))
    o.append(valu("v_and_b32", t3, 1, t1))
    o.append(valu("v_lshl_add_u32", t2, t3, 5, t2))
    o.append(valu("v_lshrrev_b32", t3, 1, t1))
    o.append(valu("v_lshl_add_u32", vOO, t3, 4, t2))
    o.append(valu("v_lshrrev_b32", t2, 3, l))
    o.append(valu("v_mul_u32_u24", t2, ROWB, t2))
    o.append(valu("v_and_b32", t3, 7, l))
    o.append(valu("v_xor_b32", t3, t3, t1))
    o.append(valu("v_lshl_add_u32", vPFo, t3, 4, t2))
    o.append(valu("v_lshrrev_b32", t2, 3, t0))
    o.append(valu("v_mul_u32_u24", t2, 3072, t2))
    o.append(valu("v_and_b32", t3, 7, t0))
    o.append(valu("v_lshl_add_u32", t2, t3, 7, t2))
    o.append(valu("v_lshrrev_b32", t3, 1, t0))
    o.append(valu("v_xor_b32", t3, t3, t1))
    o.append(valu("v_lshl_add_u32", vKA[0], t3, 4, t2))
    if KBASE:
        o.append(valu("v_add_u32", vKA[0], KBASE, vKA[0]))
    o.append(valu("v_xor_b32", vKA[1], 64, vKA[0]))
    o.append(valu("v_lshrrev_b32", t2, 2, t0))
    o.append(valu("v_and_b32", t3, 1, t1))
    o.append(valu("v_lshl_add_u32", t2, t3, 2, t2))
    o.append(valu("v_lshrrev_b32", t3, 1, t1))
    o.append(valu("v_mul_u32_u24", t3, 3072, t3))
    o.append(valu("v_lshl_add_u32", t3, t2, 7, t3))
    o.append(valu("v_and_b32", t0, 3, l))
    o.append(valu("v_lshl_add_u32", t3, t0, 3, t3))
    o.append(valu("v_add_u32", t3, VBASE, t3))
    o.append(valu("v_lshrrev_b32", t2, 1, t2))
    o.append(valu("v_lshl_add_u32", vVA[0], t2, 5, t3))
    for j in range(1, 4):
        o.append(valu("v_xor_b32", vVA[j], 32 * j, vVA[0]))
    if P["stamp"] == 1:
        o += [valu("v_mov_b32", vSt0, S(70)), valu("v_mov_b32", vSt1, S(66)), bstore(vSt0, vSt1, sWs, 0, 4 * 6), raw("s_nop 1"),
              valu("v_mov_b32", vSt0, S(72)), bstore(vSt0, vSt1, sWs, 0, 4 * 6 + 32), raw("s_nop 1")]
    o.append(valu("v_lshlrev_b32", vAux, 7, l))
    o.append(Inst(f"v_cmp_gt_u32 vcc, 24, {l}", "valu", rd=l.regs(), wr=["vcc"]))
    o.append(valu("v_mov_b32", t0, "0x40000000"))
    o.append(Inst(f"v_cndmask_b32 {vAux}, {t0}, {vAux}, vcc", "valu", rd=t0.regs() + vAux.regs() + ["vcc"], wr=vAux.regs()))
    o += cnt_addr()
    o.append(valu("v_mov_b32", vCr, 0))
    o.append(dsw("ds_write_b32", vCa, vCr))
    o.append(salu("s_mov_b32", sTgt, 4))
    o.append(salu("s_and_b32", sT[4], sW, 1))
    o.append(scmp("s_cmp_eq_u32", sT[4], 1))
    o.append(branch("s_cbranch_scc1", "L_start_1"))
    return o


def cnt_addr():
    return [salu("s_mov_b32", sT[12], CNT_ADDR), valu("v_lshl_add_u32", vCa, vLane, 2, sT[12])]


def rare_common(wp, typ):
    Gp = wp if typ == 0 else 1 - wp
    o = [label(f"L_rare_{wp}_{typ}"), raw("s_nop 15"), raw("s_nop 15")]
    kt_ = [V(vT[0].b, 4), V(vT[4].b, 4)] + [A(240 + 4 * s, 4) for s in range(4)]
    ka = V(0)

    def recompute(G, soff, cfun):
        r = []
        for kt in range(2):
            r.append(valu("v_add_u32", ka, 6144 * kt, vQO))
            for s in range(6):
                r.append(bload(kt_[s], ka, sKR, soff, 64 * s))
            r.append(raw("s_waitcnt vmcnt(0)"))
            r.append(waitsite(dict(vm0=True)))
            for t in tiles(G, wp):
                for s in range(6):
                    r.append(mfma(vS[t][kt], kt_[s], vQ[t][s], vS[t][kt] if s else cfun(t)))
            r.append(raw("s_nop 15"))
        return r

    o += recompute(Gp, sT[11], lambda t: 0)
    m, m2, f = vT[0], vT[1], vT[2]
    for t in tiles(Gp, wp):
        s0, s1 = vS[t]
        o.append(valu("v_max3_f32", m, s0.sub(0), s0.sub(1), s0.sub(2)))
        o.append(valu("v_max3_f32", m, m, s0.sub(3), s1.sub(0)))
        o.append(valu("v_max3_f32", m, m, s1.sub(1), s1.sub(2)))
        o.append(valu("v_max_f32", m, m, s1.sub(3)))
        o += lane_reduce(m, m2, "v_max_f32")
        o.append(valu("v_sub_f32", m2, 0, vCI[t].sub(0)))
        o.append(valu("v_max_f32", m, m, m2))
        o.append(valu("v_sub_f32", f, m2, m))
        o.append(trans("v_exp_f32", f, f))
        for r in range(4):
            o.append(valu("v_sub_f32", vCI[t].sub(r), 0, m))
        o.append(valu("v_mul_f32", vL[t], vL[t], f))
        for dt in range(12):
            for r in range(4):
                o.append(valu("v_accvgpr_read_b32", vT[4 + r], aO[t][dt].sub(r)))
            for r in range(4):
                o.append(valu("v_mul_f32", vT[4 + r], vT[4 + r], f))
            for r in range(4):
                o.append(valu("v_accvgpr_write_b32", aO[t][dt].sub(r), vT[4 + r]))
        for kt in range(2):
            for r in range(4):
                x = vS[t][kt].sub(r)
                o.append(valu("v_sub_f32", x, x, m))
                o += item_insts(("exp", Gp, t, kt, r), wp, 0)
        for i in range(7):
            o += item_insts(("add", Gp, t, i), wp, 0)
        for kt in range(2):
            for h in range(2):
                o += item_insts(("cvt", Gp, t, kt, h), wp, 0)
    o.append(scmp("s_cmp_eq_u32", sT[10], 0))
    o.append(branch("s_cbranch_scc1", f"L_rare_{wp}_{typ}_ret"))
    o.append(salu("s_add_u32", sT[11], sT[11], GRP))
    o += recompute(Gp + 1, sT[11], lambda t: vCI[t])
    o.append(label(f"L_rare_{wp}_{typ}_ret"))
    return o


def build_phase(wp):
    tm = steady_template(wp)
    sc = StepCode(wp)
    segs = {}
    done2 = {abskey(k, 1) for g in tm[1 % 2] for k in g if k[0] in ("exp", "add", "cvt", "chkA", "chkB", "chkC") and k[1] == 1}

    def sched_head(startup):
        H = Region(wp, -1, 1, startup=startup)
        items = H.sm_items(0) + H.sm_items(1)
        g2 = H.sm_items(2, only=done2)
        for it in g2:
            it.dead = min(it.dead, H.n - 1)
        items += g2
        for e in (-1, 0, 1):
            items += H.mem_items(e)
        gaps = H.schedule(items)
        assert not H.left, [x.key for x in H.left]
        if P["verbose"]:
            print(f"wp{wp} head{int(startup)} overflow {H.over} idle {H.idle} of {8 * H.n}", file=sys.stderr)
        return H, gaps

    H, gaps = sched_head(False)
    NEED = [("V", 1), ("K", 3)]

    def do_emit(R, gk, e, tag, **kw):
        mf = [R.mf[i][1] for i in range(R.st[e], R.en[e] + 1)]
        chk = R.chk_gap(e) - R.st[e] if e > 0 else None
        sync = P["BR"] if R.has_sync(e) else None
        end = None if (R.has_arr(e) or e >= NG - 2) else NEED
        return sc.emit(mf, gk, e, tag, chk, sync, end, arr_need=NEED, **kw)

    def cut(R, gaps, e):
        return [[it.key for it in gaps[i]] for i in range(R.st[e], R.en[e] + 1)]

    sc.ph = 1
    for e in (-1, 0, 1):
        segs[e] = do_emit(H, cut(H, gaps, e), e, f"h{wp}_{e + 1}")
    R = Region(wp, 2, 5, regular=True)
    def build_loop(ph):
        sc.ph = ph
        gks = {e: [[abskey(k, e) for k in g] for g in tm[e % 2]] for e in range(2, 6)}
        extra = {e: [] for e in range(2, 6)}

        def used(g):
            return sum(CLS[k[0]][1] for k in g)

        def vm(g):
            return any(CLS[k[0]][0] == "dma" for k in g)

        def spots(after, cost, lds=False):
            r = []
            for e in range(2, 6):
                for i, g in enumerate(gks[e]):
                    if (e, i) <= after or not 0 < i < 82 or used(g) + cost > 8:
                        continue
                    if cost == 8 and (vm(gks[e][i - 1]) or vm(gks[e][i + 1])):
                        continue
                    if lds and any(CLS[k[0]][0] == "lds" for k in g):
                        continue
                    r.append((e, i))
            return r

        def put(pos, key):
            gks[pos[0]][pos[1]].append(key)
            return pos

        def spread(keys, after):
            pos = after
            for n, k in enumerate(keys):
                c = spots(pos, 8)
                pos = put(c[max(0, len(c) // (len(keys) - n + 1) - 1) if n else 0], k)
            return pos

        if ph == 0:
            setup = []
            if P["qst"]:
                setup += [[salu("s_and_b32", sT[13], sCnt, 4)], [salu("s_lshl_b32", sT[13], sT[13], 4)],
                          [salu("s_xor_b32", S(87), sT[13], 64)],
                          [salu("s_mul_i32", S(91), S(87), 48)], [salu("s_mul_i32", S(82), S(87), HEADQ // 64)]]
                keys = [("dmaQ", 0, cb) for cb in range(3)]
                if P["qpf"]:
                    keys.insert(0, ("pf",))
                    setup += [[salu("s_mul_i32", sT[13], sCnt, 3072)], [salu("s_sub_u32", sT[13], S(96), sT[13])],
                              [scmp("s_cmp_ge_u32", sCnt, 2), salu("s_cselect_b32", S(92), sT[13], S(97))]]
                qend = spread(keys, (2, 40))
                put(spots(qend, 4)[0], ("pfa",))
                extra[qend[0]].append((qend[1] + 1, 82, [[salu("s_add_u32", sQSo, sQSo, S(91))], [salu("s_add_u32", sQSm, sQSm, S(91))]]))
                extra[2].insert(0, (0, 39, setup))
        else:
            setup = [[salu("s_min_u32", sT[13], sCnt, 1)], [salu("s_mul_i32", S(85), sT[13], 2 * HEADK)]]
            if P["park"]:
                setup += [[salu("s_add_u32", sT[13], sCnt, 1)], [salu("s_and_b32", sT[13], sT[13], 4)],
                          [salu("s_mul_i32", S(82), sT[13], HEADQ // 4)], [salu("s_mul_i32", S(91), sT[13], 800)],
                          [salu("s_mul_i32", S(87), sT[13], 768)]]
                pos = (2, 0)
                for j in range(3):
                    pos = put(spots(pos, 4, lds=True)[0], ("drd", j))
                put(spots((max(pos[0], 2), max(pos[1], 40)) if pos[0] == 2 else pos, 4)[0], ("dra",))
                first = (pos[0], pos[1] + 8) if pos[1] < 70 else (pos[0] + 1, 0)
                dend = spread([("dst", j) for j in range(3)], max(first, (2, 40)))
                extra[dend[0]].append((dend[1] + 1, 82, [[salu("s_add_u32", sQSo, sQSo, S(87))]]))
            extra[2].insert(0, (0, 39, setup))
            for e, r in ((2, 18), (4, 22)):
                lastdma = max(i for i, g in enumerate(gks[e]) for k in g if k[0] in ("dmaK", "dmaV"))
                extra[e].append((lastdma + 1, 83, [[salu("s_mov_b32", S(r), S(85))]]))
        out = {e: do_emit(R, gks[e], e, f"b{wp}{ph}_{e}", extra=extra[e]) for e in range(2, 6)}
        out[5] = out[5] + [salu("s_sub_u32", sCnt, sCnt, 1), branch("s_cbranch_scc0", f"L_loop_{wp}{ph}")]
        return out

    loops = [build_loop(0), build_loop(1)]
    if P["verbose"]:
        print(f"wp{wp} loop salu overflow slots {sc.over}", file=sys.stderr)
    done30 = {abskey(k, 29) for g in tm[29 % 2] for k in g if k[1] == 1}
    for final in (False, True):
        sc.ph = int(final)
        T = Region(wp, 30, 31, final=final)
        items = T.sm_items(30, skip=done30) + T.sm_items(31)
        for e in (30, 31):
            items += T.mem_items(e)
        items += epi_items(T, wp)
        gaps = T.schedule(items)
        if not final:
            qleft = T.qleft
        assert not T.left, [x.key for x in T.left]
        if P["verbose"]:
            print(f"wp{wp} tail{int(final)} overflow {T.over} idle {T.idle} of {8 * T.n}", file=sys.stderr)
        for e in (30, 31):
            ex = [(20, 83, [[salu("s_mov_b32", sT[4], sRg)], [salu("s_xor_b32", sT[5], sRg, RW)], [salu("s_add_u32", sT[6], sRg, STGO)]])] if e == 30 else []
            segs[(e, final)] = do_emit(T, cut(T, gaps, e), e, f"t{wp}{int(final)}_{e}", midbar=[("V", 1)] if e == 30 else None, extra=ex)

    start = [label(f"L_start_{wp}")] + stamp(0)
    start += [waitsite(dict(lgkm0=True, vm=[("K", 0), ("K", 1)])), barrier()]
    if P["stamp"] == 1:
        start += [raw("s_memrealtime s[100:101]"), raw("s_waitcnt lgkmcnt(0)"),
                  valu("v_mov_b32", vSt0, S(74)), valu("v_mov_b32", vSt1, S(66)), bstore(vSt0, vSt1, sWs, 0, 4 * 7), raw("s_nop 1"),
                  valu("v_mov_b32", vSt0, S(100)), bstore(vSt0, vSt1, sWs, 0, 4 * 15), raw("s_nop 1")]
    for kt in range(2):
        for s in range(6):
            start += item_insts(("krd", 0, kt, s), wp, 0)
    rest = [(kind, G, cb) for kind, G in (("dmaV", 0), ("dmaK", 2), ("dmaV", 1), ("dmaK", 3), ("dmaV", 2)) for cb in range(3)]
    todo = [item_insts(("qld", i // 6, i % 6), 0, 0) for i in range(P["qpre"], 24)] + [dma_piece(*r, e=-1) for r in rest]
    pay = [[] for _ in range(4)]
    for i in range(24):
        pay[i // 6] += q_chunk(i // 6, i % 6)
        n = -(-len(todo) // (24 - i))
        for _ in range(n):
            pay[i // 6] += todo.pop(0)
    pay[3] += phase_setup() + stamp(1)
    HS, gapsS = sched_head(True)
    sc.ph = 0
    segS = {e: do_emit(HS, cut(HS, gapsS, e), e, f"s{wp}_{e + 1}", payload=pay if e == -1 else None) for e in (-1, 0, 1)}
    head = stamp(1) + [waitsite()]
    loop_in = [[salu("s_mov_b32", sCnt, 6)] + stamp(2) + [raw(".p2align 6", kind="label"), label(f"L_loop_{wp}{ph}")] for ph in range(2)]
    after_loop = [stamp(3), stamp(3)]
    pre, ch = epilogue(wp, False)
    epi_a = stamp(4) + pre
    qc = [q_chunk(i // 6, i % 6) for i in range(24)]
    if P["ilv"]:
        skip = 0 if P["qst"] else 4
        for i, c in enumerate(ch):
            mem = item_insts(qleft.pop(0), wp, 0) if (qleft and "MEM" in c) else []
            epi_a.append(waitsite())
            for x in c:
                epi_a += mem if x == "MEM" else [x]
            if i >= skip and qc:
                epi_a += qc.pop(0)
    assert not qleft
    epi_a += stamp(5)
    for c in qc:
        epi_a += c
    if P["stamp"]:
        epi_a.append(salu("s_add_u32", S(66), S(66), 64 if P["stamp"] == 1 else 24))
    epi_a += phase1_setup() + stamp(0)
    pre, ch = epilogue(wp, True)
    epi_b = stamp(4) + pre + [i for c in ch for i in c if i != "MEM"] + stamp(5) + [raw("s_endpgm")]

    def parts(ph, trips):
        b = 32 * ph
        d = [(i, b) for i in (start if ph == 0 else head)]
        for e in (-1, 0, 1):
            d += [(i, b + e) for i in (segs if ph else segS)[e]]
        d += [(i, b) for i in loop_in[ph]]
        for it in range(trips):
            for e in range(2, 6):
                d += [(i, b + e + 4 * it) for i in loops[ph][e]]
        d += [(i, b) for i in after_loop[ph]]
        for e in (30, 31):
            d += [(i, b + e) for i in segs[(e, ph == 1)]]
        d += [(i, b) for i in (epi_b if ph else epi_a)]
        return d

    static = [i for i, _ in parts(0, 1) + parts(1, 1)]

    def dyn(ph):
        return parts(ph, 7)

    rare = []
    def spin(lab):
        return [salu("s_mov_b32", sT[14], 0), label(f"{lab}_spin"), raw(f"ds_read_b32 {vCr}, {vCa}"), salu("s_add_u32", sT[14], sT[14], 1),
                raw("s_waitcnt lgkmcnt(0)"), raw(f"v_cmp_gt_u32 {sCm}, {sTgt}, {vCr}"), scmp("s_cmp_gt_u32", sT[14], "0x40000"),
                branch("s_cbranch_scc1", f"{lab}_spun"), raw(f"s_cmp_lg_u64 {sCm}, 0"), branch("s_cbranch_scc1", f"{lab}_spin"),
                label(f"{lab}_spun")]

    for lab, e, replay, chk, sync in sc.sites:
        if sync and not chk:
            rare += [label(f"{lab}_rare")] + spin(lab) + [branch("s_branch", f"{lab}_back")]
    if P["check"]:
        for typ in (0, 1):
            mine = [(n, s) for n, s in enumerate(sc.sites) if buf(s[1], wp) == typ and s[3]]
            for n, (lab, e, replay, chk, sync) in mine:
                rare.append(label(f"{lab}_rare"))
                if sync:
                    rare += spin(lab)
                    rare += [raw(f"v_cmp_lt_f32 vcc, {sTh}, {vChk}"), raw("s_nop 4"), branch("s_cbranch_vccz", f"{lab}_back")]
                rare.append(salu("s_mov_b32", sRet, n))
                rare.append(salu("s_mov_b32", sT[10], 0 if e == NG - 1 else 1))
                rare.append(salu("s_mov_b32", sT[11], sc.site_ph[lab] * HEADK))
                if 2 <= e <= 5:
                    rare.append(salu("s_sub_u32", sT[12], 6, sCnt))
                    rare.append(salu("s_mul_i32", sT[12], sT[12], 4 * GRP))
                    rare.append(salu("s_add_u32", sT[11], sT[11], sT[12]))
                rare.append(salu("s_add_u32", sT[11], sT[11], e * GRP))
                rare.append(branch("s_branch", f"L_rare_{wp}_{typ}"))
            com = rare_common(wp, typ)
            Sim().run([(i, 0) for i in com])
            rare += com
            for n, (lab, e, replay, chk, sync) in mine:
                rare.append(scmp("s_cmp_eq_u32", sRet, n))
                rare.append(branch("s_cbranch_scc1", f"{lab}_replay"))
            rare.append(raw("s_endpgm"))
            for n, (lab, e, replay, chk, sync) in mine:
                rp = [label(f"{lab}_replay")]
                for k in replay:
                    rp += item_insts(k, wp, e)
                rp.append(raw("s_nop 4"))
                Sim().run([(i, 0) for i in rp])
                rare += rp
                rare.append(branch("s_branch", f"{lab}_back"))
    return static, dyn, rare


def main():
    pro = prologue()
    text = []
    body = []
    for wp in (0, 1):
        for pas in range(2):
            static, dyn, rare = build_phase(wp)
            for _ in range(2):
                sim = Sim()
                sim.run([(i, 0) for i in pro] + dyn(0) + dyn(1))
            for i in static:
                if i.kind == "wait" and i.note and (i.lgk is not None or i.vm is not None):
                    ACTIVE.add(i.note)
        if P["verbose"]:
            nn = sum(i.nop for i in static)
            print(f"wp{wp}: static insts {len(static)} nops {nn} max vq {sim.maxvq}", file=sys.stderr)
        body.append((static, rare))
    hdr = open("standalone__gqa_softmax__near_ridge.s.ref").read().splitlines()
    for ln in hdr:
        if ln.startswith("; @launch"):
            text.append(f"; @launch grid=(256,1,1) block=(256,1,1) lds={LDS_BYTES}")
        elif ln.startswith(";"):
            text.append(ln)
        else:
            break
    text += ["; Generated by gen/genk.py " + " ".join(sys.argv[2:]),
             '.amdgcn_target "amdgcn-amd-amdhsa--gfx950"', ".text", f".globl {NAME}", ".p2align 8",
             f".type {NAME},@function", f"{NAME}:"]
    text += render(pro)
    for static, rare in body:
        text += render(static)
    text.append("L_hot_end:")
    for static, rare in body:
        text += render(rare)
    text += ["L_end:", "    s_endpgm", '.section .rodata,"a"', ".p2align 6", f".amdhsa_kernel {NAME}",
             "  .amdhsa_next_free_vgpr 512", "  .amdhsa_next_free_sgpr 102", "  .amdhsa_accum_offset 256",
             "  .amdhsa_group_segment_fixed_size 0", "  .amdhsa_kernarg_size 48", "  .amdhsa_user_sgpr_count 2",
             "  .amdhsa_user_sgpr_kernarg_segment_ptr 1", "  .amdhsa_system_sgpr_workgroup_id_x 1", ".end_amdhsa_kernel", ""]
    open(sys.argv[1], "w").write("\n".join(text))


main()
```

```python
import sys, struct, math
sys.path.insert(0, "gen")
from asmlib import *

P = dict(
    LAT=4,
    LDSLAT=8,
    THR=20,
    check=1,
    stamp=0,
    pmap=1,
    stwave=404,
    verbose=0,
    nobar=0,
    ssync=1,
    BR=11,
    ARR=10,
    qst=1,
    kst=3,
    dsp=10,
    qlsp=8,
    qpre=10,
    fakepair=0,
    cpf=1,
    park=1,
    qpf=1,
    omodp="sc0+sc1",
    fdirect=0,
    adirect=0,
    early4=1,
    ilv=1,
    vmod="nt",
    qsmod="nt",
    kvmod="nt",
    qmod="",
    omod="sc0+sc1",
    omoda="",
)
for a in sys.argv[2:]:
    k, v = a.split("=")
    P[k] = type(P[k])(v) if k in P else v

NAME = "standalone__gqa_softmax__near_ridge_kernel"
ROWB = 384
GRP = 12288
HEADQ = 432 * ROWB
HEADK = 1024 * ROWB
KBASE, VBASE, RBASE = 0, 49152, 98304
RW = 16384
STGO = 256
LDS_BYTES = RBASE + 4 * RW
NG = 32
MIDBAR = 40

sQ, sK, sV, sO = S(12, 4), S(16, 4), S(20, 4), S(24, 4)
sW, sKoff, sVoff, sCnt, sPh, sWb, sC, sTh, sRet = (S(i) for i in range(28, 37))
sRowOwn, sRowSh, sNRowOwn, sNRowSh = S(37), S(38), S(39), S(40)
sT = [S(i) for i in range(44, 60)]
sQp, sOp = S(4, 2), S(10, 2)
sWs = S(60, 4)
sStamp = S(64, 2)
sPF = S(80, 4)

vLane = V(1)
vKA = [V(2), V(3)]
vVA = [V(4 + i) for i in range(4)]
vDK, vDV = V(8), V(9)
vQO, vOO = V(10), V(11)
vL = [V(12 + t) for t in range(4)]
vLG = [[V(16 + 4 * b + t) for t in range(4)] for b in range(2)]
vT = [V(24 + i) for i in range(24)]
vCI = [V(48 + 4 * t, 4) for t in range(4)]
vS = [[V(64 + 8 * t + 4 * kt, 4) for kt in range(2)] for t in range(4)]
vP = [[V(96 + 16 * b + 4 * t, 4) for t in range(4)] for b in range(2)]
vVF = [V(128 + 4 * i, 4) for i in range(8)]
vQ = [[V(160 + 24 * t + 4 * s, 4) for s in range(6)] for t in range(4)]
aO = [[A(48 * t + 4 * dt, 4) for dt in range(12)] for t in range(4)]
aKF = [[A(192 + 24 * kt + 4 * s, 4) for s in range(6)] for kt in range(2)]
vChk = V(28)
vQoff = [V(24 + t) for t in range(4)]
vSt0, vSt1 = V(0), V(45)
vAux = V(47)
vCa, vCr = V(46), V(30)
sTgt, sCm = S(93), S(94, 2)
CNT_ADDR = RBASE + 16128
XREG = {}
LATE = set()
ACTIVE = set()
vPFo = V(23)
sQSo, sQSm, sRg = S(84), S(89), S(90)


def vf(G, dt):
    return vVF[(dt + (4 if G == NG - 1 else 0)) % 8]


def f32bits(x):
    return struct.unpack("<I", struct.pack("<f", x))[0]


def mods(k):
    return "".join(" " + x for x in P[k].split("+") if x)


def tiles(G, wp):
    return [0, 1, 2, 3] if (G % 2) == wp else [0, 1, 2]


def buf(G, wp):
    return 0 if (G % 2) == wp else 1


def item_insts(key, wp, e):
    k = key[0]
    if k == "exp":
        _, G, t, kt, r = key
        x = vS[t][kt].sub(r)
        return [trans("v_exp_f32", x, x)]
    if k == "add":
        _, G, t, i = key
        lg = vLG[buf(G, wp)][t]
        if i == 0:
            return [valu("v_add_f32", lg, vS[t][0].sub(0), vS[t][0].sub(1))]
        j = i + 1
        return [valu("v_add_f32", lg, lg, vS[t][j // 4].sub(j % 4))]
    if k == "cvt":
        _, G, t, kt, h = key
        return [valu("v_cvt_pk_bf16_f32", vP[buf(G, wp)][t].sub(2 * kt + h), vS[t][kt].sub(2 * h), vS[t][kt].sub(2 * h + 1))]
    if k == "chkA":
        lg = vLG[buf(key[1], wp)]
        return [valu("v_max3_f32", vChk, lg[0], lg[1], lg[2])]
    if k == "chkB":
        lg = vLG[buf(key[1], wp)]
        return [valu("v_max_f32", vChk, vChk, lg[3])]
    if k == "chkC":
        return [Inst(f"v_cmp_lt_f32 vcc, {sTh}, {vChk}", "valu", rd=vChk.regs() + sTh.regs(), wr=["vcc"])]
    if k == "ladd":
        _, G, t = key
        lg = vLG[buf(G, wp)][t]
        first = (G == 0) if t < 3 else (G == wp)
        if first:
            return [valu("v_mov_b32", vL[t], lg)]
        return [valu("v_add_f32", vL[t], vL[t], lg)]
    if k == "vrd":
        _, G, dt, hf = key
        return [dsr("ds_read_b64_tr_b16", vf(G, dt).sub(2 * hf, 2), vVA[dt % 4], (G % 4) * GRP + hf * 6144 + (dt // 4) * 1024)]
    if k == "krd":
        _, G, kt, s = key
        return [dsr("ds_read_b128", aKF[kt][s], vKA[s % 2], (G % 4) * GRP + kt * 6144 + (s // 2) * 1024)]
    if k == "dmaV":
        _, G, cb = key
        return [bdma(vDV, sV, sVoff, cb * 128, tag=("V", G - e), mods=mods("vmod"))]
    if k == "dmaK":
        _, G, cb = key
        return [bdma(vDK, sK, sKoff, cb * 128, tag=("K", G - e), mods=mods("kvmod"))]
    if k == "qadd":
        _, t = key
        if t < 3:
            return [valu("v_add_u32", vQoff[t], sT[t], vQO)]
        return [valu("v_add_u32", vQoff[t], sNRowSh, vQO)]
    if k == "qld":
        _, t, s = key
        return [bload(vQ[t][s], vQoff[t], sQ, 0, 64 * s, mods=mods("qmod"))]
    if k == "dmaQ":
        return [bdma(vPFo, sPF, sQSo, key[2] * 128, tag=("Q", -e), mods=mods("qsmod"))]
    if k in ("xv", "xp", "xt", "xw"):
        return XREG[key]()
    if k == "arr":
        return [dsw("ds_inc_u32", vCa, vCa)]
    if k == "crd":
        return [dsr("ds_read_b32", vCr, vCa)]
    if k == "ccmp":
        return [Inst(f"v_cmp_gt_u32 {sCm}, {sTgt}, {vCr}", "valu", rd=vCr.regs() + sTgt.regs(), wr=sCm.regs())]
    if k == "pf":
        return [Inst(f"buffer_load_dword {vT[8]}, {vAux}, {sPF}, {S(92)} offen", "vmem", rd=vAux.regs() + sPF.regs() + ["s92"], wr=vT[8].regs())]
    if k == "drd":
        return [dsr("ds_read_b128", V(vT[8].b + 4 * key[1], 4), vAux, 128 * key[1])]
    if k == "dst":
        return [bstore(V(vT[8].b + 4 * key[1], 4), vPFo, sPF, sQSo, 128 * key[1], mods=mods("omodp"))]
    if k == "dra":
        return [valu("v_add_u32", vAux, S(91), vAux)]
    if k == "pfa":
        return [valu("v_xor_b32", vPFo, S(87), vPFo)]
    if k == "qra":
        return [valu("v_add_u32", vQoff[key[1]], sRg, vKA[key[1]])]
    if k == "qrd":
        _, t, s = key
        return [dsr("ds_read_b128", vQ[t][s], vQoff[s % 2], t * 6144 + (s // 2) * 1024)]
    if k == "mx":
        _, t, i = key
        m, s0, s1 = vT[8 + 2 * t], vS[t][0], vS[t][1]
        m2 = vT[9 + 2 * t]
        if i == 0:
            return [valu("v_max3_f32", m, s0.sub(0), s0.sub(1), s0.sub(2))]
        if i == 1:
            return [valu("v_max3_f32", m, m, s0.sub(3), s1.sub(0))]
        if i == 2:
            return [valu("v_max3_f32", m, m, s1.sub(1), s1.sub(2))]
        if i == 3:
            return [valu("v_max_f32", m, m, s1.sub(3))]
        if i in (4, 7):
            return [valu("v_mov_b32", m2, m)]
        if i == 5:
            return [perm("v_permlane32_swap_b32", m, m2)]
        if i == 8:
            return [perm("v_permlane16_swap_b32", m, m2)]
        if i in (6, 9):
            return [valu("v_max_f32", m, m, m2)]
    if k == "ci":
        _, t, r = key
        return [valu("v_sub_f32", vCI[t].sub(r), 0, vT[8 + 2 * t])]
    if k == "sub":
        _, t, kt, r = key
        x = vS[t][kt].sub(r)
        return [valu("v_sub_f32", x, x, vT[8 + 2 * t])]
    raise KeyError(key)


def m0_for(key):
    k, G, cb = key
    if k == "dmaQ":
        return salu("s_add_u32", "m0", sQSm, cb * (1024 - 128))
    base = (KBASE if k == "dmaK" else VBASE) + (G % 4) * GRP + cb * (1024 - 128)
    return salu("s_add_u32", "m0", sWb, base)


CLS = dict(exp=("exp", 8), add=("valu", 4), cvt=("valu", 4), chkA=("valu", 4), chkB=("valu", 4), chkC=("valu", 4),
           ladd=("valu", 4), vrd=("lds", 4), krd=("lds", 4), dmaV=("dma", 8), dmaK=("dma", 8), qadd=("valu", 4),
           qld=("dma", 8), pf=("dma", 8), drd=("lds", 4), dst=("dma", 8), dra=("valu", 4), xv=("valu", 4), xp=("valu", 4), xt=("exp", 8), xw=("dma", 8), dmaQ=("dma", 8), arr=("lds", 4), crd=("lds", 4), ccmp=("valu", 4), pfa=("valu", 4), qra=("valu", 4), qrd=("lds", 4), mx=("valu", 4), ci=("valu", 4), sub=("valu", 4))


class Item:
    def __init__(self, key, hard, soft, dead, deps=()):
        self.key, self.hard, self.soft, self.dead = key, hard, max(hard, soft), dead
        self.deps = list(deps)
        self.cls, self.cost = CLS[key[0]]
        self.placed = None


class Region:
    def __init__(self, wp, e0, e1, regular=False, final=False, startup=False):
        self.wp, self.e0, self.e1, self.regular, self.final, self.startup = wp, e0, e1, regular, final, startup
        self.mf = []
        self.qs, self.qe, self.pvs, self.pvu, self.pvd = {}, {}, {}, {}, {}
        self.kfl = {}
        self.ql = {}
        self.st, self.en = {}, {}
        last = NG - 1
        for e in range(e0, e1 + 1):
            self.st[e] = len(self.mf)
            G = e + 1
            if regular or G <= last:
                if e == -1:
                    order = [(t, kt) for t in range(4) for kt in range(2)]
                else:
                    order = [(t, kt) for kt in range(2) for t in tiles(G, wp)]
                for t, kt in order:
                    if startup and e == -1 and kt == 0:
                        self.mf.append((e, None))
                    self.qs[(G, t, kt)] = len(self.mf)
                    for s in range(6):
                        self.kfl[(G, kt, s)] = len(self.mf)
                        self.ql[(t, s)] = len(self.mf)
                        self.mf.append((e, ("qk", G, t, kt, s)))
                    self.qe[(G, t, kt)] = len(self.mf) - 1
            else:
                self.mf.append((e, None))
            if e >= 0:
                self.pvs[e] = len(self.mf)
                if P["fakepair"]:
                    for d2 in range(6):
                        self.pvu[(e, 2 * d2)] = len(self.mf)
                        self.pvu[(e, 2 * d2 + 1)] = len(self.mf) + 1
                        for t in tiles(e, wp):
                            self.mf.append((e, ("pv", e, t, 2 * d2)))
                            self.mf.append((e, ("pv", e, t, 2 * d2 + 1)))
                        self.pvd[(e, 2 * d2)] = len(self.mf) - 2
                        self.pvd[(e, 2 * d2 + 1)] = len(self.mf) - 1
                for dt in range(12 if not P["fakepair"] else 0):
                    self.pvu[(e, dt)] = len(self.mf)
                    for t in tiles(e, wp):
                        self.mf.append((e, ("pv", e, t, dt)))
                    self.pvd[(e, dt)] = len(self.mf) - 1
            self.en[e] = len(self.mf) - 1
        self.n = len(self.mf)

    def has_sync(self, e):
        return bool(P["ssync"]) and (self.regular or 1 <= e <= NG - 2)

    def has_arr(self, e):
        return bool(P["ssync"]) and (self.regular or 0 <= e <= NG - 3)

    def chk_gap(self, e):
        if self.has_sync(e) and (self.regular or e >= 2):
            return self.st[e] + P["BR"]
        return self.pvs[e] - 1

    def sm_items(self, G, only=None, skip=None):
        wp = self.wp
        BIG = 10 ** 6
        items = {}
        pvs = self.chk_gap(G) + 1 if G in self.pvs else BIG

        def add(it):
            items[it.key] = it

        for t in tiles(G, wp):
            G2 = G + 1 if t < 3 else G + 2
            qd = {}
            for kt in range(2):
                ov = self.qs.get((G2, t, kt), BIG)
                qd[kt] = min(ov - 1, pvs - 6)
                qe = self.qe.get((G, t, kt), -1)
                for r in range(4):
                    deps = [("sub", t, kt, r)] if G == 0 and not self.regular else []
                    add(Item(("exp", G, t, kt, r), qe, qe + P["LAT"], qd[kt] - 3, deps))
                for h in range(2):
                    add(Item(("cvt", G, t, kt, h), qe, 0, qd[kt], [("exp", G, t, kt, 2 * h), ("exp", G, t, kt, 2 * h + 1)]))
            for i in range(7):
                j = i + 1
                deps = [("exp", G, t, j // 4, j % 4)]
                deps.append(("exp", G, t, 0, 0) if i == 0 else ("add", G, t, i - 1))
                add(Item(("add", G, t, i), -1, 0, qd[j // 4], deps))
            add(Item(("ladd", G, t), pvs, 0, self.en.get(G, BIG), [("add", G, t, 6)]))
        if P["check"] and (G > 0 or self.regular):
            add(Item(("chkA", G), -1, 0, pvs - 5, [("add", G, t, 6) for t in range(3)]))
            lastk = ("chkA", G)
            if len(tiles(G, wp)) == 4:
                add(Item(("chkB", G), -1, 0, pvs - 4, [lastk, ("add", G, 3, 6)]))
                lastk = ("chkB", G)
            add(Item(("chkC", G), -1, 0, pvs - 3, [lastk]))
        out = []
        for k, it in items.items():
            if only is not None and k not in only:
                continue
            if skip is not None and k in skip:
                continue
            out.append(it)
        return out

    def mem_items(self, e):
        items = []
        st, en = self.st[e], self.en[e]
        L = P["LDSLAT"]
        last = NG - 1
        st0 = st
        if self.has_sync(e):
            items.append(Item(("crd", e), st, st + 1, st + 2))
            items.append(Item(("ccmp", e), st + 3, st + P["BR"] - 3, st + P["BR"] - 2, [("crd", e)]))
            st = st + P["BR"]
        if self.has_arr(e):
            L = P["ARR"] + 1
        nrd = len(items)
        if e >= 0:
            for dt in range(12):
                if e == last and not self.regular:
                    early = max(self.st[e - 1] + MIDBAR + 1, self.pvd[(e - 1, dt + 4)]) if dt < 8 else self.pvd[(e, dt - 8)]
                else:
                    early = st if dt < 8 else self.pvd[(e, dt - 8)]
                for hf in range(2):
                    items.append(Item(("vrd", e, dt, hf), early, 0, max(early, min(self.pvu[(e, dt)] - 1 - P["LDSLAT"], en - L))))
        G = e + 2
        if self.regular or G <= last:
            for kt in range(2):
                for s in range(6):
                    early = max(self.kfl[(G - 1, kt, s)], st)
                    items.append(Item(("krd", G, kt, s), early, 0, max(early, en - L - P["kst"] * (11 - 6 * kt - s))))
        if self.has_arr(e):
            items.append(Item(("arr", e), st, en - P["ARR"] - 2, en - P["ARR"], [it.key for it in items[nrd:]]))
        dm = []
        if e >= 0 and not self.final and (self.regular or e < last):
            moved = e == 0 and not self.regular and not self.startup and P["early4"]
            if not moved:
                dm += [("dmaV", e + 3, cb) for cb in range(3)]
            if e == 0 and not self.regular and not moved:
                dm += [("dmaK", 4, cb) for cb in range(3)]
            dm += [("dmaK", e + 5, cb) for cb in range(3)]
        prev = None
        for j, k in enumerate(dm):
            sp = P["dsp"] * 6 // max(len(dm), 6)
            it = Item(k, st + 1, st + 1 + sp * j, min(st + 4 + sp * j, en), [prev] if prev else [])
            items.append(it)
            prev = k
        if e == last and not self.regular and not self.final:
            pv = self.pvs[e]
            direct = [2, 3] if P["qst"] else [0, 1, 2, 3]
            if P["qst"]:
                for j in range(2):
                    items.append(Item(("qra", j), pv, 0, pv))
                for t in range(2):
                    for s in range(6):
                        items.append(Item(("qrd", t, s), pv, 0, en - 4, [("qra", s % 2)]))
            self.qleft = []
            n = 0
            for t in direct:
                items.append(Item(("qadd", t), pv, 0, pv + 1))
                for s in range(6):
                    at = pv + 2 + n * P["qlsp"]
                    if at <= en:
                        items.append(Item(("qld", t, s), pv, at, min(at + 2, en), [("qadd", t)]))
                    else:
                        self.qleft.append(("qld", t, s))
                    n += 1
        if e == -1:
            for t in range(4):
                qe = self.qe[(0, t, 1)]
                dead = self.qs.get((1, t, 0), self.qs.get((2, t, 0), en + 1)) - 1
                dead = min(dead, self.en[0])
                for i in range(10):
                    items.append(Item(("mx", t, i), qe, qe + P["LAT"], dead - 8, [("mx", t, i - 1)] if i else []))
                for r in range(4):
                    items.append(Item(("ci", t, r), qe, 0, dead - 1, [("mx", t, 9)]))
                if t in tiles(0, self.wp):
                    for kt in range(2):
                        for r in range(4):
                            items.append(Item(("sub", t, kt, r), qe, 0, dead - 6, [("mx", t, 9)]))
        return items

    def schedule(self, items):
        byk = {it.key: it for it in items}
        for i, it in enumerate(items):
            it.seq = i
            it.deps = [byk[d] for d in it.deps if d in byk]
        gaps = [[] for _ in range(self.n)]
        pending = list(items)
        self.over = 0
        lastdma = -10
        lastb128 = -10
        big_slot = [self.mf[g][1] is None and self.startup for g in range(self.n)]

        def ready(it, g, soft=True):
            if (it.soft if (soft and not big_slot[g]) else it.hard) > g:
                return False
            for d in it.deps:
                if d.placed is None:
                    return False
                if big_slot[g]:
                    continue
                if d.placed == g and not (d.cls == "valu" and it.cls in ("valu", "exp")) and soft:
                    return False
                if (it.key[0] == "xp" or (it.key[0] == "mx" and it.key[2] in (5, 8))) and d.placed > g - 2 and soft:
                    return False
            return True

        for g in range(self.n):
            cap = 10 ** 6 if big_slot[g] else 8
            nl = 0

            def put(it):
                nonlocal cap, nl, lastdma, lastb128
                it.placed = g
                if it.cls in ("lds", "dma") and any(d.placed == g and (d.cls in ("valu", "exp") or d.key in LATE) for d in it.deps):
                    LATE.add(it.key)
                gaps[g].append(it)
                pending.remove(it)
                cap -= it.cost
                if it.cls == "lds":
                    nl += 1
                    if it.key[0] in ("krd", "qrd"):
                        lastb128 = g
                if it.key[0] in ("dmaK", "dmaV"):
                    lastdma = g

            def force(it):
                for d in it.deps:
                    if d.placed is None:
                        force(d)
                assert it.hard <= g, (it.key, it.hard, g)
                put(it)

            def fits(it, pair=False):
                if it.cost > cap:
                    return False
                if it.cls == "lds":
                    big = it.key[0] in ("krd", "qrd")
                    if nl >= 1 and (big or lastb128 == g or not pair):
                        return False
                    if big and lastb128 == g - 1:
                        return False
                if it.key[0] in ("dmaK", "dmaV") and lastdma >= g - 1:
                    return False
                return True

            for it in sorted([x for x in pending if x.dead <= g], key=lambda x: (x.dead, x.seq)):
                if it.placed is None:
                    force(it)
            while cap > 0:
                c = sorted([x for x in pending if ready(x, g) and fits(x)], key=lambda x: (x.dead, x.seq))
                if not c:
                    c = sorted([x for x in pending if ready(x, g) and fits(x, True)], key=lambda x: (x.dead, x.seq))
                    if not c:
                        break
                top = c[0]
                if cap == 8 and top.cost == 4:
                    lds = [x for x in c if x.cls == "lds"]
                    val = [x for x in c if x.cls == "valu"]
                    big = [x for x in c if x.cost == 8]
                    if top.cls == "lds":
                        haspartner = bool(val)
                    else:
                        haspartner = bool(lds) or len(val) > 1 or any(top in x.deps and x.cls == "valu" and all(d is top or d.placed is not None for d in x.deps) for x in pending)
                    if not haspartner and big and top.dead > g + 3:
                        put(big[0])
                        continue
                    put(top)
                    if top.cls == "valu" and lds and fits(lds[0]):
                        put(lds[0])
                    continue
                put(top)
            if cap < 0 and self.mf[g][1] is not None:
                self.over += -cap
        self.idle = sum(max(0, 8 - sum(it.cost for it in gaps[g])) for g in range(self.n) if self.mf[g][1] is not None)
        if P["verbose"] > 2 and not self.regular:
            for g in range(self.n):
                print(g, self.mf[g], [it.key for it in gaps[g]], file=sys.stderr)
        self.left = pending
        self.gaps = gaps
        return gaps


def mf_inst(key, wp, regular=False):
    if key[0] == "qk":
        _, G, t, kt, s = key
        d = vS[t][kt]
        c = d if s else (0 if (G == 0 and not regular) else vCI[t])
        return mfma(d, aKF[kt][s], vQ[t][s], c)
    _, G, t, dt = key
    first = (G == 0) if t < 3 else (G == wp)
    d = aO[t][dt]
    if P["fakepair"] == 1 and not first:
        d = aO[t][(dt & ~1) + (G & 1)]
        nt = len(tiles(G, wp))
        return mfma(d, vf(G, dt), vP[buf(G, wp)][(t + dt) % nt], d)
    return mfma(d, vf(G, dt), vP[buf(G, wp)][t], 0 if first else d)


def relkey(key, e):
    if key[0] in ("qadd", "qld", "mx", "ci", "sub", "qra", "qrd"):
        return key
    return (key[0], key[1] - e) + key[2:]


def abskey(key, e):
    return (key[0], key[1] + e) + key[2:]


def steady_template(wp):
    R = Region(wp, 2, 21, regular=True)
    items = []
    for G in range(3, 23):
        items += R.sm_items(G)
    for e in range(2, 22):
        items += R.mem_items(e)
    gaps = R.schedule(items)
    tm = {}
    for e in range(8, 18):
        cur = [[relkey(it.key, e) for it in gaps[g]] for g in range(R.st[e], R.en[e] + 1)]
        if e % 2 in tm:
            assert tm[e % 2] == cur, f"template not periodic at step {e}"
        tm[e % 2] = cur
    if P["verbose"]:
        for par in (0, 1):
            use = sum(CLS[k[0]][1] for g in tm[par] for k in g)
            ov = sum(max(0, sum(CLS[k[0]][1] for k in g) - 8) for g in tm[par])
            print(f"wp{wp} step parity {par}: fill {use}/{8 * len(tm[par])} overflow {ov}", file=sys.stderr)
            if P["verbose"] > 1:
                for i, g in enumerate(tm[par]):
                    print(i, g, file=sys.stderr)
    return tm


class StepCode:
    def __init__(self, wp):
        self.wp = wp
        self.sites = []
        self.site_ph = {}
        self.ph = 0

    def emit(self, mf, gapkeys, e, tagname, chk, sync, end_need, arr_need=None, extra=(), midbar=None, payload=None):
        wp = self.wp
        G = []
        if not P["check"]:
            chk = None
        for i, mk in enumerate(mf):
            g = dict(mf=mf_inst(mk, wp) if mk else None, wait=waitsite(), salu=[], mem=[], val=[], keys=gapkeys[i], fix=0)
            g["wait"].note = (tagname, i)
            if (tagname, i) in ACTIVE:
                g["fix"] += 1
            if i in (chk, sync):
                g["fix"] += 1
            for k in gapkeys[i]:
                cls = CLS[k[0]][0]
                (g["mem"] if cls in ("lds", "dma") and k not in LATE else g["val"]).append((k, item_insts(k, wp, e)))
                if k[0] == "arr":
                    g["wait"].need = dict(vm=arr_need)
            G.append(g)

        def room(g):
            used = sum(CLS[k[0]][1] for k in g["keys"])
            return 1 + max(0, 8 - used) // 4 - g["fix"] - len(g["salu"])

        def place(lo, hi, ins, latest=False):
            hi = min(hi, len(G) - 1)
            r = list(range(lo, hi + 1))
            if latest:
                r.reverse()
            c = [j for j in r if room(G[j]) >= len(ins)] or [r[0]]
            G[c[0]]["salu"] += ins
            return c[0]

        DM = ("dmaK", "dmaV", "dmaQ")
        late = []
        if sync is not None:
            cg = max(i for i, g in enumerate(G[:sync]) if any(k[0] in ("ccmp", "chkC") for k in g["keys"]))
            assert cg + 1 <= sync - 1
            if chk == sync:
                place(cg + 1, sync - 1, [Inst(f"s_or_b64 vcc, vcc, {sCm}", "salu", rd=sCm.regs() + ["vcc"], wr=["vcc"])], latest=True)
            late.append((sync + 1, len(G) - 1, [salu("s_add_u32", sTgt, sTgt, 4)]))
        prevd = -1
        for i, g in enumerate(G):
            newmem = []
            for k, ins in g["mem"]:
                if k[0] in DM:
                    if prevd + 1 <= i - 1:
                        place(prevd + 1, i - 1, [m0_for(k)], latest=True)
                    else:
                        newmem.append((None, [m0_for(k)]))
                    prevd = i
                    newmem.append((k, ins))
                    if k[2] == 2 and k[0] != "dmaQ":
                        so = sKoff if k[0] == "dmaK" else sVoff
                        upd = salu("s_add_u32", so, so, GRP)
                        nxt = [j for j in range(i + 1, len(G)) if any(kk and kk[0] == k[0] for kk, _ in G[j]["mem"])]
                        lim = nxt[0] if nxt else len(G) - 1
                        late.append((i + 1, lim, [upd]))
                else:
                    newmem.append((k, ins))
            g["mem"] = newmem
        for lo, hi, ins in late:
            place(lo, hi, ins)
        for lo, hi, groups in extra:
            for ins in groups:
                lo = place(lo, hi, ins)
        self.over = getattr(self, "over", 0) + sum(max(0, -room(g)) for g in G if g["mf"] is not None and 2 <= e <= 5)
        out = []
        for i, g in enumerate(G):
            if g["mf"] is not None:
                out.append(g["mf"])
            out.append(g["wait"])
            if g["mf"] is not None and i in (chk, sync):
                out += self.site(e, tagname, G[:i], i == chk, i == sync)
            out += g["salu"]
            for _, ins in g["mem"]:
                out += ins
            for _, ins in g["val"]:
                out += ins
            if g["mf"] is None:
                if i == chk:
                    out.append(raw("s_nop 4"))
                    out += self.site(e, tagname, G[:i + 1], True, False)
                if payload:
                    out += payload.pop(0)
                    out.append(waitsite())
                else:
                    out.append(waitsite(dict(vm=[("Q", -e + 4 * j) for j in range(7)])))
            if midbar is not None and i == MIDBAR:
                out.append(waitsite(dict(vm=midbar)))
                out.append(barrier())
        if end_need is not None:
            out.append(waitsite(dict(lgkm0=True, vm=end_need)))
            out.append(barrier() if not (P["nobar"] and 2 <= e <= 5) else raw("s_nop 0"))
        return out

    def site(self, e, tagname, done_gaps, chk, sync):
        replay = [k for g in done_gaps for k in g["keys"] if k[0] in ("exp", "add", "cvt") and k[1] == e + 1]
        lab = f"L_{tagname}{'c' if chk else ''}{'s' if sync else ''}"
        self.sites.append((lab, e, replay, chk, sync))
        self.site_ph[lab] = self.ph
        if sync and not chk:
            return [raw(f"s_cmp_lg_u64 {sCm}, 0", kind="salu", rd=sCm.regs()), branch("s_cbranch_scc1", f"{lab}_rare"), label(f"{lab}_back")]
        return [branch("s_cbranch_vccnz", f"{lab}_rare"), label(f"{lab}_back")]


def stamp(idx):
    if not P["stamp"]:
        return []
    if P["stamp"] == 3:
        return [raw("s_memrealtime s[68:69]"), raw("s_waitcnt lgkmcnt(0)"), salu("s_sub_u32", S(64), S(68), S(72)),
                valu("v_mov_b32", vSt0, S(64)), valu("v_mov_b32", vSt1, S(66)), bstore(vSt0, vSt1, sWs, 0, 4 * idx), raw("s_nop 1")]
    if P["stamp"] == 2:
        o = [raw("s_memrealtime s[68:69]"), raw("s_waitcnt lgkmcnt(0)"), salu("s_sub_u32", S(64), S(68), S(72)),
             valu("v_mov_b32", vSt0, S(64)), valu("v_mov_b32", vSt1, S(66)),
             raw("s_mov_b64 exec, 1"),
             Inst(f"buffer_atomic_umax {vSt0}, {vSt1}, {sWs}, 0 offen offset:{4 * idx}", "vst", rd=vSt0.regs() + vSt1.regs())]
        if idx == 5:
            o += [raw("s_nop 1"), valu("v_mov_b32", vSt0, S(68)), valu("v_mov_b32", vSt1, 0),
                  Inst(f"buffer_atomic_umax {vSt0}, {vSt1}, {sWs}, 0 offen offset:48", "vst", rd=vSt0.regs() + vSt1.regs()),
                  raw("s_nop 1"), salu("s_not_b32", S(64), S(72)), valu("v_mov_b32", vSt0, S(64)),
                  Inst(f"buffer_atomic_umax {vSt0}, {vSt1}, {sWs}, 0 offen offset:52", "vst", rd=vSt0.regs() + vSt1.regs())]
        o += [raw("s_mov_b64 exec, -1"), raw("s_nop 4")]
        return o
    return [raw(f"s_memtime {sStamp}"), raw("s_memrealtime s[68:69]"), raw("s_waitcnt lgkmcnt(0)"),
            valu("v_mov_b32", vSt0, S(64)), valu("v_mov_b32", vSt1, S(66)),
            bstore(vSt0, vSt1, sWs, 0, 4 * idx), raw("s_nop 1"),
            valu("v_mov_b32", vSt0, S(68)), bstore(vSt0, vSt1, sWs, 0, 4 * idx + 32), raw("s_nop 1")]


def q_chunk(t, s):
    out = [waitsite()]
    q = vQ[t][s]
    tb = 152
    for r in range(4):
        out.append(valu("v_lshlrev_b32", V(tb + 2 * r), 16, q.sub(r)))
        out.append(valu("v_and_b32", V(tb + 2 * r + 1), "0xffff0000", q.sub(r)))
    for r in range(4):
        pr = V(tb + 2 * r, 2)
        out.append(Inst(f"v_pk_mul_f32 {pr}, {pr}, {S(42, 2)}", "valu", rd=pr.regs() + ["s42", "s43"], wr=pr.regs()))
    for r in range(4):
        out.append(valu("v_cvt_pk_bf16_f32", q.sub(r), V(tb + 2 * r), V(tb + 2 * r + 1)))
    return out


def dma_piece(kind, G, cb, e=0):
    k = (kind, G, cb)
    r = [m0_for(k)] + item_insts(k, 0, e)
    if cb == 2:
        so = sKoff if kind == "dmaK" else sVoff
        r.append(salu("s_add_u32", so, so, GRP))
    return r


def lane_reduce(x, tmp, op):
    return [valu("v_mov_b32", tmp, x), perm("v_permlane32_swap_b32", x, tmp), valu(op, x, x, tmp),
            valu("v_mov_b32", tmp, x), perm("v_permlane16_swap_b32", x, tmp), valu(op, x, x, tmp)]


E_INV = [vT[16], vT[18], vT[20]]
E_XA, E_XB, E_MA, E_MB = vT[12], vT[13], vT[17], vT[19]
E_SW, E_SR, E_GO = vT[4], vT[6], vT[7]


def epi_items(T, wp):
    e = NG - 1
    pv, en = T.pvs[e], T.en[e]
    items = []
    tag = f"{wp}{int(T.final)}"

    def add(kind, name, fac, deps=(), early=pv, dead=en):
        k = (kind, tag, name)
        XREG[k] = fac
        items.append(Item(k, early, 0, dead, list(deps)))
        return k

    for t in (3, 0, 1, 2):
        x, tmp = vL[t], vT[8 + t]
        p = [("ladd", e, t)]
        d0 = en - 12 if t == 3 else en
        for i, (kind, fac) in enumerate([
                ("xv", lambda x=x, tmp=tmp: [valu("v_mov_b32", tmp, x)]),
                ("xp", lambda x=x, tmp=tmp: [perm("v_permlane32_swap_b32", x, tmp)]),
                ("xv", lambda x=x, tmp=tmp: [valu("v_add_f32", x, x, tmp)]),
                ("xv", lambda x=x, tmp=tmp: [valu("v_mov_b32", tmp, x)]),
                ("xp", lambda x=x, tmp=tmp: [perm("v_permlane16_swap_b32", x, tmp)]),
                ("xv", lambda x=x, tmp=tmp: [valu("v_add_f32", x, x, tmp)])]):
            p = [add(kind, f"red{t}_{i}", fac, p, dead=d0)]
        if t < 3:
            add("xt", f"rcp{t}", lambda t=t: [trans("v_rcp_f32", E_INV[t], vL[t])], p)
        else:
            m1 = add("xv", "ml1", lambda: [valu("v_mov_b32", vT[15], vL[3])], p, dead=d0)
    m0 = add("xv", "ml0", lambda: [valu("v_mov_b32", vT[14], vCI[3].sub(0))])
    xa = add("xv", "xa", lambda: [valu("v_lshl_add_u32", E_XA, vLane, 4, sT[4])], dead=pv + 4)
    add("xv", "xb", lambda: [valu("v_lshl_add_u32", E_XB, vLane, 4, sT[5])])
    ma = add("xv", "ma", lambda: [valu("v_lshl_add_u32", E_MA, vLane, 3, sT[4])])
    add("xv", "mb", lambda: [valu("v_lshl_add_u32", E_MB, vLane, 3, sT[5])])
    qrd = [("qrd", t, s) for t in range(2) for s in range(6)]
    for j, dt in enumerate(range(6 * (1 - wp), 6 * (1 - wp) + 6)):
        early = min(T.pvd[(e, dt)] + 3, en) if 3 in tiles(e, wp) else pv + 3
        add("xw", f"xw{j}", lambda j=j, dt=dt: [dsw("ds_write_b128", E_XA, aO[3][dt], 1024 * j)], [xa] + qrd, early=early)
    add("xw", "xwm", lambda: [dsw("ds_write_b64", E_MA, V(vT[14].b, 2), 6144)], [m0, m1, ma] + qrd)
    ta, tb = vT[21], vT[5]
    p = []
    if P["fdirect" if T.final else "adirect"]:
        adr = [lambda: [valu("v_add_u32", E_SW, sRowOwn, vOO)], lambda: [valu("v_add_u32", E_SR, 6144, E_SW)],
               lambda: [valu("v_add_u32", E_GO, 6144, E_SR)], lambda: [valu("v_add_u32", vT[5], sRowSh, vOO)]]
    else:
        adr = [
            lambda: [valu("v_and_b32", ta, 15, vLane)], lambda: [valu("v_lshlrev_b32", ta, 4, ta)],
            lambda: [valu("v_add3_u32", E_SW, vOO, ta, sT[6])],
            lambda: [valu("v_lshrrev_b32", ta, 3, vLane)], lambda: [valu("v_and_b32", tb, 7, vLane)],
            lambda: [valu("v_lshlrev_b32", tb, 4, tb)],
            lambda: [valu("v_mul_u32_u24", E_SR, 400, ta)], lambda: [valu("v_add3_u32", E_SR, E_SR, tb, sT[6])],
            lambda: [valu("v_mul_u32_u24", E_GO, ROWB, ta)], lambda: [valu("v_add3_u32", E_GO, E_GO, tb, sRowOwn)],
            lambda: [valu("v_add_u32", vT[5], sRowSh, vOO)]]
    for i, fac in enumerate(adr):
        p = [add("xv", f"adr{i}", fac, p)]
    return items


def epilogue(wp, final):
    sw, sr, go, xb = E_SW, E_SR, E_GO, E_XB
    direct = P["fdirect" if final else "adirect"]
    om = mods("omod" if final else "omoda")
    park = P["park"] and not final
    assert not park or (P["early4"] and not direct)
    out = []
    out.append(waitsite(dict(lgkm0=True, vm=[] if final else [("K", 32), ("K", 33)])))
    out.append(barrier())
    X = [V(128 + 4 * j, 4) for j in range(6)]
    oml = V(vT[14].b, 2)
    out.append(dsr("ds_read_b64", oml, E_MB, 6144))
    for j in range(6):
        out.append(dsr("ds_read_b128", X[j], xb, 1024 * j))
    if not final:
        for kt in range(2):
            for s in range(6):
                out += item_insts(("krd", 0, kt, s), wp, 0)
        for G in (34, 35) if P["early4"] else (34,):
            for cb in range(3):
                out += dma_piece("dmaV", G, cb)
    pre = out

    def pack(src, k):
        d = V(96 + 4 * (k % (8 if direct else 2)), 4)
        o = [valu("v_cvt_pk_bf16_f32", d.sub(i), src[2 * i], src[2 * i + 1]) for i in range(4)]
        sw_ = [perm("v_permlane16_swap_b32", d.sub(0), d.sub(2)), perm("v_permlane16_swap_b32", d.sub(1), d.sub(3))]
        return o, sw_, d

    chunks = []
    k = 0
    tail = []
    RB = [V(104 + 4 * j, 4) for j in range(6)]

    def readback():
        if direct:
            return []
        return [dsr("ds_read_b128", RB[j], sr, 6400 + (j // 3) * 3200 + (j % 3) * 128) for j in range(6)]

    def store(j):
        if direct:
            return []
        o = [waitsite(), bstore(RB[j], go, sO, 0, (j // 3) * 3072 + (j % 3) * 128, mods=mods("omod" if final else "omoda"))]
        if j == 5:
            o.append(valu("v_add_u32", go, 6144, go))
        return o

    for t in range(3):
        inv = V(E_INV[t].b, 2)
        for p in range(6):
            c = []
            base = 64 + 8 * (k % 4)
            src = [V(base + i) for i in range(8)]
            for i in range(8):
                c.append(valu("v_accvgpr_read_b32", src[i], aO[t][2 * p + i // 4].sub(i % 4)))
            c += tail
            if t > 1 and p == 0:
                c += store(5)
            if p == 0 and t > 0 and not (park and t > 1):
                c += readback()
            if t > 0 and p > 0 and not (park and t > 1):
                c += store(p - 1)
            c.append("MEM")
            for i in range(4):
                pr = V(base + 2 * i, 2)
                c.append(Inst(f"v_pk_mul_f32 {pr}, {pr}, {inv} op_sel_hi:[1,0]", "valu", rd=pr.regs() + inv.regs()[:1], wr=pr.regs()))
            o, sw_, d = pack(src, k)
            c += o
            if direct:
                tail = sw_ + [bstore(d, (sw, sr, go)[t], sO, 0, 64 * p, mods=om)]
            else:
                tail = sw_ + [dsw("ds_write_b128", sw, d, 64 * p + (0 if (park and t == 1) else 6400))]
            if k == 1 and not final and P["early4"]:
                c += [waitsite(dict(lgkm0=True)), barrier()] + [i for cb in range(3) for i in dma_piece("dmaK", 36, cb)]
            chunks.append(c)
            k += 1
    if direct and final:
        chunks.insert(3, pre)
        pre = [waitsite()]
    c = [waitsite()]
    nm_own, nm_oth, l_oth = vCI[3].sub(0), vT[14], vT[15]
    M = vT[9]
    fo, fx = vT[8], vT[10]
    c.append(valu("v_min_f32", M, nm_own, nm_oth))
    c.append(valu("v_sub_f32", fo, M, nm_own))
    c.append(valu("v_sub_f32", fx, M, nm_oth))
    c += tail + ([] if park else store(5) + readback())
    tail = []
    c.append(trans("v_exp_f32", fo, fo))
    c.append(trans("v_exp_f32", fx, fx))
    c.append(valu("v_mul_f32", vT[11], vL[3], fo))
    c.append(valu("v_fma_f32", vT[11], l_oth, fx, vT[11]))
    c.append(trans("v_rcp_f32", vT[11], vT[11]))
    c.append(valu("v_mul_f32", fo, fo, vT[11]))
    c.append(valu("v_mul_f32", fx, fx, vT[11]))
    for p3 in range(3):
        p = 3 * wp + p3
        base = 64 + 8 * (k % 4)
        src = [V(base + i) for i in range(8)]
        for i in range(8):
            c.append(valu("v_accvgpr_read_b32", src[i], aO[3][2 * p + i // 4].sub(i % 4)))
        c += tail
        if not park:
            c += store(2 * p3) + store(2 * p3 + 1)
        fo2, fx2 = V(fo.b, 2), V(fx.b, 2)
        for i in range(4):
            pr = V(base + 2 * i, 2)
            c.append(Inst(f"v_pk_mul_f32 {pr}, {pr}, {fo2} op_sel_hi:[1,0]", "valu", rd=pr.regs() + fo.regs(), wr=pr.regs()))
        for i in range(4):
            pr = V(base + 2 * i, 2)
            xr = X[2 * p3 + i // 2].sub(2 * (i % 2), 2)
            c.append(Inst(f"v_pk_fma_f32 {pr}, {xr}, {fx2}, {pr} op_sel_hi:[1,0,1]", "valu", rd=pr.regs() + fx.regs() + xr.regs(), wr=pr.regs()))
        o, sw_, d = pack(src, k)
        c += o
        tail = sw_ + [bstore(d, vT[5], sO, 0, 64 * p, mods=mods("omod" if final else "omoda"))]
        chunks.append(c)
        c = []
        k += 1
    chunks.append(tail)
    return pre, chunks


def o_srd(ph):
    o = [salu("s_add_u32", sT[4], sT[8], ph),
         salu("s_mul_i32", sT[5], sT[4], HEADQ),
         salu("s_add_u32", S(24), S(10), sT[5]),
         salu("s_addc_u32", S(25), S(11), 0),
         salu("s_mov_b32", sRowOwn, sNRowOwn),
         salu("s_mov_b32", sRowSh, sNRowSh)]
    return o


def phase_setup():
    o = o_srd(0) + next_q_setup(1)
    o.append(salu("s_mov_b32", S(80), S(12)))
    o.append(salu("s_mov_b32", S(81), S(13)))
    o.append(salu("s_mov_b32", S(82), 0))
    o.append(salu("s_mov_b32", sQSo, sNRowOwn))
    o.append(salu("s_mov_b32", sQSm, sRg))
    o.append(salu("s_add_u32", S(96), sNRowOwn, 12288 + 9216))
    o.append(salu("s_and_b32", sT[4], sW, 1))
    o.append(salu("s_mul_i32", sT[4], sT[4], 3072))
    o.append(salu("s_add_u32", S(97), sNRowSh, sT[4]))
    o.append(salu("s_min_u32", S(97), S(97), HEADQ - 3072))
    return o


def phase1_setup():
    o = [salu("s_mov_b32", S(80), S(24)), salu("s_mov_b32", S(81), S(25)), salu("s_mov_b32", S(82), 0),
         salu("s_add_u32", sQSo, sRowOwn, 6144),
         salu("s_add_u32", sT[4], sRg, 256),
         valu("v_lshrrev_b32", vAux, 3, vLane), valu("v_lshlrev_b32", vAux, 4, vAux),
         valu("v_add3_u32", vAux, vAux, vPFo, sT[4])]
    return o + o_srd(1)


def next_q_setup(ph):
    o = []
    o.append(salu("s_xor_b32", sT[5], sT[9], ph))
    o.append(salu("s_mul_i32", sT[5], sT[5], 224 * ROWB))
    o.append(salu("s_mul_i32", sT[6], sW, 48 * ROWB))
    o.append(salu("s_add_u32", sNRowOwn, sT[5], sT[6]))
    o.append(salu("s_lshr_b32", sT[6], sW, 1))
    o.append(salu("s_mul_i32", sT[6], sT[6], 16 * ROWB))
    o.append(salu("s_add_u32", sT[6], sT[6], 192 * ROWB))
    o.append(salu("s_add_u32", sNRowSh, sT[5], sT[6]))
    o.append(salu("s_mov_b32", sT[0], sNRowOwn))
    o.append(salu("s_add_u32", sT[1], sNRowOwn, 6144))
    o.append(salu("s_add_u32", sT[2], sNRowOwn, 12288))
    o.append(salu("s_add_u32", sT[4], sT[8], ph))
    o.append(salu("s_mul_i32", sT[5], sT[4], HEADQ))
    o.append(salu("s_add_u32", S(12), S(4), sT[5]))
    o.append(salu("s_addc_u32", S(13), S(5), 0))
    return o


def prologue():
    o = []
    o.append(scmp("s_cmp_ge_u32", S(2), 256))
    o.append(branch("s_cbranch_scc1", "L_end"))
    o.append(raw("s_load_dwordx4 s[4:7], s[0:1], 0"))
    o.append(raw("s_load_dwordx4 s[8:11], s[0:1], 16"))
    if P["stamp"]:
        o.append(raw(f"s_load_dwordx2 s[60:61], s[0:1], {40 if P['stamp'] == 1 else 32}"))
        o.append(raw("s_memtime s[70:71]"))
        o.append(raw("s_memrealtime s[72:73]"))
    if P["cpf"]:
        o.append(raw("s_getpc_b64 s[98:99]", kind="salu", wr=["s98", "s99"]))
        o.append(label("L_pc"))
        o.append(salu("s_lshr_b32", sT[4], S(2), 3))
        o.append(salu("s_lshl_b32", sT[4], sT[4], 12))
        o.append(valu("v_lshrrev_b32", vT[16], 3, V(0)))
        o.append(valu("v_lshl_add_u32", vT[16], vT[16], 7, sT[4]))
        o.append(valu("v_min_u32", vT[16], "L_hot_end-L_pc-4", vT[16]))
        o.append(Inst(f"global_load_dword {vT[17]}, {vT[16]}, s[98:99]", "vmem", rd=vT[16].regs() + ["s98", "s99"], wr=vT[17].regs()))
    o.append(valu("v_lshrrev_b32", vT[0], 6, V(0)))
    o.append(valu("v_and_b32", vLane, 63, V(0)))
    o.append(rfl(sW, vT[0]))
    o.append(salu("s_lshr_b32", sT[4], S(2), 4))
    o.append(salu("s_and_b32", sT[5], S(2), 7))
    if P["pmap"] == 0:
        o.append(salu("s_lshl_b32", sT[4], sT[4], 3))
    else:
        o.append(salu("s_lshl_b32", sT[5], sT[5], 4))
    o.append(salu("s_add_u32", sT[4], sT[4], sT[5]))
    o.append(salu("s_lshl_b32", sT[8], sT[4], 1))
    o.append(salu("s_lshr_b32", sT[9], S(2), 3))
    o.append(salu("s_and_b32", sT[9], sT[9], 1))
    o.append(salu("s_mul_i32", sT[7], sT[4], 2 * HEADK))
    o.append(salu("s_mul_i32", sWb, sW, 3072))
    o.append(salu("s_mov_b32", sKoff, 0))
    l = vLane
    t0, t1, t2, t3 = vT[4], vT[5], vT[6], vT[7]
    o.append(valu("v_lshrrev_b32", t0, 3, V(0)))
    o.append(valu("v_mul_u32_u24", t1, ROWB, t0))
    o.append(valu("v_and_b32", t2, 7, l))
    o.append(valu("v_bfe_u32", t3, t0, 1, 3))
    o.append(valu("v_xor_b32", t3, t3, t2))
    o.append(valu("v_lshl_add_u32", vDK, t3, 4, t1))
    o.append(valu("v_bfe_u32", t3, t0, 1, 2))
    o.append(valu("v_lshlrev_b32", t3, 1, t3))
    o.append(valu("v_xor_b32", t3, t3, t2))
    o.append(valu("v_lshl_add_u32", vDV, t3, 4, t1))
    o.append(valu("v_and_b32", t0, 15, l))
    o.append(valu("v_lshrrev_b32", t1, 4, l))
    o.append(valu("v_mul_u32_u24", t2, ROWB, t0))
    o.append(valu("v_lshl_add_u32", vQO, t1, 4, t2))
    nq = next_q_setup(0)
    o += nq[:-2]
    for t in range(4):
        o += item_insts(("qadd", t), 0, 0)
    o.append(salu("s_mov_b32", S(18), 2 * HEADK))
    o.append(salu("s_mov_b32", S(19), "0x20000"))
    o.append(salu("s_mov_b32", S(14), HEADQ))
    o.append(salu("s_mov_b32", S(15), "0x20000"))
    o.append(raw("s_waitcnt lgkmcnt(0)"))
    if P["stamp"] == 1:
        o.append(raw("s_memrealtime s[74:75]"))
    o.append(salu("s_add_u32", S(16), S(6), sT[7]))
    o.append(salu("s_addc_u32", S(17), S(7), 0))
    o += nq[-2:]

    def dma_group(kind, G):
        return [i for cb in range(3) for i in dma_piece(kind, G, cb)]

    o += dma_group("dmaK", 0)
    for i in range(P["qpre"]):
        o += item_insts(("qld", i // 6, i % 6), 0, 0)
        if i == 5:
            o += dma_group("dmaK", 1)
    o.append(salu("s_mov_b32", sVoff, 0))
    c = f32bits(math.log2(math.e) / math.sqrt(192.0))
    o.append(salu("s_mov_b32", S(42), hex(c)))
    o.append(salu("s_mov_b32", S(43), hex(c)))
    o.append(salu("s_mov_b32", sTh, hex(f32bits(2.0 ** P["THR"]))))
    o.append(salu("s_add_u32", S(20), S(8), sT[7]))
    o.append(salu("s_addc_u32", S(21), S(9), 0))
    o.append(salu("s_mov_b32", S(22), 2 * HEADK))
    o.append(salu("s_mov_b32", S(23), "0x20000"))
    for r in (87, 91, 92):
        o.append(salu("s_mov_b32", S(r), 0))
    o.append(salu("s_mov_b32", S(26), HEADQ))
    o.append(salu("s_mov_b32", S(27), "0x20000"))
    if P["stamp"]:
        o.append(salu("s_mov_b32", S(62), "0x100000" if P["stamp"] == 1 else 256))
        o.append(salu("s_mov_b32", S(63), "0x20000"))
        o.append(salu("s_lshl_b32", S(66), S(2), 2))
        o.append(salu("s_add_u32", S(66), S(66), sW))
        o.append(salu("s_lshl_b32", S(66), S(66), 8))
        if P["stamp"] == 3:
            o.append(scmp("s_cmp_eq_u32", S(66), P["stwave"] * 256))
            o.append(salu("s_cselect_b32", S(62), 256, 0))
        if P["stamp"] >= 2:
            o.append(salu("s_mov_b32", S(66), 0))
    o.append(salu("s_mov_b32", S(83), "0x20000"))
    o.append(salu("s_lshl_b32", sRg, sW, 14))
    o.append(salu("s_add_u32", sRg, sRg, RBASE))
    t0, t1, t2, t3 = vT[4], vT[5], vT[6], vT[7]
    o.append(valu("v_and_b32", t0, 15, l))
    o.append(valu("v_lshrrev_b32", t1, 4, l))
    o.append(valu("v_mul_u32_u24", t2, ROWB, t0))
    o.append(valu("v_and_b32", t3, 1, t1))
    o.append(valu("v_lshl_add_u32", t2, t3, 5, t2))
    o.append(valu("v_lshrrev_b32", t3, 1, t1))
    o.append(valu("v_lshl_add_u32", vOO, t3, 4, t2))
    o.append(valu("v_lshrrev_b32", t2, 3, l))
    o.append(valu("v_mul_u32_u24", t2, ROWB, t2))
    o.append(valu("v_and_b32", t3, 7, l))
    o.append(valu("v_xor_b32", t3, t3, t1))
    o.append(valu("v_lshl_add_u32", vPFo, t3, 4, t2))
    o.append(valu("v_lshrrev_b32", t2, 3, t0))
    o.append(valu("v_mul_u32_u24", t2, 3072, t2))
    o.append(valu("v_and_b32", t3, 7, t0))
    o.append(valu("v_lshl_add_u32", t2, t3, 7, t2))
    o.append(valu("v_lshrrev_b32", t3, 1, t0))
    o.append(valu("v_xor_b32", t3, t3, t1))
    o.append(valu("v_lshl_add_u32", vKA[0], t3, 4, t2))
    if KBASE:
        o.append(valu("v_add_u32", vKA[0], KBASE, vKA[0]))
    o.append(valu("v_xor_b32", vKA[1], 64, vKA[0]))
    o.append(valu("v_lshrrev_b32", t2, 2, t0))
    o.append(valu("v_and_b32", t3, 1, t1))
    o.append(valu("v_lshl_add_u32", t2, t3, 2, t2))
    o.append(valu("v_lshrrev_b32", t3, 1, t1))
    o.append(valu("v_mul_u32_u24", t3, 3072, t3))
    o.append(valu("v_lshl_add_u32", t3, t2, 7, t3))
    o.append(valu("v_and_b32", t0, 3, l))
    o.append(valu("v_lshl_add_u32", t3, t0, 3, t3))
    o.append(valu("v_add_u32", t3, VBASE, t3))
    o.append(valu("v_lshrrev_b32", t2, 1, t2))
    o.append(valu("v_lshl_add_u32", vVA[0], t2, 5, t3))
    for j in range(1, 4):
        o.append(valu("v_xor_b32", vVA[j], 32 * j, vVA[0]))
    if P["stamp"] == 1:
        o += [valu("v_mov_b32", vSt0, S(70)), valu("v_mov_b32", vSt1, S(66)), bstore(vSt0, vSt1, sWs, 0, 4 * 6), raw("s_nop 1"),
              valu("v_mov_b32", vSt0, S(72)), bstore(vSt0, vSt1, sWs, 0, 4 * 6 + 32), raw("s_nop 1")]
    o.append(valu("v_lshlrev_b32", vAux, 7, l))
    o.append(Inst(f"v_cmp_gt_u32 vcc, 24, {l}", "valu", rd=l.regs(), wr=["vcc"]))
    o.append(valu("v_mov_b32", t0, "0x40000000"))
    o.append(Inst(f"v_cndmask_b32 {vAux}, {t0}, {vAux}, vcc", "valu", rd=t0.regs() + vAux.regs() + ["vcc"], wr=vAux.regs()))
    o += cnt_addr()
    o.append(valu("v_mov_b32", vCr, 0))
    o.append(dsw("ds_write_b32", vCa, vCr))
    o.append(salu("s_mov_b32", sTgt, 4))
    o.append(salu("s_and_b32", sT[4], sW, 1))
    o.append(scmp("s_cmp_eq_u32", sT[4], 1))
    o.append(branch("s_cbranch_scc1", "L_start_1"))
    return o


def cnt_addr():
    return [salu("s_mov_b32", sT[12], CNT_ADDR), valu("v_lshl_add_u32", vCa, vLane, 2, sT[12])]


def rare_common(wp, typ):
    Gp = wp if typ == 0 else 1 - wp
    o = [label(f"L_rare_{wp}_{typ}"), raw("s_nop 15"), raw("s_nop 15")]
    kt_ = [V(vT[0].b, 4), V(vT[4].b, 4)] + [A(240 + 4 * s, 4) for s in range(4)]
    ka = V(0)

    def recompute(G, soff, cfun):
        r = []
        for kt in range(2):
            r.append(valu("v_add_u32", ka, 6144 * kt, vQO))
            for s in range(6):
                r.append(bload(kt_[s], ka, sK, soff, 64 * s))
            r.append(raw("s_waitcnt vmcnt(0)"))
            r.append(waitsite(dict(vm0=True)))
            for t in tiles(G, wp):
                for s in range(6):
                    r.append(mfma(vS[t][kt], kt_[s], vQ[t][s], vS[t][kt] if s else cfun(t)))
            r.append(raw("s_nop 15"))
        return r

    o += recompute(Gp, sT[11], lambda t: 0)
    m, m2, f = vT[0], vT[1], vT[2]
    for t in tiles(Gp, wp):
        s0, s1 = vS[t]
        o.append(valu("v_max3_f32", m, s0.sub(0), s0.sub(1), s0.sub(2)))
        o.append(valu("v_max3_f32", m, m, s0.sub(3), s1.sub(0)))
        o.append(valu("v_max3_f32", m, m, s1.sub(1), s1.sub(2)))
        o.append(valu("v_max_f32", m, m, s1.sub(3)))
        o += lane_reduce(m, m2, "v_max_f32")
        o.append(valu("v_sub_f32", m2, 0, vCI[t].sub(0)))
        o.append(valu("v_max_f32", m, m, m2))
        o.append(valu("v_sub_f32", f, m2, m))
        o.append(trans("v_exp_f32", f, f))
        for r in range(4):
            o.append(valu("v_sub_f32", vCI[t].sub(r), 0, m))
        o.append(valu("v_mul_f32", vL[t], vL[t], f))
        for dt in range(12):
            for r in range(4):
                o.append(valu("v_accvgpr_read_b32", vT[4 + r], aO[t][dt].sub(r)))
            for r in range(4):
                o.append(valu("v_mul_f32", vT[4 + r], vT[4 + r], f))
            for r in range(4):
                o.append(valu("v_accvgpr_write_b32", aO[t][dt].sub(r), vT[4 + r]))
        for kt in range(2):
            for r in range(4):
                x = vS[t][kt].sub(r)
                o.append(valu("v_sub_f32", x, x, m))
                o += item_insts(("exp", Gp, t, kt, r), wp, 0)
        for i in range(7):
            o += item_insts(("add", Gp, t, i), wp, 0)
        for kt in range(2):
            for h in range(2):
                o += item_insts(("cvt", Gp, t, kt, h), wp, 0)
    o.append(scmp("s_cmp_eq_u32", sT[10], 0))
    o.append(branch("s_cbranch_scc1", f"L_rare_{wp}_{typ}_ret"))
    o.append(salu("s_add_u32", sT[11], sT[11], GRP))
    o += recompute(Gp + 1, sT[11], lambda t: vCI[t])
    o.append(label(f"L_rare_{wp}_{typ}_ret"))
    return o


def build_phase(wp):
    tm = steady_template(wp)
    sc = StepCode(wp)
    segs = {}
    done2 = {abskey(k, 1) for g in tm[1 % 2] for k in g if k[0] in ("exp", "add", "cvt", "chkA", "chkB", "chkC") and k[1] == 1}

    def sched_head(startup):
        H = Region(wp, -1, 1, startup=startup)
        items = H.sm_items(0) + H.sm_items(1)
        g2 = H.sm_items(2, only=done2)
        for it in g2:
            it.dead = min(it.dead, H.n - 1)
        items += g2
        for e in (-1, 0, 1):
            items += H.mem_items(e)
        gaps = H.schedule(items)
        assert not H.left, [x.key for x in H.left]
        if P["verbose"]:
            print(f"wp{wp} head{int(startup)} overflow {H.over} idle {H.idle} of {8 * H.n}", file=sys.stderr)
        return H, gaps

    H, gaps = sched_head(False)
    NEED = [("V", 1), ("K", 3)]

    def do_emit(R, gk, e, tag, **kw):
        mf = [R.mf[i][1] for i in range(R.st[e], R.en[e] + 1)]
        chk = R.chk_gap(e) - R.st[e] if e > 0 else None
        sync = P["BR"] if R.has_sync(e) else None
        end = None if (R.has_arr(e) or e >= NG - 2) else NEED
        return sc.emit(mf, gk, e, tag, chk, sync, end, arr_need=NEED, **kw)

    def cut(R, gaps, e):
        return [[it.key for it in gaps[i]] for i in range(R.st[e], R.en[e] + 1)]

    sc.ph = 1
    for e in (-1, 0, 1):
        segs[e] = do_emit(H, cut(H, gaps, e), e, f"h{wp}_{e + 1}")
    R = Region(wp, 2, 5, regular=True)
    def build_loop(ph):
        sc.ph = ph
        gks = {e: [[abskey(k, e) for k in g] for g in tm[e % 2]] for e in range(2, 6)}
        extra = {e: [] for e in range(2, 6)}

        def used(g):
            return sum(CLS[k[0]][1] for k in g)

        def vm(g):
            return any(CLS[k[0]][0] == "dma" for k in g)

        def spots(after, cost, lds=False):
            r = []
            for e in range(2, 6):
                for i, g in enumerate(gks[e]):
                    if (e, i) <= after or not 0 < i < 82 or used(g) + cost > 8:
                        continue
                    if cost == 8 and (vm(gks[e][i - 1]) or vm(gks[e][i + 1])):
                        continue
                    if lds and any(CLS[k[0]][0] == "lds" for k in g):
                        continue
                    r.append((e, i))
            return r

        def put(pos, key):
            gks[pos[0]][pos[1]].append(key)
            return pos

        def spread(keys, after):
            pos = after
            for n, k in enumerate(keys):
                c = spots(pos, 8)
                pos = put(c[max(0, len(c) // (len(keys) - n + 1) - 1) if n else 0], k)
            return pos

        if ph == 0:
            setup = []
            if P["qst"]:
                setup += [[salu("s_and_b32", sT[13], sCnt, 4)], [salu("s_lshl_b32", sT[13], sT[13], 4)],
                          [salu("s_xor_b32", S(87), sT[13], 64)],
                          [salu("s_mul_i32", S(91), S(87), 48)], [salu("s_mul_i32", S(82), S(87), HEADQ // 64)]]
                keys = [("dmaQ", 0, cb) for cb in range(3)]
                if P["qpf"]:
                    keys.insert(0, ("pf",))
                    setup += [[salu("s_mul_i32", sT[13], sCnt, 3072)], [salu("s_sub_u32", sT[13], S(96), sT[13])],
                              [scmp("s_cmp_ge_u32", sCnt, 2), salu("s_cselect_b32", S(92), sT[13], S(97))]]
                qend = spread(keys, (2, 40))
                put(spots(qend, 4)[0], ("pfa",))
                extra[qend[0]].append((qend[1] + 1, 82, [[salu("s_add_u32", sQSo, sQSo, S(91))], [salu("s_add_u32", sQSm, sQSm, S(91))]]))
                extra[2].insert(0, (0, 39, setup))
        else:
            setup = []
            if P["park"]:
                setup += [[salu("s_add_u32", sT[13], sCnt, 1)], [salu("s_and_b32", sT[13], sT[13], 4)],
                          [salu("s_mul_i32", S(82), sT[13], HEADQ // 4)], [salu("s_mul_i32", S(91), sT[13], 800)],
                          [salu("s_mul_i32", S(87), sT[13], 768)]]
                pos = (2, 0)
                for j in range(3):
                    pos = put(spots(pos, 4, lds=True)[0], ("drd", j))
                put(spots((max(pos[0], 2), max(pos[1], 40)) if pos[0] == 2 else pos, 4)[0], ("dra",))
                first = (pos[0], pos[1] + 8) if pos[1] < 70 else (pos[0] + 1, 0)
                dend = spread([("dst", j) for j in range(3)], max(first, (2, 40)))
                extra[dend[0]].append((dend[1] + 1, 82, [[salu("s_add_u32", sQSo, sQSo, S(87))]]))
            extra[2].insert(0, (0, 39, setup))
        out = {e: do_emit(R, gks[e], e, f"b{wp}{ph}_{e}", extra=extra[e]) for e in range(2, 6)}
        out[5] = out[5] + [salu("s_sub_u32", sCnt, sCnt, 1), branch("s_cbranch_scc0", f"L_loop_{wp}{ph}")]
        return out

    loops = [build_loop(0), build_loop(1)]
    if P["verbose"]:
        print(f"wp{wp} loop salu overflow slots {sc.over}", file=sys.stderr)
    done30 = {abskey(k, 29) for g in tm[29 % 2] for k in g if k[1] == 1}
    for final in (False, True):
        sc.ph = int(final)
        T = Region(wp, 30, 31, final=final)
        items = T.sm_items(30, skip=done30) + T.sm_items(31)
        for e in (30, 31):
            items += T.mem_items(e)
        items += epi_items(T, wp)
        gaps = T.schedule(items)
        if not final:
            qleft = T.qleft
        assert not T.left, [x.key for x in T.left]
        if P["verbose"]:
            print(f"wp{wp} tail{int(final)} overflow {T.over} idle {T.idle} of {8 * T.n}", file=sys.stderr)
        for e in (30, 31):
            ex = [(20, 83, [[salu("s_mov_b32", sT[4], sRg)], [salu("s_xor_b32", sT[5], sRg, RW)], [salu("s_add_u32", sT[6], sRg, STGO)]])] if e == 30 else []
            segs[(e, final)] = do_emit(T, cut(T, gaps, e), e, f"t{wp}{int(final)}_{e}", midbar=[("V", 1)] if e == 30 else None, extra=ex)

    start = [label(f"L_start_{wp}")] + stamp(0)
    start += [waitsite(dict(lgkm0=True, vm=[("K", 0), ("K", 1)])), barrier()]
    if P["stamp"] == 1:
        start += [raw("s_memrealtime s[100:101]"), raw("s_waitcnt lgkmcnt(0)"),
                  valu("v_mov_b32", vSt0, S(74)), valu("v_mov_b32", vSt1, S(66)), bstore(vSt0, vSt1, sWs, 0, 4 * 7), raw("s_nop 1"),
                  valu("v_mov_b32", vSt0, S(100)), bstore(vSt0, vSt1, sWs, 0, 4 * 15), raw("s_nop 1")]
    for kt in range(2):
        for s in range(6):
            start += item_insts(("krd", 0, kt, s), wp, 0)
    rest = [(kind, G, cb) for kind, G in (("dmaV", 0), ("dmaK", 2), ("dmaV", 1), ("dmaK", 3), ("dmaV", 2)) for cb in range(3)]
    todo = [item_insts(("qld", i // 6, i % 6), 0, 0) for i in range(P["qpre"], 24)] + [dma_piece(*r, e=-1) for r in rest]
    pay = [[] for _ in range(4)]
    for i in range(24):
        pay[i // 6] += q_chunk(i // 6, i % 6)
        n = -(-len(todo) // (24 - i))
        for _ in range(n):
            pay[i // 6] += todo.pop(0)
    pay[3] += phase_setup() + stamp(1)
    HS, gapsS = sched_head(True)
    sc.ph = 0
    segS = {e: do_emit(HS, cut(HS, gapsS, e), e, f"s{wp}_{e + 1}", payload=pay if e == -1 else None) for e in (-1, 0, 1)}
    head = stamp(1) + [waitsite()]
    loop_in = [[salu("s_mov_b32", sCnt, 6)] + stamp(2) + [raw(".p2align 6", kind="label"), label(f"L_loop_{wp}{ph}")] for ph in range(2)]
    after_loop = [stamp(3), stamp(3)]
    pre, ch = epilogue(wp, False)
    epi_a = stamp(4) + pre
    qc = [q_chunk(i // 6, i % 6) for i in range(24)]
    if P["ilv"]:
        skip = 0 if P["qst"] else 4
        for i, c in enumerate(ch):
            mem = item_insts(qleft.pop(0), wp, 0) if (qleft and "MEM" in c) else []
            epi_a.append(waitsite())
            for x in c:
                epi_a += mem if x == "MEM" else [x]
            if i >= skip and qc:
                epi_a += qc.pop(0)
    assert not qleft
    epi_a += stamp(5)
    for c in qc:
        epi_a += c
    if P["stamp"]:
        epi_a.append(salu("s_add_u32", S(66), S(66), 64 if P["stamp"] == 1 else 24))
    epi_a += phase1_setup() + stamp(0)
    pre, ch = epilogue(wp, True)
    epi_b = stamp(4) + pre + [i for c in ch for i in c if i != "MEM"] + stamp(5) + [raw("s_endpgm")]

    def parts(ph, trips):
        b = 32 * ph
        d = [(i, b) for i in (start if ph == 0 else head)]
        for e in (-1, 0, 1):
            d += [(i, b + e) for i in (segs if ph else segS)[e]]
        d += [(i, b) for i in loop_in[ph]]
        for it in range(trips):
            for e in range(2, 6):
                d += [(i, b + e + 4 * it) for i in loops[ph][e]]
        d += [(i, b) for i in after_loop[ph]]
        for e in (30, 31):
            d += [(i, b + e) for i in segs[(e, ph == 1)]]
        d += [(i, b) for i in (epi_b if ph else epi_a)]
        return d

    static = [i for i, _ in parts(0, 1) + parts(1, 1)]

    def dyn(ph):
        return parts(ph, 7)

    rare = []
    def spin(lab):
        return [salu("s_mov_b32", sT[14], 0), label(f"{lab}_spin"), raw(f"ds_read_b32 {vCr}, {vCa}"), salu("s_add_u32", sT[14], sT[14], 1),
                raw("s_waitcnt lgkmcnt(0)"), raw(f"v_cmp_gt_u32 {sCm}, {sTgt}, {vCr}"), scmp("s_cmp_gt_u32", sT[14], "0x40000"),
                branch("s_cbranch_scc1", f"{lab}_spun"), raw(f"s_cmp_lg_u64 {sCm}, 0"), branch("s_cbranch_scc1", f"{lab}_spin"),
                label(f"{lab}_spun")]

    for lab, e, replay, chk, sync in sc.sites:
        if sync and not chk:
            rare += [label(f"{lab}_rare")] + spin(lab) + [branch("s_branch", f"{lab}_back")]
    if P["check"]:
        for typ in (0, 1):
            mine = [(n, s) for n, s in enumerate(sc.sites) if buf(s[1], wp) == typ and s[3]]
            for n, (lab, e, replay, chk, sync) in mine:
                rare.append(label(f"{lab}_rare"))
                if sync:
                    rare += spin(lab)
                    rare += [raw(f"v_cmp_lt_f32 vcc, {sTh}, {vChk}"), raw("s_nop 4"), branch("s_cbranch_vccz", f"{lab}_back")]
                rare.append(salu("s_mov_b32", sRet, n))
                rare.append(salu("s_mov_b32", sT[10], 0 if e == NG - 1 else 1))
                rare.append(salu("s_mov_b32", sT[11], sc.site_ph[lab] * HEADK))
                if 2 <= e <= 5:
                    rare.append(salu("s_sub_u32", sT[12], 6, sCnt))
                    rare.append(salu("s_mul_i32", sT[12], sT[12], 4 * GRP))
                    rare.append(salu("s_add_u32", sT[11], sT[11], sT[12]))
                rare.append(salu("s_add_u32", sT[11], sT[11], e * GRP))
                rare.append(branch("s_branch", f"L_rare_{wp}_{typ}"))
            com = rare_common(wp, typ)
            Sim().run([(i, 0) for i in com])
            rare += com
            for n, (lab, e, replay, chk, sync) in mine:
                rare.append(scmp("s_cmp_eq_u32", sRet, n))
                rare.append(branch("s_cbranch_scc1", f"{lab}_replay"))
            rare.append(raw("s_endpgm"))
            for n, (lab, e, replay, chk, sync) in mine:
                rp = [label(f"{lab}_replay")]
                for k in replay:
                    rp += item_insts(k, wp, e)
                rp.append(raw("s_nop 4"))
                Sim().run([(i, 0) for i in rp])
                rare += rp
                rare.append(branch("s_branch", f"{lab}_back"))
    return static, dyn, rare


def main():
    pro = prologue()
    text = []
    body = []
    for wp in (0, 1):
        for pas in range(2):
            static, dyn, rare = build_phase(wp)
            for _ in range(2):
                sim = Sim()
                sim.run([(i, 0) for i in pro] + dyn(0) + dyn(1))
            for i in static:
                if i.kind == "wait" and i.note and (i.lgk is not None or i.vm is not None):
                    ACTIVE.add(i.note)
        if P["verbose"]:
            nn = sum(i.nop for i in static)
            print(f"wp{wp}: static insts {len(static)} nops {nn} max vq {sim.maxvq}", file=sys.stderr)
        body.append((static, rare))
    hdr = open("standalone__gqa_softmax__near_ridge.s.ref").read().splitlines()
    for ln in hdr:
        if ln.startswith("; @launch"):
            text.append(f"; @launch grid=(256,1,1) block=(256,1,1) lds={LDS_BYTES}")
        elif ln.startswith(";"):
            text.append(ln)
        else:
            break
    text += ["; Generated by gen/genk.py " + " ".join(sys.argv[2:]),
             '.amdgcn_target "amdgcn-amd-amdhsa--gfx950"', ".text", f".globl {NAME}", ".p2align 8",
             f".type {NAME},@function", f"{NAME}:"]
    text += render(pro)
    for static, rare in body:
        text += render(static)
    text.append("L_hot_end:")
    for static, rare in body:
        text += render(rare)
    text += ["L_end:", "    s_endpgm", '.section .rodata,"a"', ".p2align 6", f".amdhsa_kernel {NAME}",
             "  .amdhsa_next_free_vgpr 512", "  .amdhsa_next_free_sgpr 102", "  .amdhsa_accum_offset 256",
             "  .amdhsa_group_segment_fixed_size 0", "  .amdhsa_kernarg_size 48", "  .amdhsa_user_sgpr_count 2",
             "  .amdhsa_user_sgpr_kernarg_segment_ptr 1", "  .amdhsa_system_sgpr_workgroup_id_x 1", ".end_amdhsa_kernel", ""]
    open(sys.argv[1], "w").write("\n".join(text))


main()
```

```python
import sys, struct, math
sys.path.insert(0, "gen")
from asmlib import *

P = dict(
    LAT=4,
    LDSLAT=8,
    THR=20,
    check=1,
    stamp=0,
    pmap=1,
    stwave=404,
    verbose=0,
    nobar=0,
    ssync=1,
    BR=11,
    ARR=10,
    qst=1,
    kst=3,
    dsp=10,
    qlsp=8,
    qpre=10,
    fakepair=0,
    cpf=1,
    park=1,
    qpf=1,
    omodp="sc0+sc1",
    fdirect=0,
    adirect=0,
    early4=1,
    ilv=1,
    kvmod="nt",
    qmod="",
    omod="sc0+sc1",
    omoda="",
)
for a in sys.argv[2:]:
    k, v = a.split("=")
    P[k] = type(P[k])(v) if k in P else v

NAME = "standalone__gqa_softmax__near_ridge_kernel"
ROWB = 384
GRP = 12288
HEADQ = 432 * ROWB
HEADK = 1024 * ROWB
KBASE, VBASE, RBASE = 0, 49152, 98304
RW = 16384
STGO = 256
LDS_BYTES = RBASE + 4 * RW
NG = 32
MIDBAR = 40

sQ, sK, sV, sO = S(12, 4), S(16, 4), S(20, 4), S(24, 4)
sW, sKoff, sVoff, sCnt, sPh, sWb, sC, sTh, sRet = (S(i) for i in range(28, 37))
sRowOwn, sRowSh, sNRowOwn, sNRowSh = S(37), S(38), S(39), S(40)
sT = [S(i) for i in range(44, 60)]
sQp, sOp = S(4, 2), S(10, 2)
sWs = S(60, 4)
sStamp = S(64, 2)
sPF = S(80, 4)

vLane = V(1)
vKA = [V(2), V(3)]
vVA = [V(4 + i) for i in range(4)]
vDK, vDV = V(8), V(9)
vQO, vOO = V(10), V(11)
vL = [V(12 + t) for t in range(4)]
vLG = [[V(16 + 4 * b + t) for t in range(4)] for b in range(2)]
vT = [V(24 + i) for i in range(24)]
vCI = [V(48 + 4 * t, 4) for t in range(4)]
vS = [[V(64 + 8 * t + 4 * kt, 4) for kt in range(2)] for t in range(4)]
vP = [[V(96 + 16 * b + 4 * t, 4) for t in range(4)] for b in range(2)]
vVF = [V(128 + 4 * i, 4) for i in range(8)]
vQ = [[V(160 + 24 * t + 4 * s, 4) for s in range(6)] for t in range(4)]
aO = [[A(48 * t + 4 * dt, 4) for dt in range(12)] for t in range(4)]
aKF = [[A(192 + 24 * kt + 4 * s, 4) for s in range(6)] for kt in range(2)]
vChk = V(28)
vQoff = [V(24 + t) for t in range(4)]
vSt0, vSt1 = V(0), V(45)
vAux = V(47)
vCa, vCr = V(46), V(30)
sTgt, sCm = S(93), S(94, 2)
CNT_ADDR = RBASE + 16128
XREG = {}
LATE = set()
ACTIVE = set()
vPFo = V(23)
sQSo, sQSm, sRg = S(84), S(89), S(90)


def vf(G, dt):
    return vVF[(dt + (4 if G == NG - 1 else 0)) % 8]


def f32bits(x):
    return struct.unpack("<I", struct.pack("<f", x))[0]


def mods(k):
    return "".join(" " + x for x in P[k].split("+") if x)


def tiles(G, wp):
    return [0, 1, 2, 3] if (G % 2) == wp else [0, 1, 2]


def buf(G, wp):
    return 0 if (G % 2) == wp else 1


def item_insts(key, wp, e):
    k = key[0]
    if k == "exp":
        _, G, t, kt, r = key
        x = vS[t][kt].sub(r)
        return [trans("v_exp_f32", x, x)]
    if k == "add":
        _, G, t, i = key
        lg = vLG[buf(G, wp)][t]
        if i == 0:
            return [valu("v_add_f32", lg, vS[t][0].sub(0), vS[t][0].sub(1))]
        j = i + 1
        return [valu("v_add_f32", lg, lg, vS[t][j // 4].sub(j % 4))]
    if k == "cvt":
        _, G, t, kt, h = key
        return [valu("v_cvt_pk_bf16_f32", vP[buf(G, wp)][t].sub(2 * kt + h), vS[t][kt].sub(2 * h), vS[t][kt].sub(2 * h + 1))]
    if k == "chkA":
        lg = vLG[buf(key[1], wp)]
        return [valu("v_max3_f32", vChk, lg[0], lg[1], lg[2])]
    if k == "chkB":
        lg = vLG[buf(key[1], wp)]
        return [valu("v_max_f32", vChk, vChk, lg[3])]
    if k == "chkC":
        return [Inst(f"v_cmp_lt_f32 vcc, {sTh}, {vChk}", "valu", rd=vChk.regs() + sTh.regs(), wr=["vcc"])]
    if k == "ladd":
        _, G, t = key
        lg = vLG[buf(G, wp)][t]
        first = (G == 0) if t < 3 else (G == wp)
        if first:
            return [valu("v_mov_b32", vL[t], lg)]
        return [valu("v_add_f32", vL[t], vL[t], lg)]
    if k == "vrd":
        _, G, dt, hf = key
        return [dsr("ds_read_b64_tr_b16", vf(G, dt).sub(2 * hf, 2), vVA[dt % 4], (G % 4) * GRP + hf * 6144 + (dt // 4) * 1024)]
    if k == "krd":
        _, G, kt, s = key
        return [dsr("ds_read_b128", aKF[kt][s], vKA[s % 2], (G % 4) * GRP + kt * 6144 + (s // 2) * 1024)]
    if k == "dmaV":
        _, G, cb = key
        return [bdma(vDV, sV, sVoff, cb * 128, tag=("V", G - e), mods=mods("kvmod"))]
    if k == "dmaK":
        _, G, cb = key
        return [bdma(vDK, sK, sKoff, cb * 128, tag=("K", G - e), mods=mods("kvmod"))]
    if k == "qadd":
        _, t = key
        if t < 3:
            return [valu("v_add_u32", vQoff[t], sT[t], vQO)]
        return [valu("v_add_u32", vQoff[t], sNRowSh, vQO)]
    if k == "qld":
        _, t, s = key
        return [bload(vQ[t][s], vQoff[t], sQ, 0, 64 * s, mods=mods("qmod"))]
    if k == "dmaQ":
        return [bdma(vPFo, sPF, sQSo, key[2] * 128, tag=("Q", -e), mods=mods("kvmod"))]
    if k in ("xv", "xp", "xt", "xw"):
        return XREG[key]()
    if k == "arr":
        return [dsw("ds_inc_u32", vCa, vCa)]
    if k == "crd":
        return [dsr("ds_read_b32", vCr, vCa)]
    if k == "ccmp":
        return [Inst(f"v_cmp_gt_u32 {sCm}, {sTgt}, {vCr}", "valu", rd=vCr.regs() + sTgt.regs(), wr=sCm.regs())]
    if k == "pf":
        return [Inst(f"buffer_load_dword {vT[8]}, {vAux}, {sPF}, {S(92)} offen", "vmem", rd=vAux.regs() + sPF.regs() + ["s92"], wr=vT[8].regs())]
    if k == "drd":
        return [dsr("ds_read_b128", V(vT[8].b + 4 * key[1], 4), vAux, 128 * key[1])]
    if k == "dst":
        return [bstore(V(vT[8].b + 4 * key[1], 4), vPFo, sPF, sQSo, 128 * key[1], mods=mods("omodp"))]
    if k == "dra":
        return [valu("v_add_u32", vAux, S(91), vAux)]
    if k == "pfa":
        return [valu("v_xor_b32", vPFo, S(87), vPFo)]
    if k == "qra":
        return [valu("v_add_u32", vQoff[key[1]], sRg, vKA[key[1]])]
    if k == "qrd":
        _, t, s = key
        return [dsr("ds_read_b128", vQ[t][s], vQoff[s % 2], t * 6144 + (s // 2) * 1024)]
    if k == "mx":
        _, t, i = key
        m, s0, s1 = vT[8 + 2 * t], vS[t][0], vS[t][1]
        m2 = vT[9 + 2 * t]
        if i == 0:
            return [valu("v_max3_f32", m, s0.sub(0), s0.sub(1), s0.sub(2))]
        if i == 1:
            return [valu("v_max3_f32", m, m, s0.sub(3), s1.sub(0))]
        if i == 2:
            return [valu("v_max3_f32", m, m, s1.sub(1), s1.sub(2))]
        if i == 3:
            return [valu("v_max_f32", m, m, s1.sub(3))]
        if i in (4, 7):
            return [valu("v_mov_b32", m2, m)]
        if i == 5:
            return [perm("v_permlane32_swap_b32", m, m2)]
        if i == 8:
            return [perm("v_permlane16_swap_b32", m, m2)]
        if i in (6, 9):
            return [valu("v_max_f32", m, m, m2)]
    if k == "ci":
        _, t, r = key
        return [valu("v_sub_f32", vCI[t].sub(r), 0, vT[8 + 2 * t])]
    if k == "sub":
        _, t, kt, r = key
        x = vS[t][kt].sub(r)
        return [valu("v_sub_f32", x, x, vT[8 + 2 * t])]
    raise KeyError(key)


def m0_for(key):
    k, G, cb = key
    if k == "dmaQ":
        return salu("s_add_u32", "m0", sQSm, cb * (1024 - 128))
    base = (KBASE if k == "dmaK" else VBASE) + (G % 4) * GRP + cb * (1024 - 128)
    return salu("s_add_u32", "m0", sWb, base)


CLS = dict(exp=("exp", 8), add=("valu", 4), cvt=("valu", 4), chkA=("valu", 4), chkB=("valu", 4), chkC=("valu", 4),
           ladd=("valu", 4), vrd=("lds", 4), krd=("lds", 4), dmaV=("dma", 8), dmaK=("dma", 8), qadd=("valu", 4),
           qld=("dma", 8), pf=("dma", 8), drd=("lds", 4), dst=("dma", 8), dra=("valu", 4), xv=("valu", 4), xp=("valu", 4), xt=("exp", 8), xw=("dma", 8), dmaQ=("dma", 8), arr=("lds", 4), crd=("lds", 4), ccmp=("valu", 4), pfa=("valu", 4), qra=("valu", 4), qrd=("lds", 4), mx=("valu", 4), ci=("valu", 4), sub=("valu", 4))


class Item:
    def __init__(self, key, hard, soft, dead, deps=()):
        self.key, self.hard, self.soft, self.dead = key, hard, max(hard, soft), dead
        self.deps = list(deps)
        self.cls, self.cost = CLS[key[0]]
        self.placed = None


class Region:
    def __init__(self, wp, e0, e1, regular=False, final=False, startup=False):
        self.wp, self.e0, self.e1, self.regular, self.final, self.startup = wp, e0, e1, regular, final, startup
        self.mf = []
        self.qs, self.qe, self.pvs, self.pvu, self.pvd = {}, {}, {}, {}, {}
        self.kfl = {}
        self.ql = {}
        self.st, self.en = {}, {}
        last = NG - 1
        for e in range(e0, e1 + 1):
            self.st[e] = len(self.mf)
            G = e + 1
            if regular or G <= last:
                if e == -1:
                    order = [(t, kt) for t in range(4) for kt in range(2)]
                else:
                    order = [(t, kt) for kt in range(2) for t in tiles(G, wp)]
                for t, kt in order:
                    if startup and e == -1 and kt == 0:
                        self.mf.append((e, None))
                    self.qs[(G, t, kt)] = len(self.mf)
                    for s in range(6):
                        self.kfl[(G, kt, s)] = len(self.mf)
                        self.ql[(t, s)] = len(self.mf)
                        self.mf.append((e, ("qk", G, t, kt, s)))
                    self.qe[(G, t, kt)] = len(self.mf) - 1
            else:
                self.mf.append((e, None))
            if e >= 0:
                self.pvs[e] = len(self.mf)
                if P["fakepair"]:
                    for d2 in range(6):
                        self.pvu[(e, 2 * d2)] = len(self.mf)
                        self.pvu[(e, 2 * d2 + 1)] = len(self.mf) + 1
                        for t in tiles(e, wp):
                            self.mf.append((e, ("pv", e, t, 2 * d2)))
                            self.mf.append((e, ("pv", e, t, 2 * d2 + 1)))
                        self.pvd[(e, 2 * d2)] = len(self.mf) - 2
                        self.pvd[(e, 2 * d2 + 1)] = len(self.mf) - 1
                for dt in range(12 if not P["fakepair"] else 0):
                    self.pvu[(e, dt)] = len(self.mf)
                    for t in tiles(e, wp):
                        self.mf.append((e, ("pv", e, t, dt)))
                    self.pvd[(e, dt)] = len(self.mf) - 1
            self.en[e] = len(self.mf) - 1
        self.n = len(self.mf)

    def has_sync(self, e):
        return bool(P["ssync"]) and (self.regular or 1 <= e <= NG - 2)

    def has_arr(self, e):
        return bool(P["ssync"]) and (self.regular or 0 <= e <= NG - 3)

    def chk_gap(self, e):
        if self.has_sync(e) and (self.regular or e >= 2):
            return self.st[e] + P["BR"]
        return self.pvs[e] - 1

    def sm_items(self, G, only=None, skip=None):
        wp = self.wp
        BIG = 10 ** 6
        items = {}
        pvs = self.chk_gap(G) + 1 if G in self.pvs else BIG

        def add(it):
            items[it.key] = it

        for t in tiles(G, wp):
            G2 = G + 1 if t < 3 else G + 2
            qd = {}
            for kt in range(2):
                ov = self.qs.get((G2, t, kt), BIG)
                qd[kt] = min(ov - 1, pvs - 6)
                qe = self.qe.get((G, t, kt), -1)
                for r in range(4):
                    deps = [("sub", t, kt, r)] if G == 0 and not self.regular else []
                    add(Item(("exp", G, t, kt, r), qe, qe + P["LAT"], qd[kt] - 3, deps))
                for h in range(2):
                    add(Item(("cvt", G, t, kt, h), qe, 0, qd[kt], [("exp", G, t, kt, 2 * h), ("exp", G, t, kt, 2 * h + 1)]))
            for i in range(7):
                j = i + 1
                deps = [("exp", G, t, j // 4, j % 4)]
                deps.append(("exp", G, t, 0, 0) if i == 0 else ("add", G, t, i - 1))
                add(Item(("add", G, t, i), -1, 0, qd[j // 4], deps))
            add(Item(("ladd", G, t), pvs, 0, self.en.get(G, BIG), [("add", G, t, 6)]))
        if P["check"] and (G > 0 or self.regular):
            add(Item(("chkA", G), -1, 0, pvs - 5, [("add", G, t, 6) for t in range(3)]))
            lastk = ("chkA", G)
            if len(tiles(G, wp)) == 4:
                add(Item(("chkB", G), -1, 0, pvs - 4, [lastk, ("add", G, 3, 6)]))
                lastk = ("chkB", G)
            add(Item(("chkC", G), -1, 0, pvs - 3, [lastk]))
        out = []
        for k, it in items.items():
            if only is not None and k not in only:
                continue
            if skip is not None and k in skip:
                continue
            out.append(it)
        return out

    def mem_items(self, e):
        items = []
        st, en = self.st[e], self.en[e]
        L = P["LDSLAT"]
        last = NG - 1
        st0 = st
        if self.has_sync(e):
            items.append(Item(("crd", e), st, st + 1, st + 2))
            items.append(Item(("ccmp", e), st + 3, st + P["BR"] - 3, st + P["BR"] - 2, [("crd", e)]))
            st = st + P["BR"]
        if self.has_arr(e):
            L = P["ARR"] + 1
        nrd = len(items)
        if e >= 0:
            for dt in range(12):
                if e == last and not self.regular:
                    early = max(self.st[e - 1] + MIDBAR + 1, self.pvd[(e - 1, dt + 4)]) if dt < 8 else self.pvd[(e, dt - 8)]
                else:
                    early = st if dt < 8 else self.pvd[(e, dt - 8)]
                for hf in range(2):
                    items.append(Item(("vrd", e, dt, hf), early, 0, max(early, min(self.pvu[(e, dt)] - 1 - P["LDSLAT"], en - L))))
        G = e + 2
        if self.regular or G <= last:
            for kt in range(2):
                for s in range(6):
                    early = max(self.kfl[(G - 1, kt, s)], st)
                    items.append(Item(("krd", G, kt, s), early, 0, max(early, en - L - P["kst"] * (11 - 6 * kt - s))))
        if self.has_arr(e):
            items.append(Item(("arr", e), st, en - P["ARR"] - 2, en - P["ARR"], [it.key for it in items[nrd:]]))
        dm = []
        if e >= 0 and not self.final and (self.regular or e < last):
            moved = e == 0 and not self.regular and not self.startup and P["early4"]
            if not moved:
                dm += [("dmaV", e + 3, cb) for cb in range(3)]
            if e == 0 and not self.regular and not moved:
                dm += [("dmaK", 4, cb) for cb in range(3)]
            dm += [("dmaK", e + 5, cb) for cb in range(3)]
        prev = None
        for j, k in enumerate(dm):
            sp = P["dsp"] * 6 // max(len(dm), 6)
            it = Item(k, st + 1, st + 1 + sp * j, min(st + 4 + sp * j, en), [prev] if prev else [])
            items.append(it)
            prev = k
        if e == last and not self.regular and not self.final:
            pv = self.pvs[e]
            direct = [2, 3] if P["qst"] else [0, 1, 2, 3]
            if P["qst"]:
                for j in range(2):
                    items.append(Item(("qra", j), pv, 0, pv))
                for t in range(2):
                    for s in range(6):
                        items.append(Item(("qrd", t, s), pv, 0, en - 4, [("qra", s % 2)]))
            self.qleft = []
            n = 0
            for t in direct:
                items.append(Item(("qadd", t), pv, 0, pv + 1))
                for s in range(6):
                    at = pv + 2 + n * P["qlsp"]
                    if at <= en:
                        items.append(Item(("qld", t, s), pv, at, min(at + 2, en), [("qadd", t)]))
                    else:
                        self.qleft.append(("qld", t, s))
                    n += 1
        if e == -1:
            for t in range(4):
                qe = self.qe[(0, t, 1)]
                dead = self.qs.get((1, t, 0), self.qs.get((2, t, 0), en + 1)) - 1
                dead = min(dead, self.en[0])
                for i in range(10):
                    items.append(Item(("mx", t, i), qe, qe + P["LAT"], dead - 8, [("mx", t, i - 1)] if i else []))
                for r in range(4):
                    items.append(Item(("ci", t, r), qe, 0, dead - 1, [("mx", t, 9)]))
                if t in tiles(0, self.wp):
                    for kt in range(2):
                        for r in range(4):
                            items.append(Item(("sub", t, kt, r), qe, 0, dead - 6, [("mx", t, 9)]))
        return items

    def schedule(self, items):
        byk = {it.key: it for it in items}
        for i, it in enumerate(items):
            it.seq = i
            it.deps = [byk[d] for d in it.deps if d in byk]
        gaps = [[] for _ in range(self.n)]
        pending = list(items)
        self.over = 0
        lastdma = -10
        lastb128 = -10
        big_slot = [self.mf[g][1] is None and self.startup for g in range(self.n)]

        def ready(it, g, soft=True):
            if (it.soft if (soft and not big_slot[g]) else it.hard) > g:
                return False
            for d in it.deps:
                if d.placed is None:
                    return False
                if big_slot[g]:
                    continue
                if d.placed == g and not (d.cls == "valu" and it.cls in ("valu", "exp")) and soft:
                    return False
                if (it.key[0] == "xp" or (it.key[0] == "mx" and it.key[2] in (5, 8))) and d.placed > g - 2 and soft:
                    return False
            return True

        for g in range(self.n):
            cap = 10 ** 6 if big_slot[g] else 8
            nl = 0

            def put(it):
                nonlocal cap, nl, lastdma, lastb128
                it.placed = g
                if it.cls in ("lds", "dma") and any(d.placed == g and (d.cls in ("valu", "exp") or d.key in LATE) for d in it.deps):
                    LATE.add(it.key)
                gaps[g].append(it)
                pending.remove(it)
                cap -= it.cost
                if it.cls == "lds":
                    nl += 1
                    if it.key[0] in ("krd", "qrd"):
                        lastb128 = g
                if it.key[0] in ("dmaK", "dmaV"):
                    lastdma = g

            def force(it):
                for d in it.deps:
                    if d.placed is None:
                        force(d)
                assert it.hard <= g, (it.key, it.hard, g)
                put(it)

            def fits(it, pair=False):
                if it.cost > cap:
                    return False
                if it.cls == "lds":
                    big = it.key[0] in ("krd", "qrd")
                    if nl >= 1 and (big or lastb128 == g or not pair):
                        return False
                    if big and lastb128 == g - 1:
                        return False
                if it.key[0] in ("dmaK", "dmaV") and lastdma >= g - 1:
                    return False
                return True

            for it in sorted([x for x in pending if x.dead <= g], key=lambda x: (x.dead, x.seq)):
                if it.placed is None:
                    force(it)
            while cap > 0:
                c = sorted([x for x in pending if ready(x, g) and fits(x)], key=lambda x: (x.dead, x.seq))
                if not c:
                    c = sorted([x for x in pending if ready(x, g) and fits(x, True)], key=lambda x: (x.dead, x.seq))
                    if not c:
                        break
                top = c[0]
                if cap == 8 and top.cost == 4:
                    lds = [x for x in c if x.cls == "lds"]
                    val = [x for x in c if x.cls == "valu"]
                    big = [x for x in c if x.cost == 8]
                    if top.cls == "lds":
                        haspartner = bool(val)
                    else:
                        haspartner = bool(lds) or len(val) > 1 or any(top in x.deps and x.cls == "valu" and all(d is top or d.placed is not None for d in x.deps) for x in pending)
                    if not haspartner and big and top.dead > g + 3:
                        put(big[0])
                        continue
                    put(top)
                    if top.cls == "valu" and lds and fits(lds[0]):
                        put(lds[0])
                    continue
                put(top)
            if cap < 0 and self.mf[g][1] is not None:
                self.over += -cap
        self.idle = sum(max(0, 8 - sum(it.cost for it in gaps[g])) for g in range(self.n) if self.mf[g][1] is not None)
        if P["verbose"] > 2 and not self.regular:
            for g in range(self.n):
                print(g, self.mf[g], [it.key for it in gaps[g]], file=sys.stderr)
        self.left = pending
        self.gaps = gaps
        return gaps


def mf_inst(key, wp, regular=False):
    if key[0] == "qk":
        _, G, t, kt, s = key
        d = vS[t][kt]
        c = d if s else (0 if (G == 0 and not regular) else vCI[t])
        return mfma(d, aKF[kt][s], vQ[t][s], c)
    _, G, t, dt = key
    first = (G == 0) if t < 3 else (G == wp)
    d = aO[t][dt]
    if P["fakepair"] == 1 and not first:
        d = aO[t][(dt & ~1) + (G & 1)]
        nt = len(tiles(G, wp))
        return mfma(d, vf(G, dt), vP[buf(G, wp)][(t + dt) % nt], d)
    return mfma(d, vf(G, dt), vP[buf(G, wp)][t], 0 if first else d)


def relkey(key, e):
    if key[0] in ("qadd", "qld", "mx", "ci", "sub", "qra", "qrd"):
        return key
    return (key[0], key[1] - e) + key[2:]


def abskey(key, e):
    return (key[0], key[1] + e) + key[2:]


def steady_template(wp):
    R = Region(wp, 2, 21, regular=True)
    items = []
    for G in range(3, 23):
        items += R.sm_items(G)
    for e in range(2, 22):
        items += R.mem_items(e)
    gaps = R.schedule(items)
    tm = {}
    for e in range(8, 18):
        cur = [[relkey(it.key, e) for it in gaps[g]] for g in range(R.st[e], R.en[e] + 1)]
        if e % 2 in tm:
            assert tm[e % 2] == cur, f"template not periodic at step {e}"
        tm[e % 2] = cur
    if P["verbose"]:
        for par in (0, 1):
            use = sum(CLS[k[0]][1] for g in tm[par] for k in g)
            ov = sum(max(0, sum(CLS[k[0]][1] for k in g) - 8) for g in tm[par])
            print(f"wp{wp} step parity {par}: fill {use}/{8 * len(tm[par])} overflow {ov}", file=sys.stderr)
            if P["verbose"] > 1:
                for i, g in enumerate(tm[par]):
                    print(i, g, file=sys.stderr)
    return tm


class StepCode:
    def __init__(self, wp):
        self.wp = wp
        self.sites = []
        self.site_ph = {}
        self.ph = 0

    def emit(self, mf, gapkeys, e, tagname, chk, sync, end_need, arr_need=None, extra=(), midbar=None, payload=None):
        wp = self.wp
        G = []
        if not P["check"]:
            chk = None
        for i, mk in enumerate(mf):
            g = dict(mf=mf_inst(mk, wp) if mk else None, wait=waitsite(), salu=[], mem=[], val=[], keys=gapkeys[i], fix=0)
            g["wait"].note = (tagname, i)
            if (tagname, i) in ACTIVE:
                g["fix"] += 1
            if i in (chk, sync):
                g["fix"] += 1
            for k in gapkeys[i]:
                cls = CLS[k[0]][0]
                (g["mem"] if cls in ("lds", "dma") and k not in LATE else g["val"]).append((k, item_insts(k, wp, e)))
                if k[0] == "arr":
                    g["wait"].need = dict(vm=arr_need)
            G.append(g)

        def room(g):
            used = sum(CLS[k[0]][1] for k in g["keys"])
            return 1 + max(0, 8 - used) // 4 - g["fix"] - len(g["salu"])

        def place(lo, hi, ins, latest=False):
            hi = min(hi, len(G) - 1)
            r = list(range(lo, hi + 1))
            if latest:
                r.reverse()
            c = [j for j in r if room(G[j]) >= len(ins)] or [r[0]]
            G[c[0]]["salu"] += ins
            return c[0]

        DM = ("dmaK", "dmaV", "dmaQ")
        late = []
        if sync is not None:
            cg = max(i for i, g in enumerate(G[:sync]) if any(k[0] in ("ccmp", "chkC") for k in g["keys"]))
            assert cg + 1 <= sync - 1
            if chk == sync:
                place(cg + 1, sync - 1, [Inst(f"s_or_b64 vcc, vcc, {sCm}", "salu", rd=sCm.regs() + ["vcc"], wr=["vcc"])], latest=True)
            late.append((sync + 1, len(G) - 1, [salu("s_add_u32", sTgt, sTgt, 4)]))
        prevd = -1
        for i, g in enumerate(G):
            newmem = []
            for k, ins in g["mem"]:
                if k[0] in DM:
                    if prevd + 1 <= i - 1:
                        place(prevd + 1, i - 1, [m0_for(k)], latest=True)
                    else:
                        newmem.append((None, [m0_for(k)]))
                    prevd = i
                    newmem.append((k, ins))
                    if k[2] == 2 and k[0] != "dmaQ":
                        so = sKoff if k[0] == "dmaK" else sVoff
                        upd = salu("s_add_u32", so, so, GRP)
                        nxt = [j for j in range(i + 1, len(G)) if any(kk and kk[0] == k[0] for kk, _ in G[j]["mem"])]
                        lim = nxt[0] if nxt else len(G) - 1
                        late.append((i + 1, lim, [upd]))
                else:
                    newmem.append((k, ins))
            g["mem"] = newmem
        for lo, hi, ins in late:
            place(lo, hi, ins)
        for lo, hi, groups in extra:
            for ins in groups:
                lo = place(lo, hi, ins)
        self.over = getattr(self, "over", 0) + sum(max(0, -room(g)) for g in G if g["mf"] is not None and 2 <= e <= 5)
        out = []
        for i, g in enumerate(G):
            if g["mf"] is not None:
                out.append(g["mf"])
            out.append(g["wait"])
            if g["mf"] is not None and i in (chk, sync):
                out += self.site(e, tagname, G[:i], i == chk, i == sync)
            out += g["salu"]
            for _, ins in g["mem"]:
                out += ins
            for _, ins in g["val"]:
                out += ins
            if g["mf"] is None:
                if i == chk:
                    out.append(raw("s_nop 4"))
                    out += self.site(e, tagname, G[:i + 1], True, False)
                if payload:
                    out += payload.pop(0)
                    out.append(waitsite())
                else:
                    out.append(waitsite(dict(vm=[("Q", -e + 4 * j) for j in range(7)])))
            if midbar is not None and i == MIDBAR:
                out.append(waitsite(dict(vm=midbar)))
                out.append(barrier())
        if end_need is not None:
            out.append(waitsite(dict(lgkm0=True, vm=end_need)))
            out.append(barrier() if not (P["nobar"] and 2 <= e <= 5) else raw("s_nop 0"))
        return out

    def site(self, e, tagname, done_gaps, chk, sync):
        replay = [k for g in done_gaps for k in g["keys"] if k[0] in ("exp", "add", "cvt") and k[1] == e + 1]
        lab = f"L_{tagname}{'c' if chk else ''}{'s' if sync else ''}"
        self.sites.append((lab, e, replay, chk, sync))
        self.site_ph[lab] = self.ph
        if sync and not chk:
            return [raw(f"s_cmp_lg_u64 {sCm}, 0", kind="salu", rd=sCm.regs()), branch("s_cbranch_scc1", f"{lab}_rare"), label(f"{lab}_back")]
        return [branch("s_cbranch_vccnz", f"{lab}_rare"), label(f"{lab}_back")]


def stamp(idx):
    if not P["stamp"]:
        return []
    if P["stamp"] == 3:
        return [raw("s_memrealtime s[68:69]"), raw("s_waitcnt lgkmcnt(0)"), salu("s_sub_u32", S(64), S(68), S(72)),
                valu("v_mov_b32", vSt0, S(64)), valu("v_mov_b32", vSt1, S(66)), bstore(vSt0, vSt1, sWs, 0, 4 * idx), raw("s_nop 1")]
    if P["stamp"] == 2:
        o = [raw("s_memrealtime s[68:69]"), raw("s_waitcnt lgkmcnt(0)"), salu("s_sub_u32", S(64), S(68), S(72)),
             valu("v_mov_b32", vSt0, S(64)), valu("v_mov_b32", vSt1, S(66)),
             raw("s_mov_b64 exec, 1"),
             Inst(f"buffer_atomic_umax {vSt0}, {vSt1}, {sWs}, 0 offen offset:{4 * idx}", "vst", rd=vSt0.regs() + vSt1.regs())]
        if idx == 5:
            o += [raw("s_nop 1"), valu("v_mov_b32", vSt0, S(68)), valu("v_mov_b32", vSt1, 0),
                  Inst(f"buffer_atomic_umax {vSt0}, {vSt1}, {sWs}, 0 offen offset:48", "vst", rd=vSt0.regs() + vSt1.regs()),
                  raw("s_nop 1"), salu("s_not_b32", S(64), S(72)), valu("v_mov_b32", vSt0, S(64)),
                  Inst(f"buffer_atomic_umax {vSt0}, {vSt1}, {sWs}, 0 offen offset:52", "vst", rd=vSt0.regs() + vSt1.regs())]
        o += [raw("s_mov_b64 exec, -1"), raw("s_nop 4")]
        return o
    return [raw(f"s_memtime {sStamp}"), raw("s_memrealtime s[68:69]"), raw("s_waitcnt lgkmcnt(0)"),
            valu("v_mov_b32", vSt0, S(64)), valu("v_mov_b32", vSt1, S(66)),
            bstore(vSt0, vSt1, sWs, 0, 4 * idx), raw("s_nop 1"),
            valu("v_mov_b32", vSt0, S(68)), bstore(vSt0, vSt1, sWs, 0, 4 * idx + 32), raw("s_nop 1")]


def q_chunk(t, s):
    out = [waitsite()]
    q = vQ[t][s]
    tb = 152
    for r in range(4):
        out.append(valu("v_lshlrev_b32", V(tb + 2 * r), 16, q.sub(r)))
        out.append(valu("v_and_b32", V(tb + 2 * r + 1), "0xffff0000", q.sub(r)))
    for r in range(4):
        pr = V(tb + 2 * r, 2)
        out.append(Inst(f"v_pk_mul_f32 {pr}, {pr}, {S(42, 2)}", "valu", rd=pr.regs() + ["s42", "s43"], wr=pr.regs()))
    for r in range(4):
        out.append(valu("v_cvt_pk_bf16_f32", q.sub(r), V(tb + 2 * r), V(tb + 2 * r + 1)))
    return out


def dma_piece(kind, G, cb, e=0):
    k = (kind, G, cb)
    r = [m0_for(k)] + item_insts(k, 0, e)
    if cb == 2:
        so = sKoff if kind == "dmaK" else sVoff
        r.append(salu("s_add_u32", so, so, GRP))
    return r


def lane_reduce(x, tmp, op):
    return [valu("v_mov_b32", tmp, x), perm("v_permlane32_swap_b32", x, tmp), valu(op, x, x, tmp),
            valu("v_mov_b32", tmp, x), perm("v_permlane16_swap_b32", x, tmp), valu(op, x, x, tmp)]


E_INV = [vT[16], vT[18], vT[20]]
E_XA, E_XB, E_MA, E_MB = vT[12], vT[13], vT[17], vT[19]
E_SW, E_SR, E_GO = vT[4], vT[6], vT[7]


def epi_items(T, wp):
    e = NG - 1
    pv, en = T.pvs[e], T.en[e]
    items = []
    tag = f"{wp}{int(T.final)}"

    def add(kind, name, fac, deps=(), early=pv, dead=en):
        k = (kind, tag, name)
        XREG[k] = fac
        items.append(Item(k, early, 0, dead, list(deps)))
        return k

    for t in (3, 0, 1, 2):
        x, tmp = vL[t], vT[8 + t]
        p = [("ladd", e, t)]
        d0 = en - 12 if t == 3 else en
        for i, (kind, fac) in enumerate([
                ("xv", lambda x=x, tmp=tmp: [valu("v_mov_b32", tmp, x)]),
                ("xp", lambda x=x, tmp=tmp: [perm("v_permlane32_swap_b32", x, tmp)]),
                ("xv", lambda x=x, tmp=tmp: [valu("v_add_f32", x, x, tmp)]),
                ("xv", lambda x=x, tmp=tmp: [valu("v_mov_b32", tmp, x)]),
                ("xp", lambda x=x, tmp=tmp: [perm("v_permlane16_swap_b32", x, tmp)]),
                ("xv", lambda x=x, tmp=tmp: [valu("v_add_f32", x, x, tmp)])]):
            p = [add(kind, f"red{t}_{i}", fac, p, dead=d0)]
        if t < 3:
            add("xt", f"rcp{t}", lambda t=t: [trans("v_rcp_f32", E_INV[t], vL[t])], p)
        else:
            m1 = add("xv", "ml1", lambda: [valu("v_mov_b32", vT[15], vL[3])], p, dead=d0)
    m0 = add("xv", "ml0", lambda: [valu("v_mov_b32", vT[14], vCI[3].sub(0))])
    xa = add("xv", "xa", lambda: [valu("v_lshl_add_u32", E_XA, vLane, 4, sT[4])], dead=pv + 4)
    add("xv", "xb", lambda: [valu("v_lshl_add_u32", E_XB, vLane, 4, sT[5])])
    ma = add("xv", "ma", lambda: [valu("v_lshl_add_u32", E_MA, vLane, 3, sT[4])])
    add("xv", "mb", lambda: [valu("v_lshl_add_u32", E_MB, vLane, 3, sT[5])])
    qrd = [("qrd", t, s) for t in range(2) for s in range(6)]
    for j, dt in enumerate(range(6 * (1 - wp), 6 * (1 - wp) + 6)):
        early = min(T.pvd[(e, dt)] + 3, en) if 3 in tiles(e, wp) else pv + 3
        add("xw", f"xw{j}", lambda j=j, dt=dt: [dsw("ds_write_b128", E_XA, aO[3][dt], 1024 * j)], [xa] + qrd, early=early)
    add("xw", "xwm", lambda: [dsw("ds_write_b64", E_MA, V(vT[14].b, 2), 6144)], [m0, m1, ma] + qrd)
    ta, tb = vT[21], vT[5]
    p = []
    if P["fdirect" if T.final else "adirect"]:
        adr = [lambda: [valu("v_add_u32", E_SW, sRowOwn, vOO)], lambda: [valu("v_add_u32", E_SR, 6144, E_SW)],
               lambda: [valu("v_add_u32", E_GO, 6144, E_SR)], lambda: [valu("v_add_u32", vT[5], sRowSh, vOO)]]
    else:
        adr = [
            lambda: [valu("v_and_b32", ta, 15, vLane)], lambda: [valu("v_lshlrev_b32", ta, 4, ta)],
            lambda: [valu("v_add3_u32", E_SW, vOO, ta, sT[6])],
            lambda: [valu("v_lshrrev_b32", ta, 3, vLane)], lambda: [valu("v_and_b32", tb, 7, vLane)],
            lambda: [valu("v_lshlrev_b32", tb, 4, tb)],
            lambda: [valu("v_mul_u32_u24", E_SR, 400, ta)], lambda: [valu("v_add3_u32", E_SR, E_SR, tb, sT[6])],
            lambda: [valu("v_mul_u32_u24", E_GO, ROWB, ta)], lambda: [valu("v_add3_u32", E_GO, E_GO, tb, sRowOwn)],
            lambda: [valu("v_add_u32", vT[5], sRowSh, vOO)]]
    for i, fac in enumerate(adr):
        p = [add("xv", f"adr{i}", fac, p)]
    return items


def epilogue(wp, final):
    sw, sr, go, xb = E_SW, E_SR, E_GO, E_XB
    direct = P["fdirect" if final else "adirect"]
    om = mods("omod" if final else "omoda")
    park = P["park"] and not final
    assert not park or (P["early4"] and not direct)
    out = []
    out.append(waitsite(dict(lgkm0=True, vm=[] if final else [("K", 32), ("K", 33)])))
    out.append(barrier())
    X = [V(128 + 4 * j, 4) for j in range(6)]
    oml = V(vT[14].b, 2)
    out.append(dsr("ds_read_b64", oml, E_MB, 6144))
    for j in range(6):
        out.append(dsr("ds_read_b128", X[j], xb, 1024 * j))
    if not final:
        for kt in range(2):
            for s in range(6):
                out += item_insts(("krd", 0, kt, s), wp, 0)
        for G in (34, 35) if P["early4"] else (34,):
            for cb in range(3):
                out += dma_piece("dmaV", G, cb)
    pre = out

    def pack(src, k):
        d = V(96 + 4 * (k % (8 if direct else 2)), 4)
        o = [valu("v_cvt_pk_bf16_f32", d.sub(i), src[2 * i], src[2 * i + 1]) for i in range(4)]
        sw_ = [perm("v_permlane16_swap_b32", d.sub(0), d.sub(2)), perm("v_permlane16_swap_b32", d.sub(1), d.sub(3))]
        return o, sw_, d

    chunks = []
    k = 0
    tail = []
    RB = [V(104 + 4 * j, 4) for j in range(6)]

    def readback():
        if direct:
            return []
        return [dsr("ds_read_b128", RB[j], sr, 6400 + (j // 3) * 3200 + (j % 3) * 128) for j in range(6)]

    def store(j):
        if direct:
            return []
        o = [waitsite(), bstore(RB[j], go, sO, 0, (j // 3) * 3072 + (j % 3) * 128, mods=mods("omod" if final else "omoda"))]
        if j == 5:
            o.append(valu("v_add_u32", go, 6144, go))
        return o

    for t in range(3):
        inv = V(E_INV[t].b, 2)
        for p in range(6):
            c = []
            base = 64 + 8 * (k % 4)
            src = [V(base + i) for i in range(8)]
            for i in range(8):
                c.append(valu("v_accvgpr_read_b32", src[i], aO[t][2 * p + i // 4].sub(i % 4)))
            c += tail
            if t > 1 and p == 0:
                c += store(5)
            if p == 0 and t > 0 and not (park and t > 1):
                c += readback()
            if t > 0 and p > 0 and not (park and t > 1):
                c += store(p - 1)
            c.append("MEM")
            for i in range(4):
                pr = V(base + 2 * i, 2)
                c.append(Inst(f"v_pk_mul_f32 {pr}, {pr}, {inv} op_sel_hi:[1,0]", "valu", rd=pr.regs() + inv.regs()[:1], wr=pr.regs()))
            o, sw_, d = pack(src, k)
            c += o
            if direct:
                tail = sw_ + [bstore(d, (sw, sr, go)[t], sO, 0, 64 * p, mods=om)]
            else:
                tail = sw_ + [dsw("ds_write_b128", sw, d, 64 * p + (0 if (park and t == 1) else 6400))]
            if k == 1 and not final and P["early4"]:
                c += [waitsite(dict(lgkm0=True)), barrier()] + [i for cb in range(3) for i in dma_piece("dmaK", 36, cb)]
            chunks.append(c)
            k += 1
    if direct and final:
        chunks.insert(3, pre)
        pre = [waitsite()]
    c = [waitsite()]
    nm_own, nm_oth, l_oth = vCI[3].sub(0), vT[14], vT[15]
    M = vT[9]
    fo, fx = vT[8], vT[10]
    c.append(valu("v_min_f32", M, nm_own, nm_oth))
    c.append(valu("v_sub_f32", fo, M, nm_own))
    c.append(valu("v_sub_f32", fx, M, nm_oth))
    c += tail + ([] if park else store(5) + readback())
    tail = []
    c.append(trans("v_exp_f32", fo, fo))
    c.append(trans("v_exp_f32", fx, fx))
    c.append(valu("v_mul_f32", vT[11], vL[3], fo))
    c.append(valu("v_fma_f32", vT[11], l_oth, fx, vT[11]))
    c.append(trans("v_rcp_f32", vT[11], vT[11]))
    c.append(valu("v_mul_f32", fo, fo, vT[11]))
    c.append(valu("v_mul_f32", fx, fx, vT[11]))
    for p3 in range(3):
        p = 3 * wp + p3
        base = 64 + 8 * (k % 4)
        src = [V(base + i) for i in range(8)]
        for i in range(8):
            c.append(valu("v_accvgpr_read_b32", src[i], aO[3][2 * p + i // 4].sub(i % 4)))
        c += tail
        if not park:
            c += store(2 * p3) + store(2 * p3 + 1)
        fo2, fx2 = V(fo.b, 2), V(fx.b, 2)
        for i in range(4):
            pr = V(base + 2 * i, 2)
            c.append(Inst(f"v_pk_mul_f32 {pr}, {pr}, {fo2} op_sel_hi:[1,0]", "valu", rd=pr.regs() + fo.regs(), wr=pr.regs()))
        for i in range(4):
            pr = V(base + 2 * i, 2)
            xr = X[2 * p3 + i // 2].sub(2 * (i % 2), 2)
            c.append(Inst(f"v_pk_fma_f32 {pr}, {xr}, {fx2}, {pr} op_sel_hi:[1,0,1]", "valu", rd=pr.regs() + fx.regs() + xr.regs(), wr=pr.regs()))
        o, sw_, d = pack(src, k)
        c += o
        tail = sw_ + [bstore(d, vT[5], sO, 0, 64 * p, mods=mods("omod" if final else "omoda"))]
        chunks.append(c)
        c = []
        k += 1
    chunks.append(tail)
    return pre, chunks


def o_srd(ph):
    o = [salu("s_add_u32", sT[4], sT[8], ph),
         salu("s_mul_i32", sT[5], sT[4], HEADQ),
         salu("s_add_u32", S(24), S(10), sT[5]),
         salu("s_addc_u32", S(25), S(11), 0),
         salu("s_mov_b32", sRowOwn, sNRowOwn),
         salu("s_mov_b32", sRowSh, sNRowSh)]
    return o


def phase_setup():
    o = o_srd(0) + next_q_setup(1)
    o.append(salu("s_mov_b32", S(80), S(12)))
    o.append(salu("s_mov_b32", S(81), S(13)))
    o.append(salu("s_mov_b32", S(82), 0))
    o.append(salu("s_mov_b32", sQSo, sNRowOwn))
    o.append(salu("s_mov_b32", sQSm, sRg))
    o.append(salu("s_add_u32", S(96), sNRowOwn, 12288 + 9216))
    o.append(salu("s_and_b32", sT[4], sW, 1))
    o.append(salu("s_mul_i32", sT[4], sT[4], 3072))
    o.append(salu("s_add_u32", S(97), sNRowSh, sT[4]))
    o.append(salu("s_min_u32", S(97), S(97), HEADQ - 3072))
    return o


def phase1_setup():
    o = [salu("s_mov_b32", S(80), S(24)), salu("s_mov_b32", S(81), S(25)), salu("s_mov_b32", S(82), 0),
         salu("s_add_u32", sQSo, sRowOwn, 6144),
         salu("s_add_u32", sT[4], sRg, 256),
         valu("v_lshrrev_b32", vAux, 3, vLane), valu("v_lshlrev_b32", vAux, 4, vAux),
         valu("v_add3_u32", vAux, vAux, vPFo, sT[4])]
    return o + o_srd(1)


def next_q_setup(ph):
    o = []
    o.append(salu("s_xor_b32", sT[5], sT[9], ph))
    o.append(salu("s_mul_i32", sT[5], sT[5], 224 * ROWB))
    o.append(salu("s_mul_i32", sT[6], sW, 48 * ROWB))
    o.append(salu("s_add_u32", sNRowOwn, sT[5], sT[6]))
    o.append(salu("s_lshr_b32", sT[6], sW, 1))
    o.append(salu("s_mul_i32", sT[6], sT[6], 16 * ROWB))
    o.append(salu("s_add_u32", sT[6], sT[6], 192 * ROWB))
    o.append(salu("s_add_u32", sNRowSh, sT[5], sT[6]))
    o.append(salu("s_mov_b32", sT[0], sNRowOwn))
    o.append(salu("s_add_u32", sT[1], sNRowOwn, 6144))
    o.append(salu("s_add_u32", sT[2], sNRowOwn, 12288))
    o.append(salu("s_add_u32", sT[4], sT[8], ph))
    o.append(salu("s_mul_i32", sT[5], sT[4], HEADQ))
    o.append(salu("s_add_u32", S(12), S(4), sT[5]))
    o.append(salu("s_addc_u32", S(13), S(5), 0))
    return o


def prologue():
    o = []
    o.append(scmp("s_cmp_ge_u32", S(2), 256))
    o.append(branch("s_cbranch_scc1", "L_end"))
    o.append(raw("s_load_dwordx4 s[4:7], s[0:1], 0"))
    o.append(raw("s_load_dwordx4 s[8:11], s[0:1], 16"))
    if P["stamp"]:
        o.append(raw(f"s_load_dwordx2 s[60:61], s[0:1], {40 if P['stamp'] == 1 else 32}"))
        o.append(raw("s_memtime s[70:71]"))
        o.append(raw("s_memrealtime s[72:73]"))
    if P["cpf"]:
        o.append(raw("s_getpc_b64 s[98:99]", kind="salu", wr=["s98", "s99"]))
        o.append(label("L_pc"))
        o.append(salu("s_lshr_b32", sT[4], S(2), 3))
        o.append(salu("s_lshl_b32", sT[4], sT[4], 12))
        o.append(valu("v_lshrrev_b32", vT[16], 3, V(0)))
        o.append(valu("v_lshl_add_u32", vT[16], vT[16], 7, sT[4]))
        o.append(valu("v_min_u32", vT[16], "L_hot_end-L_pc-4", vT[16]))
        o.append(Inst(f"global_load_dword {vT[17]}, {vT[16]}, s[98:99]", "vmem", rd=vT[16].regs() + ["s98", "s99"], wr=vT[17].regs()))
    o.append(valu("v_lshrrev_b32", vT[0], 6, V(0)))
    o.append(valu("v_and_b32", vLane, 63, V(0)))
    o.append(rfl(sW, vT[0]))
    o.append(salu("s_lshr_b32", sT[4], S(2), 4))
    o.append(salu("s_and_b32", sT[5], S(2), 7))
    if P["pmap"] == 0:
        o.append(salu("s_lshl_b32", sT[4], sT[4], 3))
    else:
        o.append(salu("s_lshl_b32", sT[5], sT[5], 4))
    o.append(salu("s_add_u32", sT[4], sT[4], sT[5]))
    o.append(salu("s_lshl_b32", sT[8], sT[4], 1))
    o.append(salu("s_lshr_b32", sT[9], S(2), 3))
    o.append(salu("s_and_b32", sT[9], sT[9], 1))
    o.append(salu("s_mul_i32", sT[7], sT[4], 2 * HEADK))
    o.append(salu("s_mul_i32", sWb, sW, 3072))
    o.append(salu("s_mov_b32", sKoff, 0))
    l = vLane
    t0, t1, t2, t3 = vT[4], vT[5], vT[6], vT[7]
    o.append(valu("v_lshrrev_b32", t0, 3, V(0)))
    o.append(valu("v_mul_u32_u24", t1, ROWB, t0))
    o.append(valu("v_and_b32", t2, 7, l))
    o.append(valu("v_bfe_u32", t3, t0, 1, 3))
    o.append(valu("v_xor_b32", t3, t3, t2))
    o.append(valu("v_lshl_add_u32", vDK, t3, 4, t1))
    o.append(valu("v_bfe_u32", t3, t0, 1, 2))
    o.append(valu("v_lshlrev_b32", t3, 1, t3))
    o.append(valu("v_xor_b32", t3, t3, t2))
    o.append(valu("v_lshl_add_u32", vDV, t3, 4, t1))
    o.append(valu("v_and_b32", t0, 15, l))
    o.append(valu("v_lshrrev_b32", t1, 4, l))
    o.append(valu("v_mul_u32_u24", t2, ROWB, t0))
    o.append(valu("v_lshl_add_u32", vQO, t1, 4, t2))
    nq = next_q_setup(0)
    o += nq[:-2]
    for t in range(4):
        o += item_insts(("qadd", t), 0, 0)
    o.append(salu("s_mov_b32", S(18), 2 * HEADK))
    o.append(salu("s_mov_b32", S(19), "0x20000"))
    o.append(salu("s_mov_b32", S(14), HEADQ))
    o.append(salu("s_mov_b32", S(15), "0x20000"))
    o.append(raw("s_waitcnt lgkmcnt(0)"))
    if P["stamp"] == 1:
        o.append(raw("s_memrealtime s[74:75]"))
    o.append(salu("s_add_u32", S(16), S(6), sT[7]))
    o.append(salu("s_addc_u32", S(17), S(7), 0))
    o += nq[-2:]

    def dma_group(kind, G):
        return [i for cb in range(3) for i in dma_piece(kind, G, cb)]

    o += dma_group("dmaK", 0)
    for i in range(P["qpre"]):
        o += item_insts(("qld", i // 6, i % 6), 0, 0)
        if i == 5:
            o += dma_group("dmaK", 1)
    o.append(salu("s_mov_b32", sVoff, 0))
    c = f32bits(math.log2(math.e) / math.sqrt(192.0))
    o.append(salu("s_mov_b32", S(42), hex(c)))
    o.append(salu("s_mov_b32", S(43), hex(c)))
    o.append(salu("s_mov_b32", sTh, hex(f32bits(2.0 ** P["THR"]))))
    o.append(salu("s_add_u32", S(20), S(8), sT[7]))
    o.append(salu("s_addc_u32", S(21), S(9), 0))
    o.append(salu("s_mov_b32", S(22), 2 * HEADK))
    o.append(salu("s_mov_b32", S(23), "0x20000"))
    for r in (87, 91, 92):
        o.append(salu("s_mov_b32", S(r), 0))
    o.append(salu("s_mov_b32", S(26), HEADQ))
    o.append(salu("s_mov_b32", S(27), "0x20000"))
    if P["stamp"]:
        o.append(salu("s_mov_b32", S(62), "0x100000" if P["stamp"] == 1 else 256))
        o.append(salu("s_mov_b32", S(63), "0x20000"))
        o.append(salu("s_lshl_b32", S(66), S(2), 2))
        o.append(salu("s_add_u32", S(66), S(66), sW))
        o.append(salu("s_lshl_b32", S(66), S(66), 8))
        if P["stamp"] == 3:
            o.append(scmp("s_cmp_eq_u32", S(66), P["stwave"] * 256))
            o.append(salu("s_cselect_b32", S(62), 256, 0))
        if P["stamp"] >= 2:
            o.append(salu("s_mov_b32", S(66), 0))
    o.append(salu("s_mov_b32", S(83), "0x20000"))
    o.append(salu("s_lshl_b32", sRg, sW, 14))
    o.append(salu("s_add_u32", sRg, sRg, RBASE))
    t0, t1, t2, t3 = vT[4], vT[5], vT[6], vT[7]
    o.append(valu("v_and_b32", t0, 15, l))
    o.append(valu("v_lshrrev_b32", t1, 4, l))
    o.append(valu("v_mul_u32_u24", t2, ROWB, t0))
    o.append(valu("v_and_b32", t3, 1, t1))
    o.append(valu("v_lshl_add_u32", t2, t3, 5, t2))
    o.append(valu("v_lshrrev_b32", t3, 1, t1))
    o.append(valu("v_lshl_add_u32", vOO, t3, 4, t2))
    o.append(valu("v_lshrrev_b32", t2, 3, l))
    o.append(valu("v_mul_u32_u24", t2, ROWB, t2))
    o.append(valu("v_and_b32", t3, 7, l))
    o.append(valu("v_xor_b32", t3, t3, t1))
    o.append(valu("v_lshl_add_u32", vPFo, t3, 4, t2))
    o.append(valu("v_lshrrev_b32", t2, 3, t0))
    o.append(valu("v_mul_u32_u24", t2, 3072, t2))
    o.append(valu("v_and_b32", t3, 7, t0))
    o.append(valu("v_lshl_add_u32", t2, t3, 7, t2))
    o.append(valu("v_lshrrev_b32", t3, 1, t0))
    o.append(valu("v_xor_b32", t3, t3, t1))
    o.append(valu("v_lshl_add_u32", vKA[0], t3, 4, t2))
    if KBASE:
        o.append(valu("v_add_u32", vKA[0], KBASE, vKA[0]))
    o.append(valu("v_xor_b32", vKA[1], 64, vKA[0]))
    o.append(valu("v_lshrrev_b32", t2, 2, t0))
    o.append(valu("v_and_b32", t3, 1, t1))
    o.append(valu("v_lshl_add_u32", t2, t3, 2, t2))
    o.append(valu("v_lshrrev_b32", t3, 1, t1))
    o.append(valu("v_mul_u32_u24", t3, 3072, t3))
    o.append(valu("v_lshl_add_u32", t3, t2, 7, t3))
    o.append(valu("v_and_b32", t0, 3, l))
    o.append(valu("v_lshl_add_u32", t3, t0, 3, t3))
    o.append(valu("v_add_u32", t3, VBASE, t3))
    o.append(valu("v_lshrrev_b32", t2, 1, t2))
    o.append(valu("v_lshl_add_u32", vVA[0], t2, 5, t3))
    for j in range(1, 4):
        o.append(valu("v_xor_b32", vVA[j], 32 * j, vVA[0]))
    if P["stamp"] == 1:
        o += [valu("v_mov_b32", vSt0, S(70)), valu("v_mov_b32", vSt1, S(66)), bstore(vSt0, vSt1, sWs, 0, 4 * 6), raw("s_nop 1"),
              valu("v_mov_b32", vSt0, S(72)), bstore(vSt0, vSt1, sWs, 0, 4 * 6 + 32), raw("s_nop 1")]
    o.append(valu("v_lshlrev_b32", vAux, 7, l))
    o.append(Inst(f"v_cmp_gt_u32 vcc, 24, {l}", "valu", rd=l.regs(), wr=["vcc"]))
    o.append(valu("v_mov_b32", t0, "0x40000000"))
    o.append(Inst(f"v_cndmask_b32 {vAux}, {t0}, {vAux}, vcc", "valu", rd=t0.regs() + vAux.regs() + ["vcc"], wr=vAux.regs()))
    o += cnt_addr()
    o.append(valu("v_mov_b32", vCr, 0))
    o.append(dsw("ds_write_b32", vCa, vCr))
    o.append(salu("s_mov_b32", sTgt, 4))
    o.append(salu("s_and_b32", sT[4], sW, 1))
    o.append(scmp("s_cmp_eq_u32", sT[4], 1))
    o.append(branch("s_cbranch_scc1", "L_start_1"))
    return o


def cnt_addr():
    return [salu("s_mov_b32", sT[12], CNT_ADDR), valu("v_lshl_add_u32", vCa, vLane, 2, sT[12])]


def rare_common(wp, typ):
    Gp = wp if typ == 0 else 1 - wp
    o = [label(f"L_rare_{wp}_{typ}"), raw("s_nop 15"), raw("s_nop 15")]
    kt_ = [V(vT[0].b, 4), V(vT[4].b, 4)] + [A(240 + 4 * s, 4) for s in range(4)]
    ka = V(0)

    def recompute(G, soff, cfun):
        r = []
        for kt in range(2):
            r.append(valu("v_add_u32", ka, 6144 * kt, vQO))
            for s in range(6):
                r.append(bload(kt_[s], ka, sK, soff, 64 * s))
            r.append(raw("s_waitcnt vmcnt(0)"))
            r.append(waitsite(dict(vm0=True)))
            for t in tiles(G, wp):
                for s in range(6):
                    r.append(mfma(vS[t][kt], kt_[s], vQ[t][s], vS[t][kt] if s else cfun(t)))
            r.append(raw("s_nop 15"))
        return r

    o += recompute(Gp, sT[11], lambda t: 0)
    m, m2, f = vT[0], vT[1], vT[2]
    for t in tiles(Gp, wp):
        s0, s1 = vS[t]
        o.append(valu("v_max3_f32", m, s0.sub(0), s0.sub(1), s0.sub(2)))
        o.append(valu("v_max3_f32", m, m, s0.sub(3), s1.sub(0)))
        o.append(valu("v_max3_f32", m, m, s1.sub(1), s1.sub(2)))
        o.append(valu("v_max_f32", m, m, s1.sub(3)))
        o += lane_reduce(m, m2, "v_max_f32")
        o.append(valu("v_sub_f32", m2, 0, vCI[t].sub(0)))
        o.append(valu("v_max_f32", m, m, m2))
        o.append(valu("v_sub_f32", f, m2, m))
        o.append(trans("v_exp_f32", f, f))
        for r in range(4):
            o.append(valu("v_sub_f32", vCI[t].sub(r), 0, m))
        o.append(valu("v_mul_f32", vL[t], vL[t], f))
        for dt in range(12):
            for r in range(4):
                o.append(valu("v_accvgpr_read_b32", vT[4 + r], aO[t][dt].sub(r)))
            for r in range(4):
                o.append(valu("v_mul_f32", vT[4 + r], vT[4 + r], f))
            for r in range(4):
                o.append(valu("v_accvgpr_write_b32", aO[t][dt].sub(r), vT[4 + r]))
        for kt in range(2):
            for r in range(4):
                x = vS[t][kt].sub(r)
                o.append(valu("v_sub_f32", x, x, m))
                o += item_insts(("exp", Gp, t, kt, r), wp, 0)
        for i in range(7):
            o += item_insts(("add", Gp, t, i), wp, 0)
        for kt in range(2):
            for h in range(2):
                o += item_insts(("cvt", Gp, t, kt, h), wp, 0)
    o.append(scmp("s_cmp_eq_u32", sT[10], 0))
    o.append(branch("s_cbranch_scc1", f"L_rare_{wp}_{typ}_ret"))
    o.append(salu("s_add_u32", sT[11], sT[11], GRP))
    o += recompute(Gp + 1, sT[11], lambda t: vCI[t])
    o.append(label(f"L_rare_{wp}_{typ}_ret"))
    return o


def build_phase(wp):
    tm = steady_template(wp)
    sc = StepCode(wp)
    segs = {}
    done2 = {abskey(k, 1) for g in tm[1 % 2] for k in g if k[0] in ("exp", "add", "cvt", "chkA", "chkB", "chkC") and k[1] == 1}

    def sched_head(startup):
        H = Region(wp, -1, 1, startup=startup)
        items = H.sm_items(0) + H.sm_items(1)
        g2 = H.sm_items(2, only=done2)
        for it in g2:
            it.dead = min(it.dead, H.n - 1)
        items += g2
        for e in (-1, 0, 1):
            items += H.mem_items(e)
        gaps = H.schedule(items)
        assert not H.left, [x.key for x in H.left]
        if P["verbose"]:
            print(f"wp{wp} head{int(startup)} overflow {H.over} idle {H.idle} of {8 * H.n}", file=sys.stderr)
        return H, gaps

    H, gaps = sched_head(False)
    NEED = [("V", 1), ("K", 3)]

    def do_emit(R, gk, e, tag, **kw):
        mf = [R.mf[i][1] for i in range(R.st[e], R.en[e] + 1)]
        chk = R.chk_gap(e) - R.st[e] if e > 0 else None
        sync = P["BR"] if R.has_sync(e) else None
        end = None if (R.has_arr(e) or e >= NG - 2) else NEED
        return sc.emit(mf, gk, e, tag, chk, sync, end, arr_need=NEED, **kw)

    def cut(R, gaps, e):
        return [[it.key for it in gaps[i]] for i in range(R.st[e], R.en[e] + 1)]

    sc.ph = 1
    for e in (-1, 0, 1):
        segs[e] = do_emit(H, cut(H, gaps, e), e, f"h{wp}_{e + 1}")
    R = Region(wp, 2, 5, regular=True)
    def build_loop(ph):
        sc.ph = ph
        gks = {e: [[abskey(k, e) for k in g] for g in tm[e % 2]] for e in range(2, 6)}
        extra = {e: [] for e in range(2, 6)}

        def used(g):
            return sum(CLS[k[0]][1] for k in g)

        def vm(g):
            return any(CLS[k[0]][0] == "dma" for k in g)

        def spots(after, cost, lds=False):
            r = []
            for e in range(2, 6):
                for i, g in enumerate(gks[e]):
                    if (e, i) <= after or not 0 < i < 82 or used(g) + cost > 8:
                        continue
                    if cost == 8 and (vm(gks[e][i - 1]) or vm(gks[e][i + 1])):
                        continue
                    if lds and any(CLS[k[0]][0] == "lds" for k in g):
                        continue
                    r.append((e, i))
            return r

        def put(pos, key):
            gks[pos[0]][pos[1]].append(key)
            return pos

        def spread(keys, after):
            pos = after
            for n, k in enumerate(keys):
                c = spots(pos, 8)
                pos = put(c[max(0, len(c) // (len(keys) - n + 1) - 1) if n else 0], k)
            return pos

        if ph == 0:
            setup = []
            if P["qst"]:
                setup += [[salu("s_and_b32", sT[13], sCnt, 4)], [salu("s_lshl_b32", sT[13], sT[13], 4)],
                          [salu("s_xor_b32", S(87), sT[13], 64)],
                          [salu("s_mul_i32", S(91), S(87), 48)], [salu("s_mul_i32", S(82), S(87), HEADQ // 64)]]
                keys = [("dmaQ", 0, cb) for cb in range(3)]
                if P["qpf"]:
                    keys.insert(0, ("pf",))
                    setup += [[salu("s_mul_i32", sT[13], sCnt, 3072)], [salu("s_sub_u32", sT[13], S(96), sT[13])],
                              [scmp("s_cmp_ge_u32", sCnt, 2), salu("s_cselect_b32", S(92), sT[13], S(97))]]
                qend = spread(keys, (2, 40))
                put(spots(qend, 4)[0], ("pfa",))
                extra[qend[0]].append((qend[1] + 1, 82, [[salu("s_add_u32", sQSo, sQSo, S(91))], [salu("s_add_u32", sQSm, sQSm, S(91))]]))
                extra[2].insert(0, (0, 39, setup))
        else:
            setup = []
            if P["park"]:
                setup += [[salu("s_add_u32", sT[13], sCnt, 1)], [salu("s_and_b32", sT[13], sT[13], 4)],
                          [salu("s_mul_i32", S(82), sT[13], HEADQ // 4)], [salu("s_mul_i32", S(91), sT[13], 800)],
                          [salu("s_mul_i32", S(87), sT[13], 768)]]
                pos = (2, 0)
                for j in range(3):
                    pos = put(spots(pos, 4, lds=True)[0], ("drd", j))
                put(spots((max(pos[0], 2), max(pos[1], 40)) if pos[0] == 2 else pos, 4)[0], ("dra",))
                first = (pos[0], pos[1] + 8) if pos[1] < 70 else (pos[0] + 1, 0)
                dend = spread([("dst", j) for j in range(3)], max(first, (2, 40)))
                extra[dend[0]].append((dend[1] + 1, 82, [[salu("s_add_u32", sQSo, sQSo, S(87))]]))
            extra[2].insert(0, (0, 39, setup))
        out = {e: do_emit(R, gks[e], e, f"b{wp}{ph}_{e}", extra=extra[e]) for e in range(2, 6)}
        out[5] = out[5] + [salu("s_sub_u32", sCnt, sCnt, 1), branch("s_cbranch_scc0", f"L_loop_{wp}{ph}")]
        return out

    loops = [build_loop(0), build_loop(1)]
    if P["verbose"]:
        print(f"wp{wp} loop salu overflow slots {sc.over}", file=sys.stderr)
    done30 = {abskey(k, 29) for g in tm[29 % 2] for k in g if k[1] == 1}
    for final in (False, True):
        sc.ph = int(final)
        T = Region(wp, 30, 31, final=final)
        items = T.sm_items(30, skip=done30) + T.sm_items(31)
        for e in (30, 31):
            items += T.mem_items(e)
        items += epi_items(T, wp)
        gaps = T.schedule(items)
        if not final:
            qleft = T.qleft
        assert not T.left, [x.key for x in T.left]
        if P["verbose"]:
            print(f"wp{wp} tail{int(final)} overflow {T.over} idle {T.idle} of {8 * T.n}", file=sys.stderr)
        for e in (30, 31):
            ex = [(20, 83, [[salu("s_mov_b32", sT[4], sRg)], [salu("s_xor_b32", sT[5], sRg, RW)], [salu("s_add_u32", sT[6], sRg, STGO)]])] if e == 30 else []
            segs[(e, final)] = do_emit(T, cut(T, gaps, e), e, f"t{wp}{int(final)}_{e}", midbar=[("V", 1)] if e == 30 else None, extra=ex)

    start = [label(f"L_start_{wp}")] + stamp(0)
    start += [waitsite(dict(lgkm0=True, vm=[("K", 0), ("K", 1)])), barrier()]
    if P["stamp"] == 1:
        start += [raw("s_memrealtime s[100:101]"), raw("s_waitcnt lgkmcnt(0)"),
                  valu("v_mov_b32", vSt0, S(74)), valu("v_mov_b32", vSt1, S(66)), bstore(vSt0, vSt1, sWs, 0, 4 * 7), raw("s_nop 1"),
                  valu("v_mov_b32", vSt0, S(100)), bstore(vSt0, vSt1, sWs, 0, 4 * 15), raw("s_nop 1")]
    for kt in range(2):
        for s in range(6):
            start += item_insts(("krd", 0, kt, s), wp, 0)
    rest = [(kind, G, cb) for kind, G in (("dmaV", 0), ("dmaK", 2), ("dmaV", 1), ("dmaK", 3), ("dmaV", 2)) for cb in range(3)]
    todo = [item_insts(("qld", i // 6, i % 6), 0, 0) for i in range(P["qpre"], 24)] + [dma_piece(*r, e=-1) for r in rest]
    pay = [[] for _ in range(4)]
    for i in range(24):
        pay[i // 6] += q_chunk(i // 6, i % 6)
        n = -(-len(todo) // (24 - i))
        for _ in range(n):
            pay[i // 6] += todo.pop(0)
    pay[3] += phase_setup() + stamp(1)
    HS, gapsS = sched_head(True)
    sc.ph = 0
    segS = {e: do_emit(HS, cut(HS, gapsS, e), e, f"s{wp}_{e + 1}", payload=pay if e == -1 else None) for e in (-1, 0, 1)}
    head = stamp(1) + [waitsite()]
    loop_in = [[salu("s_mov_b32", sCnt, 6)] + stamp(2) + [raw(".p2align 6", kind="label"), label(f"L_loop_{wp}{ph}")] for ph in range(2)]
    after_loop = [stamp(3), stamp(3)]
    pre, ch = epilogue(wp, False)
    epi_a = stamp(4) + pre
    qc = [q_chunk(i // 6, i % 6) for i in range(24)]
    if P["ilv"]:
        skip = 0 if P["qst"] else 4
        for i, c in enumerate(ch):
            mem = item_insts(qleft.pop(0), wp, 0) if (qleft and "MEM" in c) else []
            epi_a.append(waitsite())
            for x in c:
                epi_a += mem if x == "MEM" else [x]
            if i >= skip and qc:
                epi_a += qc.pop(0)
    assert not qleft
    epi_a += stamp(5)
    for c in qc:
        epi_a += c
    if P["stamp"]:
        epi_a.append(salu("s_add_u32", S(66), S(66), 64 if P["stamp"] == 1 else 24))
    epi_a += phase1_setup() + stamp(0)
    pre, ch = epilogue(wp, True)
    epi_b = stamp(4) + pre + [i for c in ch for i in c if i != "MEM"] + stamp(5) + [raw("s_endpgm")]

    def parts(ph, trips):
        b = 32 * ph
        d = [(i, b) for i in (start if ph == 0 else head)]
        for e in (-1, 0, 1):
            d += [(i, b + e) for i in (segs if ph else segS)[e]]
        d += [(i, b) for i in loop_in[ph]]
        for it in range(trips):
            for e in range(2, 6):
                d += [(i, b + e + 4 * it) for i in loops[ph][e]]
        d += [(i, b) for i in after_loop[ph]]
        for e in (30, 31):
            d += [(i, b + e) for i in segs[(e, ph == 1)]]
        d += [(i, b) for i in (epi_b if ph else epi_a)]
        return d

    static = [i for i, _ in parts(0, 1) + parts(1, 1)]

    def dyn(ph):
        return parts(ph, 7)

    rare = []
    def spin(lab):
        return [salu("s_mov_b32", sT[14], 0), label(f"{lab}_spin"), raw(f"ds_read_b32 {vCr}, {vCa}"), salu("s_add_u32", sT[14], sT[14], 1),
                raw("s_waitcnt lgkmcnt(0)"), raw(f"v_cmp_gt_u32 {sCm}, {sTgt}, {vCr}"), scmp("s_cmp_gt_u32", sT[14], "0x40000"),
                branch("s_cbranch_scc1", f"{lab}_spun"), raw(f"s_cmp_lg_u64 {sCm}, 0"), branch("s_cbranch_scc1", f"{lab}_spin"),
                label(f"{lab}_spun")]

    for lab, e, replay, chk, sync in sc.sites:
        if sync and not chk:
            rare += [label(f"{lab}_rare")] + spin(lab) + [branch("s_branch", f"{lab}_back")]
    if P["check"]:
        for typ in (0, 1):
            mine = [(n, s) for n, s in enumerate(sc.sites) if buf(s[1], wp) == typ and s[3]]
            for n, (lab, e, replay, chk, sync) in mine:
                rare.append(label(f"{lab}_rare"))
                if sync:
                    rare += spin(lab)
                    rare += [raw(f"v_cmp_lt_f32 vcc, {sTh}, {vChk}"), raw("s_nop 4"), branch("s_cbranch_vccz", f"{lab}_back")]
                rare.append(salu("s_mov_b32", sRet, n))
                rare.append(salu("s_mov_b32", sT[10], 0 if e == NG - 1 else 1))
                rare.append(salu("s_mov_b32", sT[11], sc.site_ph[lab] * HEADK))
                if 2 <= e <= 5:
                    rare.append(salu("s_sub_u32", sT[12], 6, sCnt))
                    rare.append(salu("s_mul_i32", sT[12], sT[12], 4 * GRP))
                    rare.append(salu("s_add_u32", sT[11], sT[11], sT[12]))
                rare.append(salu("s_add_u32", sT[11], sT[11], e * GRP))
                rare.append(branch("s_branch", f"L_rare_{wp}_{typ}"))
            com = rare_common(wp, typ)
            Sim().run([(i, 0) for i in com])
            rare += com
            for n, (lab, e, replay, chk, sync) in mine:
                rare.append(scmp("s_cmp_eq_u32", sRet, n))
                rare.append(branch("s_cbranch_scc1", f"{lab}_replay"))
            rare.append(raw("s_endpgm"))
            for n, (lab, e, replay, chk, sync) in mine:
                rp = [label(f"{lab}_replay")]
                for k in replay:
                    rp += item_insts(k, wp, e)
                rp.append(raw("s_nop 4"))
                Sim().run([(i, 0) for i in rp])
                rare += rp
                rare.append(branch("s_branch", f"{lab}_back"))
    return static, dyn, rare


def main():
    pro = prologue()
    text = []
    body = []
    for wp in (0, 1):
        for pas in range(2):
            static, dyn, rare = build_phase(wp)
            for _ in range(2):
                sim = Sim()
                sim.run([(i, 0) for i in pro] + dyn(0) + dyn(1))
            for i in static:
                if i.kind == "wait" and i.note and (i.lgk is not None or i.vm is not None):
                    ACTIVE.add(i.note)
        if P["verbose"]:
            nn = sum(i.nop for i in static)
            print(f"wp{wp}: static insts {len(static)} nops {nn} max vq {sim.maxvq}", file=sys.stderr)
        body.append((static, rare))
    hdr = open("standalone__gqa_softmax__near_ridge.s.ref").read().splitlines()
    for ln in hdr:
        if ln.startswith("; @launch"):
            text.append(f"; @launch grid=(256,1,1) block=(256,1,1) lds={LDS_BYTES}")
        elif ln.startswith(";"):
            text.append(ln)
        else:
            break
    text += ["; Generated by gen/genk.py " + " ".join(sys.argv[2:]),
             '.amdgcn_target "amdgcn-amd-amdhsa--gfx950"', ".text", f".globl {NAME}", ".p2align 8",
             f".type {NAME},@function", f"{NAME}:"]
    text += render(pro)
    for static, rare in body:
        text += render(static)
    text.append("L_hot_end:")
    for static, rare in body:
        text += render(rare)
    text += ["L_end:", "    s_endpgm", '.section .rodata,"a"', ".p2align 6", f".amdhsa_kernel {NAME}",
             "  .amdhsa_next_free_vgpr 512", "  .amdhsa_next_free_sgpr 102", "  .amdhsa_accum_offset 256",
             "  .amdhsa_group_segment_fixed_size 0", "  .amdhsa_kernarg_size 48", "  .amdhsa_user_sgpr_count 2",
             "  .amdhsa_user_sgpr_kernarg_segment_ptr 1", "  .amdhsa_system_sgpr_workgroup_id_x 1", ".end_amdhsa_kernel", ""]
    open(sys.argv[1], "w").write("\n".join(text))


main()
```
